```python
import torch

def _softmax(x, axis=-1):
    return torch.softmax(x, dim=axis)
def _gelu(x):
    return torch.nn.functional.gelu(x, approximate="tanh")
def _silu(x):
    return torch.nn.functional.silu(x)
def _sigmoid(x):
    return torch.sigmoid(x)
def _layernorm(x, axis=-1, eps=1e-5):
    m = x.mean(dim=axis, keepdim=True)
    v = x.var(dim=axis, keepdim=True, unbiased=False)
    return (x - m) / torch.sqrt(v + eps)
def _scatter_add(tgt, idx, src, axis=0):
    return tgt.clone().index_add_(axis, idx, src)
def _segment_sum(src, seg, n):
    out = torch.zeros((n,) + src.shape[1:], dtype=src.dtype)
    return out.index_add_(0, seg, src)
def _pad(x, pw):
    flat = tuple(v for pair in reversed(pw) for v in pair)
    return torch.nn.functional.pad(x, flat)

kernel_name = 'concat_heads__spectral_fnet__mha_block__prompt'

def setup_inputs():

    _w = (lambda a: (lambda t: t.to(torch.bfloat16) if t.is_floating_point() else t)(torch.as_tensor(a)))
    def _A_setup():
        B, S, D = 1, 2048, 1024
        ns = torch.arange(S)[:, None] * torch.arange(S)[None, :]
        nd = torch.arange(D)[:, None] * torch.arange(D)[None, :]
        Ws_re = torch.cos(-2.0 * torch.pi * ns / S).to(float)
        Ws_im = torch.sin(-2.0 * torch.pi * ns / S).to(float)
        Wd_re = torch.cos(-2.0 * torch.pi * nd / D).to(float)
        Wd_im = torch.sin(-2.0 * torch.pi * nd / D).to(float)
        return {
            "x": _w((lambda *s: torch.randn(*s, dtype=torch.bfloat16) * 0.05)(B, S, D)),
            "dft_seq_re": _w(Ws_re),
            "dft_seq_im": _w(Ws_im),
            "dft_hid_re": _w(Wd_re),
            "dft_hid_im": _w(Wd_im),
        }
    _A_in = _A_setup()

    def _B_setup():
        B, S, D, H = 1, 2048, 1024, 32
        return {
            "x": _w((lambda *s: torch.randn(*s, dtype=torch.bfloat16) * 0.2)(B, S, D)),
            "wqkv": _w((lambda *s: torch.randn(*s, dtype=torch.bfloat16) * 0.8)(D, 3 * D)),
            "wo": _w((lambda *s: torch.randn(*s, dtype=torch.bfloat16) * 0.2)(D, D)),
        }
    _B_in = _B_setup()

    return {
        "A_x": _A_in["x"],
        "A_dft_seq_re": _A_in["dft_seq_re"],
        "A_dft_seq_im": _A_in["dft_seq_im"],
        "A_dft_hid_re": _A_in["dft_hid_re"],
        "A_dft_hid_im": _A_in["dft_hid_im"],
        "B_x": _B_in["x"],
        "B_wqkv": _B_in["wqkv"],
        "B_wo": _B_in["wo"],
    }

def reference(A_x, A_dft_seq_re, A_dft_seq_im, A_dft_hid_re, A_dft_hid_im, B_x, B_wqkv, B_wo):
    def _A_ref(x, dft_seq_re, dft_seq_im, dft_hid_re, dft_hid_im):
        a = torch.einsum("bsd,ed->bse", x, dft_hid_re)
        b = torch.einsum("bsd,ed->bse", x, dft_hid_im)
        y = torch.einsum("ts,bse->bte", dft_seq_re, a) - torch.einsum("ts,bse->bte", dft_seq_im, b)
        return y

    def _B_ref(x, wqkv, wo):
        B, S, D = x.shape
        H = 32
        Dh = D // H
        qkv = (lambda x, *d: x.permute(*d))((x @ wqkv).reshape(B, S, 3, H, Dh), 2, 0, 3, 1, 4)
        q, k, v = qkv[0], qkv[1], qkv[2]
        scores = torch.einsum("bhqd,bhkd->bhqk", q, k) * (Dh ** -0.5)
        p = _softmax(scores, axis=-1)
        o = torch.einsum("bhqk,bhkd->bhqd", p, v)
        return (lambda x, *d: x.permute(*d))(o, 0, 2, 1, 3).reshape(B, S, D) @ wo

    a = _A_ref(A_x, A_dft_seq_re, A_dft_seq_im, A_dft_hid_re, A_dft_hid_im)
    b = _B_ref(B_x, B_wqkv, B_wo)
    return torch.concatenate([a, b], axis=-1)
```

```python
import re

TRANS = ("v_exp_f32", "v_log_f32", "v_rcp_f32", "v_rsq_f32", "v_sqrt_f32", "v_sin_f32", "v_cos_f32")

def regs_of(tok):
    tok = tok.strip()
    if tok.startswith("-"): tok = tok[1:]
    if tok.startswith("|") and tok.endswith("|"): tok = tok[1:-1]
    m = re.fullmatch(r"([vsa])(\d+)", tok)
    if m: return {(m.group(1), int(m.group(2)))}
    m = re.fullmatch(r"([vsa])\[(\d+):(\d+)\]", tok)
    if m: return {(m.group(1), i) for i in range(int(m.group(2)), int(m.group(3)) + 1)}
    if tok in ("vcc", "vcc_lo", "vcc_hi"): return {("x", "vcc")}
    if tok in ("exec", "exec_lo", "exec_hi"): return {("x", "exec")}
    if tok == "m0": return {("x", "m0")}
    return set()

class Ins:
    __slots__ = ("text", "op", "cls", "w", "r", "A", "B", "C", "D", "passes", "ws", "lds", "dpp", "sr", "sdata")
    def __init__(self, text):
        self.text = text
        t = text.split(";")[0].strip()
        parts = t.split(None, 1)
        self.op = op = parts[0]
        rest = parts[1] if len(parts) > 1 else ""
        ops, cur, depth = [], "", 0
        for ch in rest:
            if ch == "[": depth += 1
            if ch == "]": depth -= 1
            if ch == "," and depth == 0:
                ops.append(cur); cur = ""
            else: cur += ch
        if cur.strip(): ops.append(cur)
        mods = ""
        if ops:
            last = ops[-1].strip().split(None, 1)
            ops[-1] = last[0]
            mods = last[1] if len(last) > 1 else ""
        ops = [o.strip() for o in ops]
        R = [regs_of(o) for o in ops]
        self.w, self.r = set(), set()
        self.A = self.B = self.C = self.D = set()
        self.passes = 0; self.ws = 1; self.lds = False; self.dpp = False; self.sr = set(); self.sdata = set()
        if op == "s_nop":
            self.cls = "nop"; self.ws = int(ops[0], 0) + 1
        elif op.startswith("v_mfma") or op.startswith("v_smfmac"):
            self.cls = "mfma"
            self.passes = 8 if "32x32" in op else 4
            self.D = R[0]; self.A = R[1]; self.B = R[2]
            if op.startswith("v_smfmac"):
                self.C = R[0]; self.A = R[1] | R[3]
            else:
                self.C = R[3]
            self.w = set(self.D); self.r = self.A | self.B | self.C
        elif op.startswith("v_"):
            self.cls = "valu"
            self.dpp = "_dpp" in op or "quad_perm" in mods or "row_" in mods
            if op.startswith("v_cmp"):
                self.w = R[0]; self.r = set().union(*R[1:])
            elif op.startswith("v_permlane"):
                self.w = R[0] | R[1]; self.r = R[0] | R[1]
            else:
                self.w = set(R[0]); self.r = set().union(*R[1:]) if len(R) > 1 else set()
                if op.startswith(("v_add_co", "v_sub_co", "v_addc_co")):
                    self.w |= R[1]
                if op.startswith(("v_fmac", "v_dot2c", "v_mac")) or self.dpp: self.r |= R[0]
                if op.startswith("v_cndmask") and len(ops) == 3: self.r |= {("x", "vcc")}
        elif op.startswith("buffer_") or op.startswith("global_"):
            self.cls = "vmem"
            self.lds = " lds" in (" " + mods + " ") or mods.endswith("lds")
            if op in ("buffer_inv", "buffer_wbl2"):
                pass
            elif "load" in op and not self.lds:
                self.w = R[0]; self.r = set().union(*R[1:])
            else:
                self.r = set().union(*R)
                if "store" in op and ("x3" in op or "x4" in op): self.sdata = R[0]
                if "atomic" in op and ("sc0" in mods): self.w = R[0]
            if self.lds: self.r |= {("x", "m0")}
            self.sr = {x for x in self.r if x[0] == "s"}
        elif op.startswith("ds_"):
            self.cls = "ds"
            if "read" in op or "permute" in op or "swizzle" in op:
                self.w = R[0]; self.r = set().union(*R[1:])
            else:
                self.r = set().union(*R)
        elif op.startswith("s_"):
            self.cls = "salu"
            if op.startswith(("s_cmp", "s_cbranch", "s_branch", "s_waitcnt", "s_barrier", "s_endpgm", "s_setprio", "s_sleep", "s_bitcmp")):
                self.r = set().union(*R) if R else set()
            else:
                self.w = set(R[0]) if R else set(); self.r = set().union(*R[1:]) if len(R) > 1 else set()
                if "saveexec" in op: self.w |= {("x", "exec")}
        else:
            raise ValueError("unknown instr: " + text)

def need(p, c):
    n = 0
    pv = {x for x in p.w if x[0] in "va"}
    if p.cls == "valu":
        ps = {x for x in p.w if x[0] == "s" or x == ("x", "vcc")}
        if c.cls == "mfma" and pv & c.r: n = max(n, 2)
        if c.cls == "valu":
            if p.op.startswith(TRANS) and not c.op.startswith(TRANS) and pv & (c.r | c.w): n = max(n, 1)
            if p.op.startswith(TRANS) and c.op.startswith(TRANS) and pv & c.r: n = max(n, 1)
            if c.op.startswith("v_permlane") and pv & c.r: n = max(n, 2)
            if c.dpp and pv & c.r: n = max(n, 2)
            if c.op.startswith(("v_readlane", "v_readfirstlane")) and pv & c.r: n = max(n, 1)
            if ps & c.r: n = max(n, 4 if c.op.startswith(("v_readlane", "v_writelane")) else 2)
            if p.op.startswith("v_dot") and pv & (c.r | c.w) and c.op != p.op: n = max(n, 3)
        if p.op.startswith(TRANS) and c.cls in ("vmem", "ds") and pv & c.r: n = max(n, 1)
        if p.op.startswith("v_dot") and c.cls in ("vmem", "ds", "mfma") and pv & c.r: n = max(n, 3)
        if c.cls == "vmem" and ps & c.r: n = max(n, 5)
        if ("x", "exec") in p.w and c.cls in ("mfma", "valu"): n = max(n, 5)
    if p.cls == "mfma":
        big = 12 if p.passes == 8 else 8
        if c.cls == "mfma":
            if p.D & (c.A | c.B): n = max(n, big)
            if p.D & c.C:
                if not (p.D == c.C and p.passes == c.passes): n = max(n, big - 2)
            elif p.D & c.D: n = max(n, big - 2)
        elif c.cls in ("valu", "vmem", "ds"):
            if p.D & (c.r | c.w): n = max(n, big)
        if c.cls == "valu" and p.C & c.w: n = max(n, 7 if p.passes == 8 else 3)
    if p.cls == "salu" and ("x", "m0") in p.w and c.cls == "vmem" and c.lds: n = max(n, 1)
    if p.cls == "vmem" and p.sdata and p.sdata & c.w: n = max(n, 2)
    return n

class Prog:
    def __init__(self):
        self.L = []
    def __call__(self, s):
        for line in s.split("\n"):
            line = line.strip()
            if line: self.L.append(line)
    def label(self, n): self.L.append(n + ":")

def is_label(s): return s.endswith(":") and " " not in s
def is_dir(s): return s.startswith(".") or s.startswith(";")

WIN = 24
def pad(lines, report=None):
    out = []
    def deficit(hist, c):
        d = 0; dist = 0
        for p in reversed(hist):
            if dist >= WIN: break
            n = need(p, c)
            if n > dist: d = max(d, n - dist)
            dist += p.ws
        return d
    hist = []
    lastlab = None
    for s in lines:
        if is_label(s) or is_dir(s):
            if is_label(s) and (lastlab is None or lastlab[1] != len(hist)): lastlab = (len(out), len(hist))
            out.append((s, None)); continue
        c = Ins(s)
        if lastlab is not None:
            dpost = deficit(hist[lastlab[1]:], c)
        else:
            dpost = deficit(hist, c)
        d = dpost
        while d > 0:
            k = min(d, 16)
            nop = Ins(f"s_nop {k-1}")
            out.append((nop.text, nop)); hist.append(nop); d -= k
            if report is not None: report.append((k, s))
        d = deficit(hist, c)
        while d > 0:
            k = min(d, 16)
            nop = Ins(f"s_nop {k-1}")
            out.insert(lastlab[0], (nop.text, nop)); hist.insert(lastlab[1], nop)
            lastlab = (lastlab[0] + 1, lastlab[1] + 1); d -= k
            if report is not None: report.append((k, "(pre-label) " + s))
        out.append((s, c)); hist.append(c)
        if c.op in ("s_branch", "s_endpgm"): hist = []; lastlab = None
    changed = True
    while changed:
        changed = False
        lab = {t[:-1]: i for i, (t, c) in enumerate(out) if c is None and is_label(t)}
        for i, (t, c) in enumerate(out):
            if c is None or not c.op.startswith(("s_branch", "s_cbranch")): continue
            tgt = t.split(";")[0].split()[1]
            j = lab[tgt]
            tail = []
            k = i
            while k >= 0 and len(tail) < WIN:
                if out[k][1] is not None:
                    if k != i and out[k][1].op in ("s_branch", "s_endpgm"): break
                    tail.append(out[k][1])
                k -= 1
            tail.reverse()
            h = list(tail); worst = 0; cnt = 0
            k = j
            while k < len(out) and cnt < WIN:
                cc = out[k][1]
                if cc is not None:
                    dist = sum(x.ws for x in h[len(tail):])
                    d = 0
                    for p in reversed(tail):
                        if dist >= WIN: break
                        n = need(p, cc)
                        if n > dist: d = max(d, n - dist)
                        dist += p.ws
                    worst = max(worst, d)
                    h.append(cc); cnt += cc.ws
                    if cc.op in ("s_branch", "s_endpgm"): break
                k += 1
            if worst > 0:
                nop = Ins(f"s_nop {min(worst,16)-1}")
                out.insert(i, (nop.text, nop))
                if report is not None: report.append((worst, "before branch " + t))
                changed = True
                break
    return [t for t, c in out]

def fmt(lines):
    return "\n".join((s if (is_label(s) or s.startswith(".")) else "    " + s) for s in lines)
```

```python
import sys
sys.path.insert(0, "gen")
from asmlib import Prog, pad, fmt, Ins

MB = 1 << 20
WS_QF = 0
WS_KV = 4 * MB
WS_OF = 12 * MB
WS_XEE = 16 * MB
WS_XOO = 17 * MB
WS_TE = 18 * MB
WS_TO = 19 * MB
WS_SM = 20 * MB
SM_X512 = 0
SM_G = 4096
SM_C = 8192
WS_SIZE = 21 * MB

def srd(P, d, base, nbytes, off=None):
    if off is None or off == 0:
        P(f"s_mov_b32 s{d}, s{base}")
        P(f"s_mov_b32 s{d+1}, s{base+1}")
    else:
        P(f"s_add_u32 s{d}, s{base}, {off}")
        P(f"s_addc_u32 s{d+1}, s{base+1}, 0")
    P(f"s_mov_b32 s{d+2}, {nbytes}")
    P(f"s_mov_b32 s{d+3}, 0x00020000")

class LG:
    def __init__(self, P, q=None):
        self.P = P; self.q = list(q or [])
    def issue(self, text, tag):
        self.P(text); self.q.append(tag)
    def need(self, *tags):
        idx = -1
        for t in tags:
            if t in self.q:
                i = len(self.q) - 1 - self.q[::-1].index(t)
                idx = max(idx, i)
        if idx >= 0:
            n = len(self.q) - 1 - idx
            n = min(n, 15)
            self.P(f"s_waitcnt lgkmcnt({n})")
            self.q = self.q[len(self.q) - n:] if n else []
    def drain(self):
        if self.q:
            self.P("s_waitcnt lgkmcnt(0)"); self.q = []

def kdesc(name, vgpr, sgpr=96):
    acc = min(256, (vgpr + 3) // 4 * 4)
    return f""".p2align 6
.amdhsa_kernel {name}
  .amdhsa_next_free_vgpr {vgpr}
  .amdhsa_next_free_sgpr {sgpr}
  .amdhsa_accum_offset {acc}
  .amdhsa_group_segment_fixed_size 0
  .amdhsa_kernarg_size 88
  .amdhsa_user_sgpr_count 2
  .amdhsa_user_sgpr_kernarg_segment_ptr 1
  .amdhsa_system_sgpr_workgroup_id_x 1
.end_amdhsa_kernel"""

def khead(name):
    return f""".globl {name}
.p2align 8
.type {name},@function
{name}:"""

def vr(a, n): return f"v[{a}:{a+n-1}]"
def sr(a, n): return f"s[{a}:{a+n-1}]"

def dpp_sum(P, v, t=None):
    for m in ("row_shr:1", "row_shr:2", "row_shr:4", "row_shr:8"):
        P(f"v_add_f32_dpp v{v}, v{v}, v{v} {m} row_mask:0xf bank_mask:0xf bound_ctrl:0")
    P(f"v_add_f32_dpp v{v}, v{v}, v{v} row_bcast:15 row_mask:0xa bank_mask:0xf")
    P(f"v_add_f32_dpp v{v}, v{v}, v{v} row_bcast:31 row_mask:0xc bank_mask:0xf")
```

```python
from common import *
import math, struct

def f32hex(x): return "0x%08x" % struct.unpack("<I", struct.pack("<f", x))[0]

def k1(opt):
    P = Prog()
    name = "k1_kernel"
    SLOT = 40960
    P("s_cmp_ge_u32 s2, 256")
    P("s_cbranch_scc1 K1_END")
    P("s_load_dwordx2 s[4:5], s[0:1], 40")
    P("s_load_dwordx2 s[6:7], s[0:1], 48")
    P("s_load_dwordx2 s[8:9], s[0:1], 80")
    P("s_load_dwordx2 s[10:11], s[0:1], 0")
    P("s_load_dwordx2 s[12:13], s[0:1], 24")
    P("v_lshrrev_b32 v1, 6, v0")
    P("v_and_b32 v0, 63, v0")
    P("v_readfirstlane_b32 s36, v1")
    P("s_and_b32 s37, s2, 7")
    P("s_lshr_b32 s38, s2, 3")
    P("s_and_b32 s39, s37, 1"); P("s_lshl_b32 s39, s39, 3"); P("s_and_b32 s46, s38, 7"); P("s_add_u32 s39, s39, s46")
    P("s_lshr_b32 s40, s37, 1"); P("s_lshl_b32 s40, s40, 2"); P("s_lshr_b32 s47, s38, 3"); P("s_add_u32 s40, s40, s47")
    sk, sv = opt.get("skew", (5, 10))
    P("s_mov_b32 s41, s40")
    P(f"s_add_u32 s42, s40, {sk}"); P("s_and_b32 s42, s42, 15")
    P(f"s_add_u32 s43, s40, {sv}"); P("s_and_b32 s43, s43, 15")
    P("s_cmp_ge_u32 s36, 4")
    P("s_cbranch_scc1 K1_LOADER")
    P("s_and_b32 s48, s36, 1"); P("s_lshr_b32 s49, s36, 1")
    ACC = [64 + 16 * i for i in range(6)]
    SET = [dict(X0=16, X1=20, WQ=24, WK=28, WV=32), dict(X0=36, X1=40, WQ=44, WK=48, WV=52)]
    XB = [2, 3, 4, 5]; WB = 6
    XA = [8, 9, 10, 11]; WA = 12
    P("v_and_b32 v1, 31, v0")
    P("v_lshrrev_b32 v7, 5, v0")
    P("v_bfe_u32 v13, v0, 1, 3")
    P("v_xor_b32 v7, v7, v13")
    P("v_lshlrev_b32 v7, 4, v7")
    P("v_lshl_add_u32 v7, v1, 7, v7")
    P("s_lshl_b32 s46, s48, 13")
    P(f"v_add_u32 v{XB[0]}, s46, v7")
    for ks in range(1, 4): P(f"v_xor_b32 v{XB[ks]}, {ks << 5}, v{XB[0]}")
    P("v_lshrrev_b32 v1, 5, v0")
    P("v_bfe_u32 v7, v0, 2, 2")
    P("v_lshl_add_u32 v1, v1, 3, v7")
    P("v_lshlrev_b32 v1, 7, v1")
    P("v_bfe_u32 v7, v0, 3, 1")
    P("v_xor_b32 v7, s49, v7")
    P("v_lshl_add_u32 v1, v7, 6, v1")
    P("v_bfe_u32 v7, v0, 4, 1")
    P("v_lshl_add_u32 v1, v7, 5, v1")
    P("v_and_b32 v7, 3, v0")
    P("v_lshl_add_u32 v1, v7, 3, v1")
    P(f"v_add_u32 v{WB}, 0x4000, v1")
    for a in ACC:
        for i in range(16): P(f"v_mov_b32 v{a+i}, 0")
    for i in range(4): P(f"v_mov_b32 v{XA[i]}, v{XB[i]}")
    P(f"v_mov_b32 v{WA}, v{WB}")
    P("s_mov_b32 s44, 0"); P("s_mov_b32 s45, 0")
    P("s_waitcnt lgkmcnt(0)")
    srd(P, 24, 8, WS_SIZE)
    if opt.get("prio", 1): P("s_setprio 2")
    P("s_barrier")
    lg = LG(P)
    def reads(S, ks):
        s = SET[S]
        return [
            (f"ds_read_b128 {vr(s['X0'],4)}, v{XA[ks]}", f"X0{S}"),
            (f"ds_read_b64_tr_b16 {vr(s['WQ'],2)}, v{WA} offset:{ks*2048}", f"WQ{S}"),
            (f"ds_read_b64_tr_b16 {vr(s['WQ']+2,2)}, v{WA} offset:{ks*2048+512}", f"WQ{S}"),
            (f"ds_read_b128 {vr(s['X1'],4)}, v{XA[ks]} offset:4096", f"X1{S}"),
            (f"ds_read_b64_tr_b16 {vr(s['WK'],2)}, v{WA} offset:{8192+ks*2048}", f"WK{S}"),
            (f"ds_read_b64_tr_b16 {vr(s['WK']+2,2)}, v{WA} offset:{8192+ks*2048+512}", f"WK{S}"),
            (f"ds_read_b64_tr_b16 {vr(s['WV'],2)}, v{WA} offset:{16384+ks*2048}", f"WV{S}"),
            (f"ds_read_b64_tr_b16 {vr(s['WV']+2,2)}, v{WA} offset:{16384+ks*2048+512}", f"WV{S}"),
        ]
    def mf(S, i):
        s = SET[S]; a = ACC[i]
        x = "X0" if i % 2 == 0 else "X1"
        w = ("WQ", "WK", "WV")[i // 2]
        lg.need(f"{x}{S}", f"{w}{S}")
        A, B = (s[w], s[x]) if i < 4 else (s[x], s[w])
        P(f"v_mfma_f32_32x32x16_bf16 {vr(a,16)}, {vr(A,4)}, {vr(B,4)}, {vr(a,16)}")
    for t, g in reads(0, 0): lg.issue(t, g)
    q0 = list(lg.q)
    P.label("K1_LOOP")
    for ks in range(4):
        S = ks & 1
        if ks < 3:
            R = reads(1 - S, ks + 1)
            for i in range(6):
                mf(S, i)
                if i < 4:
                    for t, g in R[2 * i:2 * i + 2]: lg.issue(t, g)
        else:
            mf(S, 0)
            P("s_add_u32 s44, s44, 1")
            P(f"s_add_u32 s45, s45, {SLOT}")
            P("s_and_b32 s46, s44, 3")
            P("s_cselect_b32 s45, s45, 0")
            for i in range(4): P(f"v_add_u32 v{XA[i]}, s45, v{XB[i]}")
            P(f"v_add_u32 v{WA}, s45, v{WB}")
            mf(S, 1)
            lg.drain()
            P("s_cmp_eq_u32 s44, 16")
            P("s_cbranch_scc1 K1_NOBAR")
            P("s_barrier")
            P.label("K1_NOBAR")
            R = reads(0, 0)
            for i in range(2, 6):
                for t, g in R[2 * (i - 2):2 * (i - 2) + 2]: lg.issue(t, g)
                mf(S, i)
    assert lg.q == q0, (lg.q, q0)
    P("s_cmp_lg_u32 s44, 16")
    P("s_cbranch_scc1 K1_LOOP")
    P("s_setprio 0")
    P("s_waitcnt lgkmcnt(0)")
    P("s_lshl_b32 s50, s39, 2"); P("s_lshl_b32 s46, s48, 1"); P("s_add_u32 s50, s50, s46")
    P("s_lshl_b32 s51, s41, 1"); P("s_add_u32 s51, s51, s49"); P("s_lshl_b32 s51, s51, 6"); P("s_add_u32 s51, s51, s50"); P("s_lshl_b32 s51, s51, 11")
    P("s_lshl_b32 s52, s42, 1"); P("s_add_u32 s52, s52, s49"); P("s_lshl_b32 s52, s52, 6"); P("s_add_u32 s52, s52, s50"); P("s_lshl_b32 s52, s52, 12"); P(f"s_add_u32 s52, s52, {WS_KV}")
    P("s_lshl_b32 s53, s43, 1"); P("s_add_u32 s53, s53, s49"); P("s_lshl_b32 s53, s53, 6"); P("s_add_u32 s53, s53, s50"); P("s_lshl_b32 s53, s53, 12"); P(f"s_add_u32 s53, s53, {WS_KV+2048}")
    P("s_add_u32 s54, s52, 4096"); P("s_add_u32 s55, s53, 4096")
    P("v_lshlrev_b32 v1, 4, v0")
    P("v_and_b32 v2, 0x33, v0")
    P("v_bfe_u32 v3, v0, 2, 1"); P("v_lshl_or_b32 v2, v3, 3, v2")
    P("v_bfe_u32 v3, v0, 3, 1"); P("v_lshl_or_b32 v2, v3, 2, v2")
    P("v_lshlrev_b32 v2, 4, v2")
    P(f"s_mov_b32 s56, {f32hex(math.log2(math.e) / math.sqrt(32.0))}")
    T = [16, 24, 32, 40, 48, 56]
    order = [2, 3, 4, 5, 0, 1] if opt.get("kvfirst", 1) else [0, 1, 2, 3, 4, 5]
    for n, i in enumerate(order):
        a = ACC[i]; t = T[n]
        if i < 2:
            for r in range(16): P(f"v_mul_f32 v{a+r}, s56, v{a+r}")
        for r in range(8): P(f"v_cvt_pk_bf16_f32 v{t+r}, v{a+2*r}, v{a+2*r+1}")
        if i < 2:   va, so, off = 1, "s51", 2048 * i
        elif i < 4: va, so, off = 2, ("s52", "s54")[i - 2], 0
        else:       va, so, off = 1, ("s53", "s55")[i - 4], 0
        P(f"buffer_store_dwordx4 {vr(t,4)}, v{va}, s[24:27], {so} offen offset:{off}")
        P(f"buffer_store_dwordx4 {vr(t+4,4)}, v{va}, s[24:27], {so} offen offset:{off+1024}")
    P("s_endpgm")
    P.label("K1_LOADER")
    P("s_sub_u32 s36, s36, 4")
    P("v_lshrrev_b32 v1, 3, v0")
    P("v_and_b32 v6, 7, v0")
    P("v_lshrrev_b32 v7, 4, v0")
    P("v_xor_b32 v8, v6, v7")
    P("v_lshlrev_b32 v8, 4, v8")
    P("v_lshl_add_u32 v8, v1, 11, v8")
    P("s_lshl_b32 s46, s39, 18"); P("s_lshl_b32 s47, s36, 16"); P("s_add_u32 s46, s46, s47")
    P("v_add_u32 v2, s46, v8")
    P("v_xor_b32 v3, 64, v2")
    P(f"v_add_u32 v3, {16384-1024}, v3")
    P(f"v_add_u32 v4, {32768-2048}, v2")
    P(f"v_add_u32 v5, {32768-2048}, v3")
    P("v_and_b32 v7, 1, v7")
    P("v_lshlrev_b32 v7, 2, v7")
    P("v_xor_b32 v6, v6, v7")
    P("v_lshlrev_b32 v6, 4, v6")
    P("s_lshl_b32 s46, s36, 4")
    P("v_add_u32 v1, s46, v1")
    P("v_mul_u32_u24 v1, 0x1800, v1")
    P("v_add_u32 v9, v1, v6")
    P(f"v_add_u32 v10, {8*6144-1024}, v9")
    P("s_lshl_b32 s41, s41, 7")
    P("s_lshl_b32 s42, s42, 7"); P("s_add_u32 s42, s42, 2048")
    P("s_lshl_b32 s43, s43, 7"); P("s_add_u32 s43, s43, 4096")
    P("s_lshl_b32 s48, s36, 12")
    P("s_lshl_b32 s49, s36, 11"); P("s_add_u32 s49, s49, 16384")
    if opt.get("rot", 0):
        P("s_and_b32 s46, s38, 7"); P("s_lshl_b32 s46, s46, 1"); P("s_lshr_b32 s47, s38, 3"); P("s_lshl_b32 s47, s47, 2")
        P("s_add_u32 s50, s46, s47"); P("s_and_b32 s50, s50, 15")
    else:
        P("s_mov_b32 s50, 0")
    P("s_mov_b32 s45, 0")
    P("s_mov_b32 s44, 0")
    P("s_waitcnt lgkmcnt(0)")
    srd(P, 16, 4, 4 * MB); srd(P, 20, 6, 6 * MB)
    def issue_stage():
        P("s_lshl_b32 s51, s50, 7")
        P("s_mul_i32 s52, s50, 393216")
        P("s_add_u32 m0, s45, s48")
        P("s_add_u32 s53, s52, s41")
        for i in range(4):
            P(f"buffer_load_dwordx4 v{2+i}, s[16:19], s51 offen offset:{1024*i} lds")
        P("s_add_u32 m0, s45, s49")
        P("s_add_u32 s54, s52, s42")
        P("buffer_load_dwordx4 v9, s[20:23], s53 offen lds")
        P("buffer_load_dwordx4 v10, s[20:23], s53 offen offset:1024 lds")
        P("s_add_u32 m0, m0, 8192")
        P("s_add_u32 s55, s52, s43")
        P("buffer_load_dwordx4 v9, s[20:23], s54 offen lds")
        P("buffer_load_dwordx4 v10, s[20:23], s54 offen offset:1024 lds")
        P("s_add_u32 m0, m0, 8192")
        P("s_add_u32 s50, s50, 1")
        P("buffer_load_dwordx4 v9, s[20:23], s55 offen lds")
        P("buffer_load_dwordx4 v10, s[20:23], s55 offen offset:1024 lds")
        P("s_and_b32 s50, s50, 15")
        P("s_add_u32 s44, s44, 1")
        P(f"s_add_u32 s45, s45, {SLOT}")
        P("s_and_b32 s46, s44, 3")
        P("s_cselect_b32 s45, s45, 0")
    P("s_branch K1_LI")
    P.label("K1_LW")
    P("s_waitcnt vmcnt(20)")
    P("s_barrier")
    P.label("K1_LI")
    issue_stage()
    P("s_cmp_lt_u32 s44, 3")
    P("s_cbranch_scc1 K1_LI")
    P("s_cmp_lt_u32 s44, 16")
    P("s_cbranch_scc1 K1_LW")
    srd(P, 24, 8, WS_SIZE); srd(P, 28, 10, 4 * MB); srd(P, 32, 12, 2 * MB)
    P("s_lshl_b32 s46, s37, 2"); P("s_lshr_b32 s47, s38, 3"); P("s_add_u32 s46, s46, s47")
    P("s_and_b32 s47, s38, 7"); P("s_lshl_b32 s47, s47, 2"); P("s_add_u32 s47, s47, s36")
    P("s_lshl_b32 s51, s46, 5"); P("s_add_u32 s51, s51, s47")
    P("s_lshl_b32 s52, s51, 11")
    P(f"s_sub_u32 s53, {4*MB}, s52")
    P("v_lshlrev_b32 v1, 4, v0")
    P("v_sub_u32 v2, 2032, v1")
    P("v_add_u32 v3, 16, v2")
    P("v_cmp_eq_u32 vcc, 0, v0")
    P("v_mov_b32 v4, 0x7fffffff")
    P("v_cndmask_b32 v3, v3, v4, vcc")
    P("v_add_u32 v5, s53, v1")
    P("v_add_u32 v6, s53, v2")
    P("v_add_u32 v7, s53, v3")
    F1, F2, R1, R2, E1, E2, GX, GW = 16, 20, 24, 28, 32, 33, 36, 44
    P(f"buffer_load_dwordx4 {vr(F1,4)}, v1, s[28:31], s52 offen")
    P(f"buffer_load_dwordx4 {vr(F2,4)}, v5, s[28:31], 0 offen")
    P(f"buffer_load_dwordx4 {vr(R1,4)}, v2, s[28:31], s52 offen")
    P(f"buffer_load_dwordx4 {vr(R2,4)}, v6, s[28:31], 0 offen")
    P(f"buffer_load_ushort v{E1}, v3, s[28:31], s52 offen")
    P(f"buffer_load_ushort v{E2}, v7, s[28:31], 0 offen")
    P("s_lshl_b32 s54, s2, 1"); P("s_add_u32 s54, s54, s36")
    P("s_cmp_eq_u32 s54, 2")
    P("s_movk_i32 s56, 512")
    P("s_cselect_b32 s55, s56, 0x40000")
    P("s_cmp_lt_u32 s36, 2")
    P("s_cselect_b32 s54, s54, s55")
    P("s_lshl_b32 s55, s54, 11")
    P("v_lshlrev_b32 v8, 5, v0")
    P("v_add_u32 v9, s55, v8")
    P(f"s_mov_b32 s56, {2*MB}")
    P("s_cmp_le_u32 s54, 512")
    P("s_cselect_b32 s56, s56, 0x7f000000")
    P("v_add_u32 v10, s56, v8")
    P(f"buffer_load_dwordx4 {vr(GX,4)}, v10, s[28:31], 0 offen")
    P(f"buffer_load_dwordx4 {vr(GX+4,4)}, v10, s[28:31], 0 offen offset:16")
    P(f"buffer_load_dwordx4 {vr(GW,4)}, v9, s[32:35], 0 offen")
    P(f"buffer_load_dwordx4 {vr(GW+4,4)}, v9, s[32:35], 0 offen offset:16")
    F = 10
    P(f"s_waitcnt vmcnt({20+F})"); P("s_barrier")
    P(f"s_waitcnt vmcnt({10+F})"); P("s_barrier")
    P(f"s_waitcnt vmcnt({F})"); P("s_barrier")
    P("s_waitcnt vmcnt(4)")
    def unp(dst, src, j):
        if j & 1: P(f"v_and_b32 v{dst}, 0xffff0000, v{src + (j >> 1)}")
        else:     P(f"v_lshlrev_b32 v{dst}, 16, v{src + (j >> 1)}")
    EE, OO = 64, 72
    for j in range(8):
        unp(52, F1, j); unp(53, F2, j)
        if j == 0:
            P(f"v_lshlrev_b32 v54, 16, v{E1}"); P(f"v_lshlrev_b32 v55, 16, v{E2}")
        else:
            unp(54, R1, 8 - j); unp(55, R2, 8 - j)
        P("v_add_f32 v52, v52, v55")
        P("v_add_f32 v53, v53, v54")
        P(f"v_add_f32 v{EE+j}, v52, v53")
        P(f"v_sub_f32 v{OO+j}, v52, v53")
    unp(54, R1, 0); unp(55, R2, 0)
    P("v_add_f32 v56, v54, v55")
    for r in range(4): P(f"v_cvt_pk_bf16_f32 v{80+r}, v{EE+2*r}, v{EE+2*r+1}")
    for r in range(4): P(f"v_cvt_pk_bf16_f32 v{84+r}, v{OO+2*r}, v{OO+2*r+1}")
    P("v_lshlrev_b32 v1, 9, v0")
    P("s_lshl_b32 s46, s46, 15"); P("s_lshl_b32 s47, s47, 4"); P("s_add_u32 s46, s46, s47")
    P(f"s_add_u32 s47, s46, {WS_XOO}"); P(f"s_add_u32 s46, s46, {WS_XEE}")
    P("buffer_store_dwordx4 v[80:83], v1, s[24:27], s46 offen")
    P("buffer_store_dwordx4 v[84:87], v1, s[24:27], s47 offen")
    P(f"v_sub_f32 v57, v{EE}, v{EE+1}")
    for r in range(1, 4):
        P(f"v_add_f32 v57, v57, v{EE+2*r}"); P(f"v_sub_f32 v57, v57, v{EE+2*r+1}")
    dpp_sum(P, 57)
    P("v_add_f32 v57, v57, v56")
    P("v_cvt_pk_bf16_f32 v57, v57, v57")
    P("s_waitcnt vmcnt(2)")
    P("v_mov_b32 v58, 0")
    for r in range(8): P(f"v_dot2_f32_bf16 v58, v{GX+r}, v{GW+r}, v58")
    dpp_sum(P, 58)
    P("s_lshl_b32 s46, s51, 2"); P(f"s_add_u32 s46, s46, {WS_SM+SM_X512}")
    P("s_lshl_b32 s47, s51, 1"); P(f"s_add_u32 s47, s47, {WS_SM+SM_C}")
    P("s_lshl_b32 s55, s54, 2"); P(f"s_add_u32 s55, s55, {WS_SM+SM_G}")
    P("v_mov_b32 v1, s46"); P("v_mov_b32 v2, s47"); P("v_mov_b32 v3, s55")
    P("s_mov_b32 exec_lo, 0"); P("s_mov_b32 exec_hi, 0x80000000")
    P("buffer_store_dword v56, v1, s[24:27], 0 offen")
    P("buffer_store_short v57, v2, s[24:27], 0 offen")
    P("buffer_store_dword v58, v3, s[24:27], 0 offen")
    P.label("K1_END")
    P("s_endpgm")
    return name, P.L, 160, "grid=(256,1,1) block=(512,1,1) lds=163840"
```

```python
from common import *
from k1 import f32hex

MF = "v_mfma_f32_32x32x16_bf16"

def attn(P, opt):
    ONES, L, Q, K, V, C, O, SA, SB = 8, 12, 16, 24, 32, 40, 56, 72, 88
    P("v_lshrrev_b32 v1, 6, v0")
    P("v_and_b32 v0, 63, v0")
    P("v_readfirstlane_b32 s16, v1")
    P("s_and_b32 s17, s2, 7"); P("s_lshl_b32 s17, s17, 2"); P("s_lshr_b32 s19, s2, 6"); P("s_add_u32 s17, s17, s19")
    P("s_bfe_u32 s18, s2, 0x30003"); P("s_lshl_b32 s18, s18, 3"); P("s_add_u32 s18, s18, s16")
    P("v_lshlrev_b32 v1, 4, v0")
    P("s_lshl_b32 s23, s16, 11")
    P("v_add_u32 v4, s23, v1")
    P("s_lshl_b32 s19, s17, 18"); P(f"s_add_u32 s19, s19, {WS_KV}")
    P("s_lshl_b32 s24, s17, 6"); P("s_add_u32 s24, s24, s18"); P("s_lshl_b32 s24, s24, 11")
    P("s_waitcnt lgkmcnt(0)")
    srd(P, 8, 4, 256 * 1024, "s19")
    srd(P, 12, 4, WS_SIZE)
    P(f"buffer_load_dwordx4 {vr(Q,4)}, v1, s[12:15], s24 offen")
    P(f"buffer_load_dwordx4 {vr(Q+4,4)}, v1, s[12:15], s24 offen offset:1024")
    P(f"buffer_load_dwordx4 {vr(K,4)}, v1, s[8:11], 0 offen")
    P(f"buffer_load_dwordx4 {vr(K+4,4)}, v1, s[8:11], 0 offen offset:1024")
    for c in range(3):
        P(f"s_add_u32 m0, s23, {c*16384}")
        P("buffer_load_dwordx4 v4, s[8:11], 0 offen lds")
        P("buffer_load_dwordx4 v4, s[8:11], 0 offen offset:1024 lds")
        P("v_add_u32 v4, 0x4000, v4")
    P("v_mov_b32 v5, 0xdddddddd")
    P("v_and_b32 v6, 7, v0")
    P("v_mov_b32 v7, 0x3f803f80")
    P("v_cmp_eq_u32 vcc, 0, v6")
    P(f"v_cndmask_b32 v{ONES}, 0, v7, vcc"); P(f"v_cndmask_b32 v{ONES+1}, 0, v7, vcc")
    P("v_cmp_eq_u32 vcc, 4, v6")
    P(f"v_cndmask_b32 v{ONES+2}, 0, v7, vcc"); P(f"v_cndmask_b32 v{ONES+3}, 0, v7, vcc")
    for i in range(8, 16): P(f"v_mov_b32 v{SB+i}, 0")
    for i in range(4, 8): P(f"v_mov_b32 v{V+i}, 0")
    P("v_mov_b32 v2, v1")
    P("v_add_u32 v3, 0x4000, v1")
    P("s_mov_b32 s20, 1")
    P("s_mov_b32 s21, 0")
    P(f"s_mov_b32 s25, {f32hex(float(opt.get('margin', 88)))}")
    P("s_mov_b32 s26, 0")
    P("v_mov_b32 v6, 0xff800000")
    P("s_waitcnt vmcnt(6)")
    P("s_branch AT_MPIN")
    P.label("AT_MP")
    P(f"buffer_load_dwordx4 {vr(K,4)}, v1, s[8:11], s21 offen")
    P(f"buffer_load_dwordx4 {vr(K+4,4)}, v1, s[8:11], s21 offen offset:1024")
    P("s_waitcnt vmcnt(0)")
    P.label("AT_MPIN")
    P(f"{MF} {vr(SA,16)}, {vr(K,4)}, {vr(Q,4)}, 0")
    P(f"{MF} {vr(SA,16)}, {vr(K+4,4)}, {vr(Q+4,4)}, {vr(SA,16)}")
    for i in range(16): P(f"v_mov_b32 v{O+i}, 0")
    for i in range(4): P(f"v_mov_b32 v{L+i}, 0")
    for i in range(8): P(f"v_max3_f32 v6, v6, v{SA+2*i}, v{SA+2*i+1}")
    P("s_add_u32 s21, s21, 4096")
    P("s_sub_u32 s20, s20, 1")
    P("s_cmp_lg_u32 s20, 0")
    P("s_cbranch_scc1 AT_MP")
    P("v_mov_b32 v7, v6")
    P("v_permlane32_swap_b32 v6, v7")
    P("v_max_f32 v6, v6, v7")
    P("v_add_f32 v6, s25, v6")
    for i in range(16): P(f"v_sub_f32 v{C+i}, 0, v6")
    P("s_cmp_lg_u32 s26, 0")
    P("s_cbranch_scc1 AT_SLOW")
    P(f"{MF} {vr(SA,16)}, {vr(K,4)}, {vr(Q,4)}, {vr(C,16)}")
    P(f"{MF} {vr(SA,16)}, {vr(K+4,4)}, {vr(Q+4,4)}, {vr(SA,16)}")
    P("s_mov_b32 s22, 0")
    P("s_waitcnt vmcnt(4)")
    P("s_barrier")
    lg = LG(P)
    lg.issue(f"ds_read_b128 {vr(V+4,4)}, v2 offset:3072", "V1")
    lg.issue(f"ds_read_b128 {vr(K,4)}, v2 offset:4096", "K0")
    lg.issue(f"ds_read_b128 {vr(K+4,4)}, v2 offset:5120", "K1")
    lg.issue(f"ds_read_b128 {vr(V,4)}, v2 offset:2048", "V0")
    q0 = list(lg.q)
    order = opt.get("order", "ee P eee L ee M eee N ee p eee l e").replace(" ", "")
    P.label("AT_LOOP")
    for u in range(4):
        S, T = (SA, SB) if u % 2 == 0 else (SB, SA)
        def at(tile, off):
            return (f"v2 offset:{tile*4096+off}" if tile < 4 else f"v3 offset:{(tile-4)*4096+off}")
        e = 0
        if u == 2:
            P("s_add_u32 s27, s22, 3"); P("s_and_b32 s27, s27, 3"); P("s_lshl_b32 s27, s27, 14"); P("s_add_u32 m0, s27, s23")
        for n, ch in enumerate(order):
            if ch == "e":
                P(f"v_exp_f32 v{S+e}, v{S+e}"); e += 1
            elif ch == "P":
                lg.need("V1")
                P(f"v_smfmac_f32_32x32x32_bf16 {vr(O,16)}, {vr(V+4,4)}, {vr(T+8,8)}, v5")
                lg.issue(f"ds_read_b128 {vr(V+4,4)}, {at(u,3072)}", "V1")
            elif ch == "L":
                P(f"v_smfmac_f32_16x16x64_bf16 {vr(L,4)}, {vr(ONES,4)}, {vr(T+8,8)}, v5")
                if u == 2:
                    P("s_waitcnt vmcnt(2)")
                    P("s_barrier")
                    P("buffer_load_dwordx4 v4, s[8:11], 0 offen lds")
                    P("buffer_load_dwordx4 v4, s[8:11], 0 offen offset:1024 lds")
                    P("v_add_u32 v4, 0x4000, v4")
            elif ch == "M":
                lg.need("K0")
                P(f"{MF} {vr(T,16)}, {vr(K,4)}, {vr(Q,4)}, {vr(C,16)}")
                lg.issue(f"ds_read_b128 {vr(K,4)}, {at(u+2,0)}", "K0")
            elif ch == "N":
                lg.need("K1")
                P(f"{MF} {vr(T,16)}, {vr(K+4,4)}, {vr(Q+4,4)}, {vr(T,16)}")
                lg.issue(f"ds_read_b128 {vr(K+4,4)}, {at(u+2,1024)}", "K1")
            elif ch == "p":
                assert e >= 8
                lg.need("V0")
                P(f"v_smfmac_f32_32x32x32_bf16 {vr(O,16)}, {vr(V,4)}, {vr(S,8)}, v5")
                lg.issue(f"ds_read_b128 {vr(V,4)}, {at(u+1,2048)}", "V0")
                if u == 3:
                    P("s_add_u32 s22, s22, 1")
                    P("s_add_u32 s27, s22, 1"); P("s_and_b32 s27, s27, 3"); P("s_lshl_b32 s27, s27, 14")
                    P("v_mov_b32 v2, v3")
                    P("v_add_u32 v3, s27, v1")
            elif ch == "l":
                P(f"v_smfmac_f32_16x16x64_bf16 {vr(L,4)}, {vr(ONES,4)}, {vr(S,8)}, v5")
        assert e == 16
    assert lg.q == q0, (lg.q, q0)
    P("s_cmp_lg_u32 s22, 16")
    P("s_cbranch_scc1 AT_LOOP")
    lg.need("V1")
    P(f"v_smfmac_f32_32x32x32_bf16 {vr(O,16)}, {vr(V+4,4)}, {vr(SB+8,8)}, v5")
    P(f"v_smfmac_f32_16x16x64_bf16 {vr(L,4)}, {vr(ONES,4)}, {vr(SB+8,8)}, v5")
    P("s_waitcnt vmcnt(0) lgkmcnt(0)")
    P(f"v_add_f32 v6, |v{O}|, |v{O+1}|")
    P(f"v_add_f32 v7, |v{O+2}|, |v{O+3}|")
    for i in range(4, 16, 2):
        P(f"v_add_f32 v6, v6, |v{O+i}|"); P(f"v_add_f32 v7, v7, |v{O+i+1}|")
    P("v_add_f32 v6, v6, v7")
    P(f"s_mov_b32 s27, {f32hex(2.0**-104)}")
    P(f"s_mov_b32 s28, {f32hex(2.0**120)}")
    P("v_cmp_lt_f32 s[30:31], s27, v6")
    P("v_cmp_gt_f32 s[32:33], s28, v6")
    P(f"v_cmp_gt_f32 vcc, s28, v{L}")
    P("s_and_b64 s[30:31], s[30:31], s[32:33]")
    P("s_and_b64 s[30:31], s[30:31], vcc")
    if opt.get("force_slow"): P("s_mov_b64 s[30:31], 0")
    P("s_cmp_eq_u64 s[30:31], -1")
    P("s_cbranch_scc1 AT_FIN")
    P("s_mov_b32 s26, 1"); P("s_mov_b32 s25, 0"); P("s_mov_b32 s20, 64"); P("s_mov_b32 s21, 0")
    P("v_mov_b32 v6, 0xff800000")
    P("s_branch AT_MP")
    P.label("AT_SLOW")
    P("s_mov_b32 s21, 0")
    P.label("AT_SL")
    P(f"buffer_load_dwordx4 {vr(K,4)}, v1, s[8:11], s21 offen")
    P(f"buffer_load_dwordx4 {vr(K+4,4)}, v1, s[8:11], s21 offen offset:1024")
    P(f"buffer_load_dwordx4 {vr(V,4)}, v1, s[8:11], s21 offen offset:2048")
    P(f"buffer_load_dwordx4 {vr(V+4,4)}, v1, s[8:11], s21 offen offset:3072")
    P("s_waitcnt vmcnt(0)")
    P(f"{MF} {vr(SA,16)}, {vr(K,4)}, {vr(Q,4)}, {vr(C,16)}")
    P(f"{MF} {vr(SA,16)}, {vr(K+4,4)}, {vr(Q+4,4)}, {vr(SA,16)}")
    for i in range(16): P(f"v_exp_f32 v{SA+i}, v{SA+i}")
    P(f"v_smfmac_f32_32x32x32_bf16 {vr(O,16)}, {vr(V,4)}, {vr(SA,8)}, v5")
    P(f"v_smfmac_f32_16x16x64_bf16 {vr(L,4)}, {vr(ONES,4)}, {vr(SA,8)}, v5")
    P(f"v_smfmac_f32_32x32x32_bf16 {vr(O,16)}, {vr(V+4,4)}, {vr(SA+8,8)}, v5")
    P(f"v_smfmac_f32_16x16x64_bf16 {vr(L,4)}, {vr(ONES,4)}, {vr(SA+8,8)}, v5")
    P("s_nop 15")
    P("s_add_u32 s21, s21, 4096")
    P("s_cmp_lg_u32 s21, 0x40000")
    P("s_cbranch_scc1 AT_SL")
    P.label("AT_FIN")
    P(f"v_rcp_f32 v6, v{L}")
    P("s_lshl_b32 s24, s18, 5"); P("s_add_u32 s24, s24, s17"); P("s_lshl_b32 s24, s24, 11"); P(f"s_add_u32 s24, s24, {WS_OF}")
    for i in range(16): P(f"v_mul_f32 v{O+i}, v6, v{O+i}")
    for i in range(8): P(f"v_cvt_pk_bf16_f32 v{SA+i}, v{O+2*i}, v{O+2*i+1}")
    P(f"buffer_store_dwordx4 {vr(SA,4)}, v1, s[12:15], s24 offen")
    P(f"buffer_store_dwordx4 {vr(SA+4,4)}, v1, s[12:15], s24 offen offset:1024")
    P("s_endpgm")

def frag_addrs(P, PA):
    P("v_and_b32 v1, 31, v0")
    P("v_lshrrev_b32 v2, 5, v0")
    P(f"v_and_b32 v{PA}, 15, v0")
    P(f"v_xor_b32 v2, v2, v{PA}")
    P("v_lshlrev_b32 v2, 4, v2")
    P(f"v_lshl_add_u32 v{PA}, v1, 8, v2")

def dma_addrs(P, DA, rowshift, sbase):
    P("v_lshrrev_b32 v1, 4, v0")
    P("v_and_b32 v2, 15, v0")
    P("v_xor_b32 v2, v2, v1")
    P("v_lshlrev_b32 v2, 4, v2")
    P(f"v_lshl_add_u32 v2, v1, {rowshift}, v2")
    P(f"v_add_u32 v{DA}, {sbase}, v2")
    for n in range(1, 4):
        P(f"v_xor_b32 v{DA+n}, {n<<6}, v{DA}")
        P(f"v_add_u32 v{DA+n}, {(4*n<<rowshift) - 1024*n}, v{DA+n}")

def g1(P, opt, merged):
    ACC, X, BF, PA, DA, CJ = 4, 20, 84, 96, 104, 108
    P("s_lshr_b32 s17, s16, 2")
    P("s_bfe_u32 s18, s16, 0x10001")
    P("s_and_b32 s19, s16, 1")
    P("s_and_b32 s20, s3, 7"); P("s_lshr_b32 s21, s3, 3")
    P("s_lshl_b32 s22, s20, 1"); P("s_and_b32 s23, s21, 1"); P("s_add_u32 s22, s22, s23"); P("s_lshr_b32 s23, s21, 1")
    et, sb = ("s22", "s23") if opt.get("g1map", 0) == 0 else ("s23", "s22")
    P(f"s_lshl_b32 s24, {sb}, 1"); P("s_add_u32 s24, s24, s18")
    P("s_lshl_b32 s25, s19, 1"); P("s_add_u32 s25, s25, s18")
    P(f"s_lshl_b32 s26, {et}, 16"); P("s_lshl_b32 s27, s25, 8"); P("s_add_u32 s26, s26, s27")
    dma_addrs(P, DA, 11, "s26")
    frag_addrs(P, PA)
    P("s_lshl_b32 s27, s17, 2"); P("s_add_u32 s27, s27, s25"); P("s_lshl_b32 s27, s27, 13")
    P("s_lshl_b32 s28, s17, 15"); P("s_lshl_b32 s29, s19, 14"); P("s_add_u32 s28, s28, s29")
    P(f"v_add_u32 v{PA}, s28, v{PA}")
    for k in range(1, 8): P(f"v_xor_b32 v{PA+k}, {k<<5}, v{PA}")
    P("v_lshlrev_b32 v1, 4, v0")
    P("s_lshl_b32 s30, s17, 20"); P("s_lshl_b32 s31, s24, 15"); P("s_add_u32 s30, s30, s31"); P("s_add_u32 s30, s30, s29"); P(f"s_add_u32 s30, s30, {WS_XEE}")
    P("s_waitcnt lgkmcnt(0)")
    P("s_cmp_eq_u32 s17, 0")
    P("s_cselect_b32 s36, s6, s8"); P("s_cselect_b32 s37, s7, s9"); P(f"s_mov_b32 s38, {2*MB}"); P("s_mov_b32 s39, 0x00020000")
    srd(P, 40, 4, WS_SIZE); srd(P, 44, 10, 8 * MB); srd(P, 48, 14, 8 * MB)
    P("s_mov_b32 m0, s27")
    P("s_mov_b32 s31, 32768")
    for n in range(4): P(f"buffer_load_dwordx4 v{DA+n}, s[36:39], 0 offen offset:{1024*n} lds")
    P("s_add_u32 m0, s27, 4096")
    for n in range(4): P(f"buffer_load_dwordx4 v{DA+n}, s[36:39], s31 offen offset:{1024*n} lds")
    P("s_or_b32 s31, s17, s19"); P("s_lshl_b32 s31, s31, 24")
    P("s_lshl_b32 s32, s24, 7"); P("s_add_u32 s31, s31, s32"); P(f"s_add_u32 s31, s31, {WS_SM+SM_X512}")
    P("v_lshrrev_b32 v2, 5, v0"); P("v_lshlrev_b32 v2, 4, v2"); P("v_add_u32 v2, s31, v2")
    for g in range(4): P(f"buffer_load_dwordx4 {vr(ACC+4*g,4)}, v2, s[40:43], 0 offen offset:{32*g}")
    for k in range(16):
        if k % 4 == 0 and k: P("s_add_u32 s30, s30, 4096")
        P(f"buffer_load_dwordx4 {vr(X+4*k,4)}, v1, s[40:43], s30 offen offset:{1024*(k%4)}")
    P("s_lshl_b32 s32, s3, 2"); P("s_add_u32 s32, s32, s16")
    P("s_cmp_eq_u32 s32, 4"); P("s_movk_i32 s33, 1024"); P("s_cselect_b32 s33, s33, 0x10000")
    P("s_cmp_lt_u32 s16, 4"); P("s_cselect_b32 s32, s32, s33")
    P("s_lshl_b32 s33, s32, 12")
    P("v_lshlrev_b32 v2, 5, v0")
    P("v_add_u32 v3, s33, v2")
    P(f"s_mov_b32 s34, {WS_SM+SM_C}")
    P(f"buffer_load_dwordx4 {vr(CJ,4)}, v3, s[44:47], 0 offen")
    P(f"buffer_load_dwordx4 {vr(CJ+4,4)}, v3, s[44:47], 0 offen offset:16")
    P(f"buffer_load_dwordx4 {vr(CJ+8,4)}, v2, s[40:43], s34 offen")
    P(f"buffer_load_dwordx4 {vr(CJ+12,4)}, v2, s[40:43], s34 offen offset:16")
    P(f"v_mov_b32 v2, {WS_SM+SM_G+2048}")
    P(f"buffer_load_dword v{CJ+16}, v2, s[40:43], 0 offen")
    P("v_lshlrev_b32 v3, 31, v0")
    P("s_waitcnt vmcnt(21)")
    for i in range(16): P(f"v_xor_b32 v{ACC+i}, v3, v{ACC+i}")
    P("s_barrier")
    lg = LG(P)
    def rd(k): lg.issue(f"ds_read_b128 {vr(BF+4*(k%3),4)}, v{PA+(k&7)} offset:{8192*(k>>3)}", f"B{k}")
    rd(0); rd(1)
    for k in range(16):
        if k + 2 < 16: rd(k + 2)
        lg.need(f"B{k}")
        P(f"s_waitcnt vmcnt({5+15-k})")
        P(f"{MF} {vr(ACC,16)}, {vr(X+4*k,4)}, {vr(BF+4*(k%3),4)}, {vr(ACC,16)}")
    P("s_waitcnt vmcnt(0)")
    P("s_lshl_b32 s33, s32, 31")
    P(f"v_xor_b32 v{CJ+16}, s33, v{CJ+16}")
    P("v_mov_b32 v2, 0")
    for r in range(8): P(f"v_dot2_f32_bf16 v2, v{CJ+r}, v{CJ+8+r}, v2")
    dpp_sum(P, 2)
    P(f"v_add_f32 v2, v2, v{CJ+16}")
    P("v_cvt_pk_bf16_f32 v2, v2, v2")
    P("s_lshl_b32 s33, s32, 12"); P("s_add_u32 s34, s33, 1024"); P(f"s_sub_u32 s33, {8*MB+1024}, s33")
    P(f"v_mov_b32 v{CJ}, s34"); P(f"v_mov_b32 v{CJ+1}, s33")
    P("s_mov_b32 exec_lo, 0"); P("s_mov_b32 exec_hi, 0x80000000")
    P(f"buffer_store_short v2, v{CJ}, s[48:51], 0 offen")
    P(f"buffer_store_short v2, v{CJ+1}, s[48:51], 0 offen")
    P("s_mov_b64 exec, -1")
    P("s_barrier")
    P("s_lshl_b32 s33, s16, 12")
    P("v_add_u32 v2, s33, v1")
    for g in range(4): P(f"ds_write_b128 v2, {vr(ACC+4*g,4)} offset:{1024*g}")
    P("s_and_b32 s33, s16, 6"); P("s_lshl_b32 s33, s33, 12"); P("s_lshl_b32 s34, s19, 11"); P("s_add_u32 s33, s33, s34")
    P("v_add_u32 v3, s33, v1")
    P("s_waitcnt lgkmcnt(0)")
    P("s_barrier")
    P(f"ds_read_b128 {vr(X,4)}, v3"); P(f"ds_read_b128 {vr(X+4,4)}, v3 offset:1024")
    P(f"ds_read_b128 {vr(X+8,4)}, v3 offset:4096"); P(f"ds_read_b128 {vr(X+12,4)}, v3 offset:5120")
    P("s_lshl_b32 s33, s17, 20"); P(f"s_lshl_b32 s34, {et}, 16"); P("s_add_u32 s33, s33, s34")
    P("s_lshl_b32 s34, s24, 11"); P("s_add_u32 s33, s33, s34"); P("s_lshl_b32 s34, s19, 10"); P("s_add_u32 s33, s33, s34"); P(f"s_add_u32 s33, s33, {WS_TE}")
    P("s_waitcnt lgkmcnt(0)")
    for i in range(8): P(f"v_add_f32 v{X+i}, v{X+i}, v{X+8+i}")
    for i in range(4): P(f"v_cvt_pk_bf16_f32 v{X+16+i}, v{X+2*i}, v{X+2*i+1}")
    P(f"v_permlane32_swap_b32 v{X+16}, v{X+18}")
    P(f"v_permlane32_swap_b32 v{X+17}, v{X+19}")
    P(f"buffer_store_dwordx4 {vr(X+16,4)}, v1, s[40:43], s33 offen" + (" sc1" if merged else ""))

def g2(P, opt, merged):
    ACC, T, AF, PA, DA, RW = 4, 20, 84, 96, 104, 108
    sc = " sc1" if merged else ""
    P("s_lshr_b32 s17, s16, 2")
    P("s_bfe_u32 s18, s16, 0x10001")
    P("s_and_b32 s19, s16, 1")
    P("s_and_b32 s20, s3, 7"); P("s_lshr_b32 s21, s3, 3")
    if opt.get("g2map", 0) == 0:
        P("s_mov_b32 s22, s20"); P("s_mov_b32 s23, s21")
    else:
        P("s_lshr_b32 s22, s21, 2"); P("s_lshl_b32 s23, s20, 2"); P("s_and_b32 s24, s21, 3"); P("s_add_u32 s23, s23, s24")
    P("s_lshl_b32 s26, s23, 17"); P("s_lshl_b32 s27, s18, 16"); P("s_add_u32 s26, s26, s27"); P("s_lshl_b32 s27, s19, 10"); P("s_add_u32 s26, s26, s27")
    dma_addrs(P, DA, 12, "s26")
    frag_addrs(P, PA)
    P("s_lshl_b32 s28, s17, 14"); P("s_lshl_b32 s29, s19, 13"); P("s_add_u32 s28, s28, s29")
    P("s_lshl_b32 s27, s18, 12"); P("s_add_u32 s27, s27, s28")
    P(f"v_add_u32 v{PA}, s28, v{PA}")
    for k in range(1, 8): P(f"v_xor_b32 v{PA+k}, {k<<5}, v{PA}")
    P("v_lshlrev_b32 v1, 4, v0")
    P("s_lshl_b32 s24, s22, 1"); P("s_add_u32 s24, s24, s18")
    P("s_lshl_b32 s30, s17, 20"); P("s_lshl_b32 s31, s24, 16"); P("s_add_u32 s30, s30, s31"); P("s_lshl_b32 s31, s19, 15"); P("s_add_u32 s30, s30, s31"); P(f"s_add_u32 s30, s30, {WS_TE}")
    if not merged:
        P("s_waitcnt lgkmcnt(0)")
        srd(P, 40, 4, WS_SIZE); srd(P, 48, 14, 8 * MB)
    P("s_cmp_eq_u32 s17, 0")
    P("s_cselect_b32 s36, s10, s12"); P("s_cselect_b32 s37, s11, s13"); P(f"s_mov_b32 s38, {8*MB}"); P("s_mov_b32 s39, 0x00020000")
    def dma(r):
        P(f"s_add_u32 m0, s27, {(r&1)*32768}")
        P(f"s_movk_i32 s31, {r*256}")
        for n in range(4): P(f"buffer_load_dwordx4 v{DA+n}, s[36:39], s31 offen offset:{1024*n} lds")
    def tl(r):
        for k in range(8):
            P(f"buffer_load_dwordx4 {vr(T+32*(r&1)+4*k,4)}, v1, s[40:43], s30 offen offset:{1024*(k%4)}{sc}")
            if k % 4 == 3: P("s_add_u32 s30, s30, 4096")
    P("s_or_b32 s31, s17, s19"); P("s_lshl_b32 s31, s31, 24")
    P("s_lshl_b32 s32, s24, 7"); P("s_add_u32 s31, s31, s32"); P(f"s_add_u32 s31, s31, {WS_SM+SM_G}")
    P("v_and_b32 v2, 31, v0"); P("v_lshlrev_b32 v2, 2, v2"); P("v_add_u32 v2, s31, v2")
    if merged:
        P("s_barrier")
    P(f"buffer_load_dword v{RW}, v2, s[40:43], 0 offen")
    if merged:
        dma(0); dma(1)
        merged(P)
        tl(0); tl(1)
        first = [8, 0]
    else:
        dma(0); tl(0); dma(1); tl(1)
        first = [12, 0]
    P("s_or_b32 s25, s23, s17")
    P("s_mov_b32 s29, 0xbf803f80")
    P(f"s_waitcnt vmcnt({first[0]})")
    for i in range(16):
        if i & 1: P(f"v_sub_f32 v{ACC+i}, 0, v{RW}")
        else:     P(f"v_mov_b32 v{ACC+i}, v{RW}")
    P("v_cmp_gt_u32 vcc, 32, v0")
    P(f"v_cndmask_b32 v{RW}, 0, v{RW}, vcc")
    for r in range(4):
        if r: P(f"s_waitcnt vmcnt(0)")
        P("s_barrier")
        lg = LG(P)
        def rd(k): lg.issue(f"ds_read_b128 {vr(AF+4*(k%3),4)}, v{PA+k} offset:{32768*(r&1)}", f"A{k}")
        rd(0); rd(1)
        if 1 <= r <= 2:
            dma(r + 1); tl(r + 1)
        for k in range(8):
            if k + 2 < 8: rd(k + 2)
            lg.need(f"A{k}")
            P(f"{MF} {vr(ACC,16)}, {vr(AF+4*(k%3),4)}, {vr(T+32*(r&1)+4*k,4)}, {vr(ACC,16)}")
        P("s_cmp_lg_u32 s25, 0")
        P(f"s_cbranch_scc1 G2_NR{r}")
        for i in range(32): P(f"v_dot2_f32_bf16 v{RW}, v{T+32*(r&1)+i}, s29, v{RW}")
        P.label(f"G2_NR{r}")
    P("s_barrier")
    P("s_lshl_b32 s33, s16, 12")
    P("v_add_u32 v2, s33, v1")
    for g in range(4): P(f"ds_write_b128 v2, {vr(ACC+4*g,4)} offset:{1024*g}")
    P("s_lshl_b32 s33, s16, 8")
    P("v_lshlrev_b32 v3, 2, v0"); P("v_add_u32 v3, s33, v3")
    P(f"ds_write_b32 v3, v{RW} offset:32768")
    P("s_lshl_b32 s32, s17, 1"); P("s_add_u32 s32, s32, s19")
    P("s_lshl_b32 s33, s18, 13"); P("s_lshl_b32 s34, s32, 10"); P("s_add_u32 s33, s33, s34")
    P("v_add_u32 v2, s33, v1")
    P("s_waitcnt lgkmcnt(0)")
    P("s_barrier")
    P(f"ds_read_b128 {vr(T,4)}, v2"); P(f"ds_read_b128 {vr(T+4,4)}, v2 offset:4096")
    P(f"ds_read_b128 {vr(T+8,4)}, v2 offset:16384"); P(f"ds_read_b128 {vr(T+12,4)}, v2 offset:20480")
    P("v_and_b32 v3, 31, v0"); P("s_lshl_b32 s33, s24, 5"); P("v_add_u32 v3, s33, v3")
    P("v_lshlrev_b32 v4, 1, v3")
    P("v_sub_u32 v5, 2048, v4")
    P("v_mov_b32 v6, 0x40000000")
    P("v_cmp_eq_u32 vcc, 0, v3")
    P("v_cndmask_b32 v5, v5, v6, vcc")
    P("v_lshrrev_b32 v6, 5, v0"); P("v_lshlrev_b32 v6, 14, v6")
    P("s_lshl_b32 s33, s23, 17"); P("s_lshl_b32 s34, s32, 15"); P("s_add_u32 s33, s33, s34")
    P("v_add_u32 v6, s33, v6")
    P(f"v_sub_u32 v7, {8*MB}, v6")
    P("v_add_u32 v8, v6, v4"); P("v_add_u32 v9, v7, v5"); P("v_add_u32 v10, v7, v4"); P("v_add_u32 v11, v6, v5")
    P("s_waitcnt lgkmcnt(0)")
    for r in range(4):
        P(f"v_add_f32 v{T+r}, v{T+r}, v{T+4+r}")
        P(f"v_add_f32 v{T+8+r}, v{T+8+r}, v{T+12+r}")
        P(f"v_sub_f32 v12, v{T+r}, v{T+8+r}")
        P(f"v_add_f32 v13, v{T+r}, v{T+8+r}")
        P(f"v_cvt_pk_bf16_f32 v{T+16+r}, v12, v13")
        if r:
            P(f"v_add_u32 v{T+20+4*r}, {4096*r}, v8"); P(f"v_subrev_u32 v{T+21+4*r}, {4096*r}, v9")
            P(f"v_subrev_u32 v{T+22+4*r}, {4096*r}, v10"); P(f"v_add_u32 v{T+23+4*r}, {4096*r}, v11")
            a = T + 20 + 4 * r
        else: a = 8
        P(f"buffer_store_short v{T+16+r}, v{a}, s[48:51], 0 offen")
        P(f"buffer_store_short v{T+16+r}, v{a+1}, s[48:51], 0 offen")
        P(f"buffer_store_short_d16_hi v{T+16+r}, v{a+2}, s[48:51], 0 offen")
        P(f"buffer_store_short_d16_hi v{T+16+r}, v{a+3}, s[48:51], 0 offen")
    P("s_or_b32 s25, s25, s19")
    P("s_cmp_lg_u32 s25, 0")
    P("s_cbranch_scc1 G2_END")
    P("v_and_b32 v3, 31, v0"); P("v_lshlrev_b32 v3, 2, v3"); P("s_lshl_b32 s33, s16, 8"); P("v_add_u32 v3, s33, v3")
    for i in range(4): P(f"ds_read_b32 v{12+i}, v3 offset:{32768+128*i}")
    P(f"v_add_u32 v8, {4*MB}, v4"); P(f"v_add_u32 v9, {4*MB}, v5")
    P("s_waitcnt lgkmcnt(0)")
    P("v_add_f32 v12, v12, v13"); P("v_add_f32 v14, v14, v15"); P("v_add_f32 v12, v12, v14")
    P("v_cvt_pk_bf16_f32 v12, v12, v12")
    P("buffer_store_short v12, v8, s[48:51], 0 offen")
    P("buffer_store_short v12, v9, s[48:51], 0 offen")
    P.label("G2_END")

def load_ptrs(P):
    P("s_load_dwordx2 s[6:7], s[0:1], 24")
    P("s_load_dwordx2 s[8:9], s[0:1], 32")
    P("s_load_dwordx2 s[10:11], s[0:1], 8")
    P("s_load_dwordx2 s[12:13], s[0:1], 16")
    P("s_load_dwordx2 s[14:15], s[0:1], 64")
    P("v_lshrrev_b32 v1, 6, v0")
    P("v_and_b32 v0, 63, v0")
    P("v_readfirstlane_b32 s16, v1")

def k2(opt):
    P = Prog()
    P("s_load_dwordx2 s[4:5], s[0:1], 80")
    P("s_cmp_ge_u32 s2, 256")
    P("s_cbranch_scc1 K2_A")
    attn(P, opt)
    P.label("K2_A")
    P("s_cmp_ge_u32 s2, 512")
    P("s_cbranch_scc1 K2_END")
    P("s_sub_u32 s3, s2, 256")
    load_ptrs(P)
    g1(P, opt, False)
    P.label("K2_END")
    P("s_endpgm")
    return "k2_kernel", P.L, 128, "grid=(512,1,1) block=(512,1,1) lds=65536"

def k4(opt):
    P = Prog()
    P("s_cmp_ge_u32 s2, 256")
    P("s_cbranch_scc1 K4_END")
    P("s_load_dwordx2 s[4:5], s[0:1], 80")
    P("s_mov_b32 s3, s2")
    load_ptrs(P)
    g2(P, opt, False)
    P.label("K4_END")
    P("s_endpgm")
    return "k4_kernel", P.L, 128, "grid=(256,1,1) block=(512,1,1) lds=65536"
```

```python
from common import *
MF = "v_mfma_f32_32x32x16_bf16"

def k3(opt):
    P = Prog()
    ACC, WF, OR = 16, 48, 80
    AHEAD = 3
    P("s_cmp_ge_u32 s2, 256")
    P("s_cbranch_scc1 K3_END")
    P("s_load_dwordx2 s[4:5], s[0:1], 80")
    P("s_load_dwordx2 s[6:7], s[0:1], 56")
    P("s_load_dwordx2 s[8:9], s[0:1], 64")
    P("v_lshrrev_b32 v1, 6, v0")
    P("v_and_b32 v0, 63, v0")
    P("v_readfirstlane_b32 s3, v1")
    P("s_and_b32 s24, s2, 7"); P("s_lshr_b32 s25, s2, 3")
    P("s_lshr_b32 s26, s24, 1"); P("s_lshl_b32 s26, s26, 2"); P("s_and_b32 s28, s25, 3"); P("s_add_u32 s26, s26, s28")
    P("s_and_b32 s27, s24, 1"); P("s_lshl_b32 s27, s27, 3"); P("s_lshr_b32 s28, s25, 2"); P("s_add_u32 s27, s27, s28")
    P("s_lshl_b32 s29, s26, 2"); P("s_add_u32 s29, s29, s3")
    P("s_lshl_b32 s30, s29, 16"); P(f"s_add_u32 s30, s30, {WS_OF}")
    P("v_lshrrev_b32 v1, 3, v0")
    P("v_and_b32 v2, 7, v0")
    P("v_bfe_u32 v3, v0, 4, 1")
    P("v_lshlrev_b32 v3, 2, v3")
    P("v_xor_b32 v2, v2, v3")
    P("v_lshlrev_b32 v2, 4, v2")
    P("v_lshl_add_u32 v2, v1, 11, v2")
    P("s_lshl_b32 s28, s3, 16"); P("s_lshl_b32 s31, s27, 7"); P("s_add_u32 s28, s28, s31")
    P("v_add_u32 v4, s28, v2")
    for n in range(1, 4): P(f"v_add_u32 v{4+n}, {n*(16384-1024)}, v4")
    P("s_lshl_b32 s31, s3, 12")
    P("v_lshlrev_b32 v1, 4, v0")
    P("s_mov_b32 s32, 0")
    P("s_waitcnt lgkmcnt(0)")
    srd(P, 12, 4, WS_SIZE); srd(P, 16, 6, 2 * MB); srd(P, 20, 8, 8 * MB)
    def issue(c):
        P(f"s_add_u32 m0, s31, {c*16384}")
        for n in range(4): P(f"buffer_load_dwordx4 v{4+n}, s[16:19], s32 offen offset:{1024*n} lds")
        P("s_add_u32 s32, s32, 0x40000")
        for k in range(8):
            P(f"buffer_load_dwordx4 {vr(OR+32*(c%4)+4*k,4)}, v1, s[12:15], s30 offen offset:{1024*(k%4)}")
            if k % 4 == 3: P("s_add_u32 s30, s30, 4096")
    for c in range(AHEAD): issue(c)
    P("v_lshrrev_b32 v2, 5, v0")
    P("v_bfe_u32 v3, v0, 2, 2")
    P("v_lshl_add_u32 v2, v2, 2, v3")
    P("v_lshlrev_b32 v2, 7, v2")
    P("v_bfe_u32 v3, v0, 3, 1"); P("v_lshl_add_u32 v2, v3, 6, v2")
    P("v_bfe_u32 v3, v0, 4, 1"); P("v_lshl_add_u32 v2, v3, 5, v2")
    P("v_and_b32 v3, 3, v0"); P("v_lshl_add_u32 v8, v3, 3, v2")
    P("v_xor_b32 v9, 64, v8")
    P("v_add_u32 v10, 0x10000, v8"); P("v_add_u32 v11, 0x10000, v9")
    for i in range(32): P(f"v_mov_b32 v{ACC+i}, 0")
    lg = LG(P)
    for c in range(8):
        outstanding = min(8, c + AHEAD) - (c + 1)
        P(f"s_waitcnt vmcnt({12*outstanding})")
        P("s_barrier")
        P(f"; TS {c}")
        def rd(k):
            s = WF + 8 * (k % 4)
            for ct in range(2):
                a = 8 + ct + (2 if c >= 4 else 0)
                off = (c % 4) * 16384 + k * 2048
                lg.issue(f"ds_read_b64_tr_b16 {vr(s+4*ct,2)}, v{a} offset:{off}", f"W{k}{ct}")
                lg.issue(f"ds_read_b64_tr_b16 {vr(s+4*ct+2,2)}, v{a} offset:{off+1024}", f"W{k}{ct}")
        rd(0); rd(1)
        if c + AHEAD < 8: issue(c + AHEAD)
        for k in range(8):
            if k + 2 < 8: rd(k + 2)
            for ct in range(2):
                lg.need(f"W{k}{ct}")
                P(f"{MF} {vr(ACC+16*ct,16)}, {vr(WF+8*(k%4)+4*ct,4)}, {vr(OR+32*(c%4)+4*k,4)}, {vr(ACC+16*ct,16)}")
    P("v_and_b32 v2, 31, v0"); P("v_lshrrev_b32 v3, 5, v0"); P("v_lshlrev_b32 v3, 4, v3"); P("v_lshl_add_u32 v2, v2, 12, v3")
    P("s_lshl_b32 s28, s29, 17"); P("s_lshl_b32 s31, s27, 7"); P("s_add_u32 s28, s28, s31"); P("s_add_u32 s28, s28, 2048")
    for ct in range(2):
        a = ACC + 16 * ct; t = WF + 8 * ct
        for i in range(8): P(f"v_cvt_pk_bf16_f32 v{t+i}, v{a+2*i}, v{a+2*i+1}")
        P(f"v_permlane32_swap_b32 v{t}, v{t+2}"); P(f"v_permlane32_swap_b32 v{t+1}, v{t+3}")
        P(f"v_permlane32_swap_b32 v{t+4}, v{t+6}"); P(f"v_permlane32_swap_b32 v{t+5}, v{t+7}")
        P(f"buffer_store_dwordx4 {vr(t,4)}, v2, s[20:23], s28 offen offset:{64*ct}")
        P(f"buffer_store_dwordx4 {vr(t+4,4)}, v2, s[20:23], s28 offen offset:{64*ct+32}")
    P.label("K3_END")
    P("s_endpgm")
    return "k3_kernel", P.L, 208, "grid=(256,1,1) block=(256,1,1) lds=131072"
```

```python
import sys, json
sys.path.insert(0, "gen")
from common import *
from k1 import k1
from k2 import k2, k4
from k3 import k3

REF = "concat_heads__spectral_fnet__mha_block__prompt.s.ref"

def build(opt, verbose=False):
    head = []
    for line in open(REF):
        if line.startswith("; @launch"): break
        head.append(line.rstrip("\n"))
    ks = [f(opt) for f in opt.get("kernels", [k1, k2, k4, k3])]
    out = list(head)
    for name, L, vg, launch in ks: out.append(f"; @launch kernel={name} {launch}")
    out.append('.amdgcn_target "amdgcn-amd-amdhsa--gfx950"')
    out.append(".text")
    for name, L, vg, launch in ks:
        rep = []
        out.append(khead(name))
        out.append(fmt(pad(L, rep)))
        if verbose:
            print(name, len(L), "instr; nops:", sum(k for k, _ in rep))
            for k, s in rep: print("   ", k, s)
    out.append('.section .rodata,"a"')
    for name, L, vg, launch in ks: out.append(kdesc(name, vg))
    return "\n".join(out) + "\n"

if __name__ == "__main__":
    opt = json.loads(sys.argv[2]) if len(sys.argv) > 2 else {}
    path = sys.argv[1] if len(sys.argv) > 1 else "concat_heads__spectral_fnet__mha_block__prompt.s"
    open(path, "w").write(build(opt, verbose=True))
```

```python
from common import *
import math, struct

def f32hex(x): return "0x%08x" % struct.unpack("<I", struct.pack("<f", x))[0]

def k1(opt):
    P = Prog()
    name = "k1_kernel"
    SLOT = 40960
    P("s_cmp_ge_u32 s2, 256")
    P("s_cbranch_scc1 K1_END")
    P("s_load_dwordx2 s[4:5], s[0:1], 40")
    P("s_load_dwordx2 s[6:7], s[0:1], 48")
    P("s_load_dwordx2 s[8:9], s[0:1], 80")
    P("s_load_dwordx2 s[10:11], s[0:1], 0")
    P("s_load_dwordx2 s[12:13], s[0:1], 24")
    P("v_lshrrev_b32 v1, 6, v0")
    P("v_and_b32 v0, 63, v0")
    P("v_readfirstlane_b32 s36, v1")
    P("s_and_b32 s37, s2, 7")
    P("s_lshr_b32 s38, s2, 3")
    P("s_and_b32 s39, s37, 1"); P("s_lshl_b32 s39, s39, 3"); P("s_and_b32 s46, s38, 7"); P("s_add_u32 s39, s39, s46")
    P("s_lshr_b32 s40, s37, 1"); P("s_lshl_b32 s40, s40, 2"); P("s_lshr_b32 s47, s38, 3"); P("s_add_u32 s40, s40, s47")
    sk, sv = opt.get("skew", (5, 10))
    P("s_mov_b32 s41, s40")
    P(f"s_add_u32 s42, s40, {sk}"); P("s_and_b32 s42, s42, 15")
    P(f"s_add_u32 s43, s40, {sv}"); P("s_and_b32 s43, s43, 15")
    P("s_cmp_ge_u32 s36, 4")
    P("s_cbranch_scc1 K1_LOADER")
    P("s_and_b32 s48, s36, 1"); P("s_lshr_b32 s49, s36, 1")
    ACC = [64 + 16 * i for i in range(6)]
    SET = [dict(X0=16, X1=20, WQ=24, WK=28, WV=32), dict(X0=36, X1=40, WQ=44, WK=48, WV=52)]
    XB = [2, 3, 4, 5]; WB = 6
    XA = [8, 9, 10, 11]; WA = 12
    P("v_and_b32 v1, 31, v0")
    P("v_lshrrev_b32 v7, 5, v0")
    P("v_bfe_u32 v13, v0, 1, 3")
    P("v_xor_b32 v7, v7, v13")
    P("v_lshlrev_b32 v7, 4, v7")
    P("v_lshl_add_u32 v7, v1, 7, v7")
    P("s_lshl_b32 s46, s48, 13")
    P(f"v_add_u32 v{XB[0]}, s46, v7")
    for ks in range(1, 4): P(f"v_xor_b32 v{XB[ks]}, {ks << 5}, v{XB[0]}")
    P("v_lshrrev_b32 v1, 5, v0")
    P("v_bfe_u32 v7, v0, 2, 2")
    P("v_lshl_add_u32 v1, v1, 3, v7")
    P("v_lshlrev_b32 v1, 7, v1")
    P("v_bfe_u32 v7, v0, 3, 1")
    P("v_xor_b32 v7, s49, v7")
    P("v_lshl_add_u32 v1, v7, 6, v1")
    P("v_bfe_u32 v7, v0, 4, 1")
    P("v_lshl_add_u32 v1, v7, 5, v1")
    P("v_and_b32 v7, 3, v0")
    P("v_lshl_add_u32 v1, v7, 3, v1")
    P(f"v_add_u32 v{WB}, 0x4000, v1")
    for a in ACC:
        for i in range(16): P(f"v_mov_b32 v{a+i}, 0")
    for i in range(4): P(f"v_mov_b32 v{XA[i]}, v{XB[i]}")
    P(f"v_mov_b32 v{WA}, v{WB}")
    P("s_mov_b32 s44, 0"); P("s_mov_b32 s45, 0")
    P("s_waitcnt lgkmcnt(0)")
    srd(P, 24, 8, WS_SIZE)
    if opt.get("prio", 1): P("s_setprio 2")
    P("; TS 0")
    P("s_barrier")
    P("; TS 1")
    lg = LG(P)
    def reads(S, ks):
        s = SET[S]
        return [
            (f"ds_read_b128 {vr(s['X0'],4)}, v{XA[ks]}", f"X0{S}"),
            (f"ds_read_b64_tr_b16 {vr(s['WQ'],2)}, v{WA} offset:{ks*2048}", f"WQ{S}"),
            (f"ds_read_b64_tr_b16 {vr(s['WQ']+2,2)}, v{WA} offset:{ks*2048+512}", f"WQ{S}"),
            (f"ds_read_b128 {vr(s['X1'],4)}, v{XA[ks]} offset:4096", f"X1{S}"),
            (f"ds_read_b64_tr_b16 {vr(s['WK'],2)}, v{WA} offset:{8192+ks*2048}", f"WK{S}"),
            (f"ds_read_b64_tr_b16 {vr(s['WK']+2,2)}, v{WA} offset:{8192+ks*2048+512}", f"WK{S}"),
            (f"ds_read_b64_tr_b16 {vr(s['WV'],2)}, v{WA} offset:{16384+ks*2048}", f"WV{S}"),
            (f"ds_read_b64_tr_b16 {vr(s['WV']+2,2)}, v{WA} offset:{16384+ks*2048+512}", f"WV{S}"),
        ]
    def mf(S, i):
        s = SET[S]; a = ACC[i]
        x = "X0" if i % 2 == 0 else "X1"
        w = ("WQ", "WK", "WV")[i // 2]
        lg.need(f"{x}{S}", f"{w}{S}")
        A, B = (s[w], s[x]) if i < 4 else (s[x], s[w])
        P(f"v_mfma_f32_32x32x16_bf16 {vr(a,16)}, {vr(A,4)}, {vr(B,4)}, {vr(a,16)}")
    for t, g in reads(0, 0): lg.issue(t, g)
    q0 = list(lg.q)
    P.label("K1_LOOP")
    for ks in range(4):
        S = ks & 1
        if ks < 3:
            R = reads(1 - S, ks + 1)
            for i in range(6):
                mf(S, i)
                if i < 4:
                    for t, g in R[2 * i:2 * i + 2]: lg.issue(t, g)
        else:
            mf(S, 0)
            P("s_add_u32 s44, s44, 1")
            P(f"s_add_u32 s45, s45, {SLOT}")
            P("s_and_b32 s46, s44, 3")
            P("s_cselect_b32 s45, s45, 0")
            for i in range(4): P(f"v_add_u32 v{XA[i]}, s45, v{XB[i]}")
            P(f"v_add_u32 v{WA}, s45, v{WB}")
            mf(S, 1)
            lg.drain()
            P("s_cmp_eq_u32 s44, 16")
            P("s_cbranch_scc1 K1_NOBAR")
            P("s_barrier")
            P.label("K1_NOBAR")
            R = reads(0, 0)
            for i in range(2, 6):
                for t, g in R[2 * (i - 2):2 * (i - 2) + 2]: lg.issue(t, g)
                mf(S, i)
    assert lg.q == q0, (lg.q, q0)
    P("s_cmp_lg_u32 s44, 16")
    P("s_cbranch_scc1 K1_LOOP")
    P("s_setprio 0")
    P("; TS 2")
    P("s_waitcnt lgkmcnt(0)")
    P("s_lshl_b32 s50, s39, 2"); P("s_lshl_b32 s46, s48, 1"); P("s_add_u32 s50, s50, s46")
    P("s_lshl_b32 s51, s41, 1"); P("s_add_u32 s51, s51, s49"); P("s_lshl_b32 s51, s51, 6"); P("s_add_u32 s51, s51, s50"); P("s_lshl_b32 s51, s51, 11")
    P("s_lshl_b32 s52, s42, 1"); P("s_add_u32 s52, s52, s49"); P("s_lshl_b32 s52, s52, 6"); P("s_add_u32 s52, s52, s50"); P("s_lshl_b32 s52, s52, 12"); P(f"s_add_u32 s52, s52, {WS_KV}")
    P("s_lshl_b32 s53, s43, 1"); P("s_add_u32 s53, s53, s49"); P("s_lshl_b32 s53, s53, 6"); P("s_add_u32 s53, s53, s50"); P("s_lshl_b32 s53, s53, 12"); P(f"s_add_u32 s53, s53, {WS_KV+2048}")
    P("s_add_u32 s54, s52, 4096"); P("s_add_u32 s55, s53, 4096")
    P("v_lshlrev_b32 v1, 4, v0")
    P("v_and_b32 v2, 0x33, v0")
    P("v_bfe_u32 v3, v0, 2, 1"); P("v_lshl_or_b32 v2, v3, 3, v2")
    P("v_bfe_u32 v3, v0, 3, 1"); P("v_lshl_or_b32 v2, v3, 2, v2")
    P("v_lshlrev_b32 v2, 4, v2")
    P(f"s_mov_b32 s56, {f32hex(math.log2(math.e) / math.sqrt(32.0))}")
    T = [16, 24, 32, 40, 48, 56]
    order = [2, 3, 4, 5, 0, 1] if opt.get("kvfirst", 1) else [0, 1, 2, 3, 4, 5]
    for n, i in enumerate(order):
        a = ACC[i]; t = T[n]
        if i < 2:
            for r in range(16): P(f"v_mul_f32 v{a+r}, s56, v{a+r}")
        for r in range(8): P(f"v_cvt_pk_bf16_f32 v{t+r}, v{a+2*r}, v{a+2*r+1}")
        if i < 2:   va, so, off = 1, "s51", 2048 * i
        elif i < 4: va, so, off = 2, ("s52", "s54")[i - 2], 0
        else:       va, so, off = 1, ("s53", "s55")[i - 4], 0
        P(f"buffer_store_dwordx4 {vr(t,4)}, v{va}, s[24:27], {so} offen offset:{off}")
        P(f"buffer_store_dwordx4 {vr(t+4,4)}, v{va}, s[24:27], {so} offen offset:{off+1024}")
    P("; TS 3")
    P("s_endpgm")
    P.label("K1_LOADER")
    P("s_sub_u32 s36, s36, 4")
    P("v_lshrrev_b32 v1, 3, v0")
    P("v_and_b32 v6, 7, v0")
    P("v_lshrrev_b32 v7, 4, v0")
    P("v_xor_b32 v8, v6, v7")
    P("v_lshlrev_b32 v8, 4, v8")
    P("v_lshl_add_u32 v8, v1, 11, v8")
    P("s_lshl_b32 s46, s39, 18"); P("s_lshl_b32 s47, s36, 16"); P("s_add_u32 s46, s46, s47")
    P("v_add_u32 v2, s46, v8")
    P("v_xor_b32 v3, 64, v2")
    P(f"v_add_u32 v3, {16384-1024}, v3")
    P(f"v_add_u32 v4, {32768-2048}, v2")
    P(f"v_add_u32 v5, {32768-2048}, v3")
    P("v_and_b32 v7, 1, v7")
    P("v_lshlrev_b32 v7, 2, v7")
    P("v_xor_b32 v6, v6, v7")
    P("v_lshlrev_b32 v6, 4, v6")
    P("s_lshl_b32 s46, s36, 4")
    P("v_add_u32 v1, s46, v1")
    P("v_mul_u32_u24 v1, 0x1800, v1")
    P("v_add_u32 v9, v1, v6")
    P(f"v_add_u32 v10, {8*6144-1024}, v9")
    P("s_lshl_b32 s41, s41, 7")
    P("s_lshl_b32 s42, s42, 7"); P("s_add_u32 s42, s42, 2048")
    P("s_lshl_b32 s43, s43, 7"); P("s_add_u32 s43, s43, 4096")
    P("s_lshl_b32 s48, s36, 12")
    P("s_lshl_b32 s49, s36, 11"); P("s_add_u32 s49, s49, 16384")
    if opt.get("rot", 0):
        P("s_and_b32 s46, s38, 7"); P("s_lshl_b32 s46, s46, 1"); P("s_lshr_b32 s47, s38, 3"); P("s_lshl_b32 s47, s47, 2")
        P("s_add_u32 s50, s46, s47"); P("s_and_b32 s50, s50, 15")
    else:
        P("s_mov_b32 s50, 0")
    P("s_mov_b32 s45, 0")
    P("s_mov_b32 s44, 0")
    P("s_waitcnt lgkmcnt(0)")
    srd(P, 16, 4, 4 * MB); srd(P, 20, 6, 6 * MB)
    def issue_stage():
        P("s_lshl_b32 s51, s50, 7")
        P("s_mul_i32 s52, s50, 393216")
        P("s_add_u32 m0, s45, s48")
        P("s_add_u32 s53, s52, s41")
        for i in range(4):
            P(f"buffer_load_dwordx4 v{2+i}, s[16:19], s51 offen offset:{1024*i} lds")
        P("s_add_u32 m0, s45, s49")
        P("s_add_u32 s54, s52, s42")
        P("buffer_load_dwordx4 v9, s[20:23], s53 offen lds")
        P("buffer_load_dwordx4 v10, s[20:23], s53 offen offset:1024 lds")
        P("s_add_u32 m0, m0, 8192")
        P("s_add_u32 s55, s52, s43")
        P("buffer_load_dwordx4 v9, s[20:23], s54 offen lds")
        P("buffer_load_dwordx4 v10, s[20:23], s54 offen offset:1024 lds")
        P("s_add_u32 m0, m0, 8192")
        P("s_add_u32 s50, s50, 1")
        P("buffer_load_dwordx4 v9, s[20:23], s55 offen lds")
        P("buffer_load_dwordx4 v10, s[20:23], s55 offen offset:1024 lds")
        P("s_and_b32 s50, s50, 15")
        P("s_add_u32 s44, s44, 1")
        P(f"s_add_u32 s45, s45, {SLOT}")
        P("s_and_b32 s46, s44, 3")
        P("s_cselect_b32 s45, s45, 0")
    P("s_branch K1_LI")
    P.label("K1_LW")
    P("s_waitcnt vmcnt(20)")
    P("s_barrier")
    P.label("K1_LI")
    issue_stage()
    P("s_cmp_lt_u32 s44, 3")
    P("s_cbranch_scc1 K1_LI")
    P("s_cmp_lt_u32 s44, 16")
    P("s_cbranch_scc1 K1_LW")
    P("; TS 0")
    srd(P, 24, 8, WS_SIZE); srd(P, 28, 10, 4 * MB); srd(P, 32, 12, 2 * MB)
    P("s_lshl_b32 s46, s37, 2"); P("s_lshr_b32 s47, s38, 3"); P("s_add_u32 s46, s46, s47")
    P("s_and_b32 s47, s38, 7"); P("s_lshl_b32 s47, s47, 2"); P("s_add_u32 s47, s47, s36")
    P("s_lshl_b32 s51, s46, 5"); P("s_add_u32 s51, s51, s47")
    P("s_lshl_b32 s52, s51, 11")
    P(f"s_sub_u32 s53, {4*MB}, s52")
    P("v_lshlrev_b32 v1, 4, v0")
    P("v_sub_u32 v2, 2032, v1")
    P("v_add_u32 v3, 16, v2")
    P("v_cmp_eq_u32 vcc, 0, v0")
    P("v_mov_b32 v4, 0x7fffffff")
    P("v_cndmask_b32 v3, v3, v4, vcc")
    P("v_add_u32 v5, s53, v1")
    P("v_add_u32 v6, s53, v2")
    P("v_add_u32 v7, s53, v3")
    F1, F2, R1, R2, E1, E2, GX, GW = 16, 20, 24, 28, 32, 33, 36, 44
    P(f"buffer_load_dwordx4 {vr(F1,4)}, v1, s[28:31], s52 offen")
    P(f"buffer_load_dwordx4 {vr(F2,4)}, v5, s[28:31], 0 offen")
    P(f"buffer_load_dwordx4 {vr(R1,4)}, v2, s[28:31], s52 offen")
    P(f"buffer_load_dwordx4 {vr(R2,4)}, v6, s[28:31], 0 offen")
    P(f"buffer_load_ushort v{E1}, v3, s[28:31], s52 offen")
    P(f"buffer_load_ushort v{E2}, v7, s[28:31], 0 offen")
    P("s_lshl_b32 s54, s2, 1"); P("s_add_u32 s54, s54, s36")
    P("s_cmp_eq_u32 s54, 2")
    P("s_movk_i32 s56, 512")
    P("s_cselect_b32 s55, s56, 0x40000")
    P("s_cmp_lt_u32 s36, 2")
    P("s_cselect_b32 s54, s54, s55")
    P("s_lshl_b32 s55, s54, 11")
    P("v_lshlrev_b32 v8, 5, v0")
    P("v_add_u32 v9, s55, v8")
    P(f"s_mov_b32 s56, {2*MB}")
    P("s_cmp_le_u32 s54, 512")
    P("s_cselect_b32 s56, s56, 0x7f000000")
    P("v_add_u32 v10, s56, v8")
    P(f"buffer_load_dwordx4 {vr(GX,4)}, v10, s[28:31], 0 offen")
    P(f"buffer_load_dwordx4 {vr(GX+4,4)}, v10, s[28:31], 0 offen offset:16")
    P(f"buffer_load_dwordx4 {vr(GW,4)}, v9, s[32:35], 0 offen")
    P(f"buffer_load_dwordx4 {vr(GW+4,4)}, v9, s[32:35], 0 offen offset:16")
    F = 10
    P(f"s_waitcnt vmcnt({20+F})"); P("s_barrier")
    P(f"s_waitcnt vmcnt({10+F})"); P("s_barrier")
    P(f"s_waitcnt vmcnt({F})"); P("s_barrier")
    P("; TS 1")
    P("s_waitcnt vmcnt(4)")
    P("; TS 2")
    def unp(dst, src, j):
        if j & 1: P(f"v_and_b32 v{dst}, 0xffff0000, v{src + (j >> 1)}")
        else:     P(f"v_lshlrev_b32 v{dst}, 16, v{src + (j >> 1)}")
    EE, OO = 64, 72
    for j in range(8):
        unp(52, F1, j); unp(53, F2, j)
        if j == 0:
            P(f"v_lshlrev_b32 v54, 16, v{E1}"); P(f"v_lshlrev_b32 v55, 16, v{E2}")
        else:
            unp(54, R1, 8 - j); unp(55, R2, 8 - j)
        P("v_add_f32 v52, v52, v55")
        P("v_add_f32 v53, v53, v54")
        P(f"v_add_f32 v{EE+j}, v52, v53")
        P(f"v_sub_f32 v{OO+j}, v52, v53")
    unp(54, R1, 0); unp(55, R2, 0)
    P("v_add_f32 v56, v54, v55")
    for r in range(4): P(f"v_cvt_pk_bf16_f32 v{80+r}, v{EE+2*r}, v{EE+2*r+1}")
    for r in range(4): P(f"v_cvt_pk_bf16_f32 v{84+r}, v{OO+2*r}, v{OO+2*r+1}")
    P("v_lshlrev_b32 v1, 9, v0")
    P("s_lshl_b32 s46, s46, 15"); P("s_lshl_b32 s47, s47, 4"); P("s_add_u32 s46, s46, s47")
    P(f"s_add_u32 s47, s46, {WS_XOO}"); P(f"s_add_u32 s46, s46, {WS_XEE}")
    P("buffer_store_dwordx4 v[80:83], v1, s[24:27], s46 offen")
    P("buffer_store_dwordx4 v[84:87], v1, s[24:27], s47 offen")
    P(f"v_sub_f32 v57, v{EE}, v{EE+1}")
    for r in range(1, 4):
        P(f"v_add_f32 v57, v57, v{EE+2*r}"); P(f"v_sub_f32 v57, v57, v{EE+2*r+1}")
    dpp_sum(P, 57)
    P("v_add_f32 v57, v57, v56")
    P("v_cvt_pk_bf16_f32 v57, v57, v57")
    P("s_waitcnt vmcnt(2)")
    P("v_mov_b32 v58, 0")
    for r in range(8): P(f"v_dot2_f32_bf16 v58, v{GX+r}, v{GW+r}, v58")
    dpp_sum(P, 58)
    P("s_lshl_b32 s46, s51, 2"); P(f"s_add_u32 s46, s46, {WS_SM+SM_X512}")
    P("s_lshl_b32 s47, s51, 1"); P(f"s_add_u32 s47, s47, {WS_SM+SM_C}")
    P("s_lshl_b32 s55, s54, 2"); P(f"s_add_u32 s55, s55, {WS_SM+SM_G}")
    P("v_mov_b32 v1, s46"); P("v_mov_b32 v2, s47"); P("v_mov_b32 v3, s55")
    P("s_mov_b32 exec_lo, 0"); P("s_mov_b32 exec_hi, 0x80000000")
    P("buffer_store_dword v56, v1, s[24:27], 0 offen")
    P("buffer_store_short v57, v2, s[24:27], 0 offen")
    P("buffer_store_dword v58, v3, s[24:27], 0 offen")
    P.label("K1_END")
    P("s_endpgm")
    return name, P.L, 160, "grid=(256,1,1) block=(512,1,1) lds=163840"
```

```python
from common import *
from k1 import f32hex

MF = "v_mfma_f32_32x32x16_bf16"

def attn(P, opt):
    ONES, L, Q, K, V, C, O, SA, SB = 8, 12, 16, 24, 32, 40, 56, 72, 88
    P("v_lshrrev_b32 v1, 6, v0")
    P("v_and_b32 v0, 63, v0")
    P("v_readfirstlane_b32 s16, v1")
    P("s_and_b32 s17, s2, 7"); P("s_lshl_b32 s17, s17, 2"); P("s_lshr_b32 s19, s2, 6"); P("s_add_u32 s17, s17, s19")
    P("s_bfe_u32 s18, s2, 0x30003"); P("s_lshl_b32 s18, s18, 3"); P("s_add_u32 s18, s18, s16")
    P("v_lshlrev_b32 v1, 4, v0")
    P("s_lshl_b32 s23, s16, 11")
    P("v_add_u32 v4, s23, v1")
    P("s_lshl_b32 s19, s17, 18"); P(f"s_add_u32 s19, s19, {WS_KV}")
    P("s_lshl_b32 s24, s17, 6"); P("s_add_u32 s24, s24, s18"); P("s_lshl_b32 s24, s24, 11")
    P("s_waitcnt lgkmcnt(0)")
    srd(P, 8, 4, 256 * 1024, "s19")
    srd(P, 12, 4, WS_SIZE)
    P(f"buffer_load_dwordx4 {vr(Q,4)}, v1, s[12:15], s24 offen")
    P(f"buffer_load_dwordx4 {vr(Q+4,4)}, v1, s[12:15], s24 offen offset:1024")
    P(f"buffer_load_dwordx4 {vr(K,4)}, v1, s[8:11], 0 offen")
    P(f"buffer_load_dwordx4 {vr(K+4,4)}, v1, s[8:11], 0 offen offset:1024")
    for c in range(3):
        P(f"s_add_u32 m0, s23, {c*16384}")
        P("buffer_load_dwordx4 v4, s[8:11], 0 offen lds")
        P("buffer_load_dwordx4 v4, s[8:11], 0 offen offset:1024 lds")
        P("v_add_u32 v4, 0x4000, v4")
    P("v_mov_b32 v5, 0xdddddddd")
    P("v_and_b32 v6, 7, v0")
    P("v_mov_b32 v7, 0x3f803f80")
    P("v_cmp_eq_u32 vcc, 0, v6")
    P(f"v_cndmask_b32 v{ONES}, 0, v7, vcc"); P(f"v_cndmask_b32 v{ONES+1}, 0, v7, vcc")
    P("v_cmp_eq_u32 vcc, 4, v6")
    P(f"v_cndmask_b32 v{ONES+2}, 0, v7, vcc"); P(f"v_cndmask_b32 v{ONES+3}, 0, v7, vcc")
    for i in range(8, 16): P(f"v_mov_b32 v{SB+i}, 0")
    for i in range(4, 8): P(f"v_mov_b32 v{V+i}, 0")
    P("v_mov_b32 v2, v1")
    P("v_add_u32 v3, 0x4000, v1")
    P("s_mov_b32 s20, 1")
    P("s_mov_b32 s21, 0")
    P(f"s_mov_b32 s25, {f32hex(float(opt.get('margin', 88)))}")
    P("s_mov_b32 s26, 0")
    P("v_mov_b32 v6, 0xff800000")
    P("s_waitcnt vmcnt(6)")
    P("; TS 0")
    P("s_branch AT_MPIN")
    P.label("AT_MP")
    P(f"buffer_load_dwordx4 {vr(K,4)}, v1, s[8:11], s21 offen")
    P(f"buffer_load_dwordx4 {vr(K+4,4)}, v1, s[8:11], s21 offen offset:1024")
    P("s_waitcnt vmcnt(0)")
    P.label("AT_MPIN")
    P(f"{MF} {vr(SA,16)}, {vr(K,4)}, {vr(Q,4)}, 0")
    P(f"{MF} {vr(SA,16)}, {vr(K+4,4)}, {vr(Q+4,4)}, {vr(SA,16)}")
    for i in range(16): P(f"v_mov_b32 v{O+i}, 0")
    for i in range(4): P(f"v_mov_b32 v{L+i}, 0")
    for i in range(8): P(f"v_max3_f32 v6, v6, v{SA+2*i}, v{SA+2*i+1}")
    P("s_add_u32 s21, s21, 4096")
    P("s_sub_u32 s20, s20, 1")
    P("s_cmp_lg_u32 s20, 0")
    P("s_cbranch_scc1 AT_MP")
    P("v_mov_b32 v7, v6")
    P("v_permlane32_swap_b32 v6, v7")
    P("v_max_f32 v6, v6, v7")
    P("v_add_f32 v6, s25, v6")
    for i in range(16): P(f"v_sub_f32 v{C+i}, 0, v6")
    P("s_cmp_lg_u32 s26, 0")
    P("s_cbranch_scc1 AT_SLOW")
    P(f"{MF} {vr(SA,16)}, {vr(K,4)}, {vr(Q,4)}, {vr(C,16)}")
    P(f"{MF} {vr(SA,16)}, {vr(K+4,4)}, {vr(Q+4,4)}, {vr(SA,16)}")
    P("s_mov_b32 s22, 0")
    P("s_waitcnt vmcnt(4)")
    P("s_barrier")
    P("; TS 1")
    lg = LG(P)
    lg.issue(f"ds_read_b128 {vr(V+4,4)}, v2 offset:3072", "V1")
    lg.issue(f"ds_read_b128 {vr(K,4)}, v2 offset:4096", "K0")
    lg.issue(f"ds_read_b128 {vr(K+4,4)}, v2 offset:5120", "K1")
    lg.issue(f"ds_read_b128 {vr(V,4)}, v2 offset:2048", "V0")
    q0 = list(lg.q)
    order = opt.get("order", "ee P eee L ee M eee N ee p eee l e").replace(" ", "")
    P.label("AT_LOOP")
    for u in range(4):
        S, T = (SA, SB) if u % 2 == 0 else (SB, SA)
        def at(tile, off):
            return (f"v2 offset:{tile*4096+off}" if tile < 4 else f"v3 offset:{(tile-4)*4096+off}")
        e = 0
        if u == 2:
            P("s_add_u32 s27, s22, 3"); P("s_and_b32 s27, s27, 3"); P("s_lshl_b32 s27, s27, 14"); P("s_add_u32 m0, s27, s23")
        for n, ch in enumerate(order):
            if ch == "e":
                P(f"v_exp_f32 v{S+e}, v{S+e}"); e += 1
            elif ch == "P":
                lg.need("V1")
                P(f"v_smfmac_f32_32x32x32_bf16 {vr(O,16)}, {vr(V+4,4)}, {vr(T+8,8)}, v5")
                lg.issue(f"ds_read_b128 {vr(V+4,4)}, {at(u,3072)}", "V1")
            elif ch == "L":
                P(f"v_smfmac_f32_16x16x64_bf16 {vr(L,4)}, {vr(ONES,4)}, {vr(T+8,8)}, v5")
                if u == 2:
                    P("s_waitcnt vmcnt(2)")
                    P("s_barrier")
                    P("buffer_load_dwordx4 v4, s[8:11], 0 offen lds")
                    P("buffer_load_dwordx4 v4, s[8:11], 0 offen offset:1024 lds")
                    P("v_add_u32 v4, 0x4000, v4")
            elif ch == "M":
                lg.need("K0")
                P(f"{MF} {vr(T,16)}, {vr(K,4)}, {vr(Q,4)}, {vr(C,16)}")
                lg.issue(f"ds_read_b128 {vr(K,4)}, {at(u+2,0)}", "K0")
            elif ch == "N":
                lg.need("K1")
                P(f"{MF} {vr(T,16)}, {vr(K+4,4)}, {vr(Q+4,4)}, {vr(T,16)}")
                lg.issue(f"ds_read_b128 {vr(K+4,4)}, {at(u+2,1024)}", "K1")
            elif ch == "p":
                assert e >= 8
                lg.need("V0")
                P(f"v_smfmac_f32_32x32x32_bf16 {vr(O,16)}, {vr(V,4)}, {vr(S,8)}, v5")
                lg.issue(f"ds_read_b128 {vr(V,4)}, {at(u+1,2048)}", "V0")
                if u == 3:
                    P("s_add_u32 s22, s22, 1")
                    P("s_add_u32 s27, s22, 1"); P("s_and_b32 s27, s27, 3"); P("s_lshl_b32 s27, s27, 14")
                    P("v_mov_b32 v2, v3")
                    P("v_add_u32 v3, s27, v1")
            elif ch == "l":
                P(f"v_smfmac_f32_16x16x64_bf16 {vr(L,4)}, {vr(ONES,4)}, {vr(S,8)}, v5")
        assert e == 16
    assert lg.q == q0, (lg.q, q0)
    P("s_cmp_lg_u32 s22, 16")
    P("s_cbranch_scc1 AT_LOOP")
    lg.need("V1")
    P(f"v_smfmac_f32_32x32x32_bf16 {vr(O,16)}, {vr(V+4,4)}, {vr(SB+8,8)}, v5")
    P(f"v_smfmac_f32_16x16x64_bf16 {vr(L,4)}, {vr(ONES,4)}, {vr(SB+8,8)}, v5")
    P("s_waitcnt vmcnt(0) lgkmcnt(0)")
    P("; TS 2")
    P(f"v_add_f32 v6, |v{O}|, |v{O+1}|")
    P(f"v_add_f32 v7, |v{O+2}|, |v{O+3}|")
    for i in range(4, 16, 2):
        P(f"v_add_f32 v6, v6, |v{O+i}|"); P(f"v_add_f32 v7, v7, |v{O+i+1}|")
    P("v_add_f32 v6, v6, v7")
    P(f"s_mov_b32 s27, {f32hex(2.0**-104)}")
    P(f"s_mov_b32 s28, {f32hex(2.0**120)}")
    P("v_cmp_lt_f32 s[30:31], s27, v6")
    P("v_cmp_gt_f32 s[32:33], s28, v6")
    P(f"v_cmp_gt_f32 vcc, s28, v{L}")
    P("s_and_b64 s[30:31], s[30:31], s[32:33]")
    P("s_and_b64 s[30:31], s[30:31], vcc")
    if opt.get("force_slow"): P("s_mov_b64 s[30:31], 0")
    P("s_cmp_eq_u64 s[30:31], -1")
    P("s_cbranch_scc1 AT_FIN")
    P("s_mov_b32 s26, 1"); P("s_mov_b32 s25, 0"); P("s_mov_b32 s20, 64"); P("s_mov_b32 s21, 0")
    P("v_mov_b32 v6, 0xff800000")
    P("s_branch AT_MP")
    P.label("AT_SLOW")
    P("s_mov_b32 s21, 0")
    P.label("AT_SL")
    P(f"buffer_load_dwordx4 {vr(K,4)}, v1, s[8:11], s21 offen")
    P(f"buffer_load_dwordx4 {vr(K+4,4)}, v1, s[8:11], s21 offen offset:1024")
    P(f"buffer_load_dwordx4 {vr(V,4)}, v1, s[8:11], s21 offen offset:2048")
    P(f"buffer_load_dwordx4 {vr(V+4,4)}, v1, s[8:11], s21 offen offset:3072")
    P("s_waitcnt vmcnt(0)")
    P(f"{MF} {vr(SA,16)}, {vr(K,4)}, {vr(Q,4)}, {vr(C,16)}")
    P(f"{MF} {vr(SA,16)}, {vr(K+4,4)}, {vr(Q+4,4)}, {vr(SA,16)}")
    for i in range(16): P(f"v_exp_f32 v{SA+i}, v{SA+i}")
    P(f"v_smfmac_f32_32x32x32_bf16 {vr(O,16)}, {vr(V,4)}, {vr(SA,8)}, v5")
    P(f"v_smfmac_f32_16x16x64_bf16 {vr(L,4)}, {vr(ONES,4)}, {vr(SA,8)}, v5")
    P(f"v_smfmac_f32_32x32x32_bf16 {vr(O,16)}, {vr(V+4,4)}, {vr(SA+8,8)}, v5")
    P(f"v_smfmac_f32_16x16x64_bf16 {vr(L,4)}, {vr(ONES,4)}, {vr(SA+8,8)}, v5")
    P("s_nop 15")
    P("s_add_u32 s21, s21, 4096")
    P("s_cmp_lg_u32 s21, 0x40000")
    P("s_cbranch_scc1 AT_SL")
    P.label("AT_FIN")
    P(f"v_rcp_f32 v6, v{L}")
    P("s_lshl_b32 s24, s18, 5"); P("s_add_u32 s24, s24, s17"); P("s_lshl_b32 s24, s24, 11"); P(f"s_add_u32 s24, s24, {WS_OF}")
    for i in range(16): P(f"v_mul_f32 v{O+i}, v6, v{O+i}")
    for i in range(8): P(f"v_cvt_pk_bf16_f32 v{SA+i}, v{O+2*i}, v{O+2*i+1}")
    P(f"buffer_store_dwordx4 {vr(SA,4)}, v1, s[12:15], s24 offen")
    P(f"buffer_store_dwordx4 {vr(SA+4,4)}, v1, s[12:15], s24 offen offset:1024")
    P("s_endpgm")

def frag_addrs(P, PA):
    P("v_and_b32 v1, 31, v0")
    P("v_lshrrev_b32 v2, 5, v0")
    P(f"v_and_b32 v{PA}, 15, v0")
    P(f"v_xor_b32 v2, v2, v{PA}")
    P("v_lshlrev_b32 v2, 4, v2")
    P(f"v_lshl_add_u32 v{PA}, v1, 8, v2")

def dma_addrs(P, DA, rowshift, sbase):
    P("v_lshrrev_b32 v1, 4, v0")
    P("v_and_b32 v2, 15, v0")
    P("v_xor_b32 v2, v2, v1")
    P("v_lshlrev_b32 v2, 4, v2")
    P(f"v_lshl_add_u32 v2, v1, {rowshift}, v2")
    P(f"v_add_u32 v{DA}, {sbase}, v2")
    for n in range(1, 4):
        P(f"v_xor_b32 v{DA+n}, {n<<6}, v{DA}")
        P(f"v_add_u32 v{DA+n}, {(4*n<<rowshift) - 1024*n}, v{DA+n}")

def g1(P, opt, merged):
    ACC, X, BF, PA, DA, CJ = 4, 20, 84, 96, 104, 108
    P("s_lshr_b32 s17, s16, 2")
    P("s_bfe_u32 s18, s16, 0x10001")
    P("s_and_b32 s19, s16, 1")
    P("s_and_b32 s20, s3, 7"); P("s_lshr_b32 s21, s3, 3")
    P("s_lshl_b32 s22, s20, 1"); P("s_and_b32 s23, s21, 1"); P("s_add_u32 s22, s22, s23"); P("s_lshr_b32 s23, s21, 1")
    et, sb = ("s22", "s23") if opt.get("g1map", 0) == 0 else ("s23", "s22")
    P(f"s_lshl_b32 s24, {sb}, 1"); P("s_add_u32 s24, s24, s18")
    P("s_lshl_b32 s25, s19, 1"); P("s_add_u32 s25, s25, s18")
    P(f"s_lshl_b32 s26, {et}, 16"); P("s_lshl_b32 s27, s25, 8"); P("s_add_u32 s26, s26, s27")
    dma_addrs(P, DA, 11, "s26")
    frag_addrs(P, PA)
    P("s_lshl_b32 s27, s17, 2"); P("s_add_u32 s27, s27, s25"); P("s_lshl_b32 s27, s27, 13")
    P("s_lshl_b32 s28, s17, 15"); P("s_lshl_b32 s29, s19, 14"); P("s_add_u32 s28, s28, s29")
    P(f"v_add_u32 v{PA}, s28, v{PA}")
    for k in range(1, 8): P(f"v_xor_b32 v{PA+k}, {k<<5}, v{PA}")
    P("v_lshlrev_b32 v1, 4, v0")
    P("s_lshl_b32 s30, s17, 20"); P("s_lshl_b32 s31, s24, 15"); P("s_add_u32 s30, s30, s31"); P("s_add_u32 s30, s30, s29"); P(f"s_add_u32 s30, s30, {WS_XEE}")
    P("s_waitcnt lgkmcnt(0)")
    P("s_cmp_eq_u32 s17, 0")
    P("s_cselect_b32 s36, s6, s8"); P("s_cselect_b32 s37, s7, s9"); P(f"s_mov_b32 s38, {2*MB}"); P("s_mov_b32 s39, 0x00020000")
    srd(P, 40, 4, WS_SIZE); srd(P, 44, 10, 8 * MB); srd(P, 48, 14, 8 * MB)
    P("s_mov_b32 m0, s27")
    P("s_mov_b32 s31, 32768")
    for n in range(4): P(f"buffer_load_dwordx4 v{DA+n}, s[36:39], 0 offen offset:{1024*n} lds")
    P("s_add_u32 m0, s27, 4096")
    for n in range(4): P(f"buffer_load_dwordx4 v{DA+n}, s[36:39], s31 offen offset:{1024*n} lds")
    P("s_or_b32 s31, s17, s19"); P("s_lshl_b32 s31, s31, 24")
    P("s_lshl_b32 s32, s24, 7"); P("s_add_u32 s31, s31, s32"); P(f"s_add_u32 s31, s31, {WS_SM+SM_X512}")
    P("v_lshrrev_b32 v2, 5, v0"); P("v_lshlrev_b32 v2, 4, v2"); P("v_add_u32 v2, s31, v2")
    for g in range(4): P(f"buffer_load_dwordx4 {vr(ACC+4*g,4)}, v2, s[40:43], 0 offen offset:{32*g}")
    for k in range(16):
        if k % 4 == 0 and k: P("s_add_u32 s30, s30, 4096")
        P(f"buffer_load_dwordx4 {vr(X+4*k,4)}, v1, s[40:43], s30 offen offset:{1024*(k%4)}")
    P("s_lshl_b32 s32, s3, 2"); P("s_add_u32 s32, s32, s16")
    P("s_cmp_eq_u32 s32, 4"); P("s_movk_i32 s33, 1024"); P("s_cselect_b32 s33, s33, 0x10000")
    P("s_cmp_lt_u32 s16, 4"); P("s_cselect_b32 s32, s32, s33")
    P("s_lshl_b32 s33, s32, 12")
    P("v_lshlrev_b32 v2, 5, v0")
    P("v_add_u32 v3, s33, v2")
    P(f"s_mov_b32 s34, {WS_SM+SM_C}")
    P(f"buffer_load_dwordx4 {vr(CJ,4)}, v3, s[44:47], 0 offen")
    P(f"buffer_load_dwordx4 {vr(CJ+4,4)}, v3, s[44:47], 0 offen offset:16")
    P(f"buffer_load_dwordx4 {vr(CJ+8,4)}, v2, s[40:43], s34 offen")
    P(f"buffer_load_dwordx4 {vr(CJ+12,4)}, v2, s[40:43], s34 offen offset:16")
    P(f"v_mov_b32 v2, {WS_SM+SM_G+2048}")
    P(f"buffer_load_dword v{CJ+16}, v2, s[40:43], 0 offen")
    P("v_lshlrev_b32 v3, 31, v0")
    P("s_waitcnt vmcnt(21)")
    for i in range(16): P(f"v_xor_b32 v{ACC+i}, v3, v{ACC+i}")
    P("; TS 0")
    P("s_barrier")
    P("; TS 1")
    lg = LG(P)
    def rd(k): lg.issue(f"ds_read_b128 {vr(BF+4*(k%3),4)}, v{PA+(k&7)} offset:{8192*(k>>3)}", f"B{k}")
    rd(0); rd(1)
    for k in range(16):
        if k + 2 < 16: rd(k + 2)
        lg.need(f"B{k}")
        P(f"s_waitcnt vmcnt({5+15-k})")
        P(f"{MF} {vr(ACC,16)}, {vr(X+4*k,4)}, {vr(BF+4*(k%3),4)}, {vr(ACC,16)}")
    P("; TS 2")
    P("s_waitcnt vmcnt(0)")
    P("s_lshl_b32 s33, s32, 31")
    P(f"v_xor_b32 v{CJ+16}, s33, v{CJ+16}")
    P("v_mov_b32 v2, 0")
    for r in range(8): P(f"v_dot2_f32_bf16 v2, v{CJ+r}, v{CJ+8+r}, v2")
    dpp_sum(P, 2)
    P(f"v_add_f32 v2, v2, v{CJ+16}")
    P("v_cvt_pk_bf16_f32 v2, v2, v2")
    P("s_lshl_b32 s33, s32, 12"); P("s_add_u32 s34, s33, 1024"); P(f"s_sub_u32 s33, {8*MB+1024}, s33")
    P(f"v_mov_b32 v{CJ}, s34"); P(f"v_mov_b32 v{CJ+1}, s33")
    P("s_mov_b32 exec_lo, 0"); P("s_mov_b32 exec_hi, 0x80000000")
    P(f"buffer_store_short v2, v{CJ}, s[48:51], 0 offen")
    P(f"buffer_store_short v2, v{CJ+1}, s[48:51], 0 offen")
    P("s_mov_b64 exec, -1")
    P("; TS 3")
    P("s_barrier")
    P("s_lshl_b32 s33, s16, 12")
    P("v_add_u32 v2, s33, v1")
    for g in range(4): P(f"ds_write_b128 v2, {vr(ACC+4*g,4)} offset:{1024*g}")
    P("s_and_b32 s33, s16, 6"); P("s_lshl_b32 s33, s33, 12"); P("s_lshl_b32 s34, s19, 11"); P("s_add_u32 s33, s33, s34")
    P("v_add_u32 v3, s33, v1")
    P("s_waitcnt lgkmcnt(0)")
    P("s_barrier")
    P(f"ds_read_b128 {vr(X,4)}, v3"); P(f"ds_read_b128 {vr(X+4,4)}, v3 offset:1024")
    P(f"ds_read_b128 {vr(X+8,4)}, v3 offset:4096"); P(f"ds_read_b128 {vr(X+12,4)}, v3 offset:5120")
    P("s_lshl_b32 s33, s17, 20"); P(f"s_lshl_b32 s34, {et}, 16"); P("s_add_u32 s33, s33, s34")
    P("s_lshl_b32 s34, s24, 11"); P("s_add_u32 s33, s33, s34"); P("s_lshl_b32 s34, s19, 10"); P("s_add_u32 s33, s33, s34"); P(f"s_add_u32 s33, s33, {WS_TE}")
    P("s_waitcnt lgkmcnt(0)")
    for i in range(8): P(f"v_add_f32 v{X+i}, v{X+i}, v{X+8+i}")
    for i in range(4): P(f"v_cvt_pk_bf16_f32 v{X+16+i}, v{X+2*i}, v{X+2*i+1}")
    P(f"v_permlane32_swap_b32 v{X+16}, v{X+18}")
    P(f"v_permlane32_swap_b32 v{X+17}, v{X+19}")
    P(f"buffer_store_dwordx4 {vr(X+16,4)}, v1, s[40:43], s33 offen" + (" sc1" if merged else ""))

def g2(P, opt, merged):
    ACC, T, AF, PA, DA, RW = 4, 20, 84, 96, 104, 108
    sc = " sc1" if merged else ""
    P("s_lshr_b32 s17, s16, 2")
    P("s_bfe_u32 s18, s16, 0x10001")
    P("s_and_b32 s19, s16, 1")
    P("s_and_b32 s20, s3, 7"); P("s_lshr_b32 s21, s3, 3")
    if opt.get("g2map", 0) == 0:
        P("s_mov_b32 s22, s20"); P("s_mov_b32 s23, s21")
    else:
        P("s_lshr_b32 s22, s21, 2"); P("s_lshl_b32 s23, s20, 2"); P("s_and_b32 s24, s21, 3"); P("s_add_u32 s23, s23, s24")
    P("s_lshl_b32 s26, s23, 17"); P("s_lshl_b32 s27, s18, 16"); P("s_add_u32 s26, s26, s27"); P("s_lshl_b32 s27, s19, 10"); P("s_add_u32 s26, s26, s27")
    dma_addrs(P, DA, 12, "s26")
    frag_addrs(P, PA)
    P("s_lshl_b32 s28, s17, 14"); P("s_lshl_b32 s29, s19, 13"); P("s_add_u32 s28, s28, s29")
    P("s_lshl_b32 s27, s18, 12"); P("s_add_u32 s27, s27, s28")
    P(f"v_add_u32 v{PA}, s28, v{PA}")
    for k in range(1, 8): P(f"v_xor_b32 v{PA+k}, {k<<5}, v{PA}")
    P("v_lshlrev_b32 v1, 4, v0")
    P("s_lshl_b32 s24, s22, 1"); P("s_add_u32 s24, s24, s18")
    P("s_lshl_b32 s30, s17, 20"); P("s_lshl_b32 s31, s24, 16"); P("s_add_u32 s30, s30, s31"); P("s_lshl_b32 s31, s19, 15"); P("s_add_u32 s30, s30, s31"); P(f"s_add_u32 s30, s30, {WS_TE}")
    if not merged:
        P("s_waitcnt lgkmcnt(0)")
        srd(P, 40, 4, WS_SIZE); srd(P, 48, 14, 8 * MB)
    P("s_cmp_eq_u32 s17, 0")
    P("s_cselect_b32 s36, s10, s12"); P("s_cselect_b32 s37, s11, s13"); P(f"s_mov_b32 s38, {8*MB}"); P("s_mov_b32 s39, 0x00020000")
    def dma(r):
        P(f"s_add_u32 m0, s27, {(r&1)*32768}")
        P(f"s_movk_i32 s31, {r*256}")
        for n in range(4): P(f"buffer_load_dwordx4 v{DA+n}, s[36:39], s31 offen offset:{1024*n} lds")
    def tl(r):
        for k in range(8):
            P(f"buffer_load_dwordx4 {vr(T+32*(r&1)+4*k,4)}, v1, s[40:43], s30 offen offset:{1024*(k%4)}{sc}")
            if k % 4 == 3: P("s_add_u32 s30, s30, 4096")
    P("s_or_b32 s31, s17, s19"); P("s_lshl_b32 s31, s31, 24")
    P("s_lshl_b32 s32, s24, 7"); P("s_add_u32 s31, s31, s32"); P(f"s_add_u32 s31, s31, {WS_SM+SM_G}")
    P("v_and_b32 v2, 31, v0"); P("v_lshlrev_b32 v2, 2, v2"); P("v_add_u32 v2, s31, v2")
    if merged:
        P("s_barrier")
    P(f"buffer_load_dword v{RW}, v2, s[40:43], 0 offen")
    if merged:
        dma(0); dma(1)
        merged(P)
        tl(0); tl(1)
        first = [8, 0]
    else:
        dma(0); tl(0); dma(1); tl(1)
        first = [12, 0]
    P("s_or_b32 s25, s23, s17")
    P("s_mov_b32 s29, 0xbf803f80")
    P(f"s_waitcnt vmcnt({first[0]})")
    for i in range(16):
        if i & 1: P(f"v_sub_f32 v{ACC+i}, 0, v{RW}")
        else:     P(f"v_mov_b32 v{ACC+i}, v{RW}")
    P("v_cmp_gt_u32 vcc, 32, v0")
    P(f"v_cndmask_b32 v{RW}, 0, v{RW}, vcc")
    for r in range(4):
        if r: P(f"s_waitcnt vmcnt(0)")
        P("s_barrier")
        P(f"; TS {4+r}")
        lg = LG(P)
        def rd(k): lg.issue(f"ds_read_b128 {vr(AF+4*(k%3),4)}, v{PA+k} offset:{32768*(r&1)}", f"A{k}")
        rd(0); rd(1)
        if 1 <= r <= 2:
            dma(r + 1); tl(r + 1)
        for k in range(8):
            if k + 2 < 8: rd(k + 2)
            lg.need(f"A{k}")
            P(f"{MF} {vr(ACC,16)}, {vr(AF+4*(k%3),4)}, {vr(T+32*(r&1)+4*k,4)}, {vr(ACC,16)}")
        P("s_cmp_lg_u32 s25, 0")
        P(f"s_cbranch_scc1 G2_NR{r}")
        for i in range(32): P(f"v_dot2_f32_bf16 v{RW}, v{T+32*(r&1)+i}, s29, v{RW}")
        P.label(f"G2_NR{r}")
    P("s_barrier")
    P("s_lshl_b32 s33, s16, 12")
    P("v_add_u32 v2, s33, v1")
    for g in range(4): P(f"ds_write_b128 v2, {vr(ACC+4*g,4)} offset:{1024*g}")
    P("s_lshl_b32 s33, s16, 8")
    P("v_lshlrev_b32 v3, 2, v0"); P("v_add_u32 v3, s33, v3")
    P(f"ds_write_b32 v3, v{RW} offset:32768")
    P("s_lshl_b32 s32, s17, 1"); P("s_add_u32 s32, s32, s19")
    P("s_lshl_b32 s33, s18, 13"); P("s_lshl_b32 s34, s32, 10"); P("s_add_u32 s33, s33, s34")
    P("v_add_u32 v2, s33, v1")
    P("s_waitcnt lgkmcnt(0)")
    P("s_barrier")
    P(f"ds_read_b128 {vr(T,4)}, v2"); P(f"ds_read_b128 {vr(T+4,4)}, v2 offset:4096")
    P(f"ds_read_b128 {vr(T+8,4)}, v2 offset:16384"); P(f"ds_read_b128 {vr(T+12,4)}, v2 offset:20480")
    P("v_and_b32 v3, 31, v0"); P("s_lshl_b32 s33, s24, 5"); P("v_add_u32 v3, s33, v3")
    P("v_lshlrev_b32 v4, 1, v3")
    P("v_sub_u32 v5, 2048, v4")
    P("v_mov_b32 v6, 0x40000000")
    P("v_cmp_eq_u32 vcc, 0, v3")
    P("v_cndmask_b32 v5, v5, v6, vcc")
    P("v_lshrrev_b32 v6, 5, v0"); P("v_lshlrev_b32 v6, 14, v6")
    P("s_lshl_b32 s33, s23, 17"); P("s_lshl_b32 s34, s32, 15"); P("s_add_u32 s33, s33, s34")
    P("v_add_u32 v6, s33, v6")
    P(f"v_sub_u32 v7, {8*MB}, v6")
    P("v_add_u32 v8, v6, v4"); P("v_add_u32 v9, v7, v5"); P("v_add_u32 v10, v7, v4"); P("v_add_u32 v11, v6, v5")
    P("s_waitcnt lgkmcnt(0)")
    for r in range(4):
        P(f"v_add_f32 v{T+r}, v{T+r}, v{T+4+r}")
        P(f"v_add_f32 v{T+8+r}, v{T+8+r}, v{T+12+r}")
        P(f"v_sub_f32 v12, v{T+r}, v{T+8+r}")
        P(f"v_add_f32 v13, v{T+r}, v{T+8+r}")
        P(f"v_cvt_pk_bf16_f32 v{T+16+r}, v12, v13")
        if r:
            P(f"v_add_u32 v{T+20+4*r}, {4096*r}, v8"); P(f"v_subrev_u32 v{T+21+4*r}, {4096*r}, v9")
            P(f"v_subrev_u32 v{T+22+4*r}, {4096*r}, v10"); P(f"v_add_u32 v{T+23+4*r}, {4096*r}, v11")
            a = T + 20 + 4 * r
        else: a = 8
        P(f"buffer_store_short v{T+16+r}, v{a}, s[48:51], 0 offen")
        P(f"buffer_store_short v{T+16+r}, v{a+1}, s[48:51], 0 offen")
        P(f"buffer_store_short_d16_hi v{T+16+r}, v{a+2}, s[48:51], 0 offen")
        P(f"buffer_store_short_d16_hi v{T+16+r}, v{a+3}, s[48:51], 0 offen")
    P("s_or_b32 s25, s25, s19")
    P("s_cmp_lg_u32 s25, 0")
    P("s_cbranch_scc1 G2_END")
    P("v_and_b32 v3, 31, v0"); P("v_lshlrev_b32 v3, 2, v3"); P("s_lshl_b32 s33, s16, 8"); P("v_add_u32 v3, s33, v3")
    for i in range(4): P(f"ds_read_b32 v{12+i}, v3 offset:{32768+128*i}")
    P(f"v_add_u32 v8, {4*MB}, v4"); P(f"v_add_u32 v9, {4*MB}, v5")
    P("s_waitcnt lgkmcnt(0)")
    P("v_add_f32 v12, v12, v13"); P("v_add_f32 v14, v14, v15"); P("v_add_f32 v12, v12, v14")
    P("v_cvt_pk_bf16_f32 v12, v12, v12")
    P("buffer_store_short v12, v8, s[48:51], 0 offen")
    P("buffer_store_short v12, v9, s[48:51], 0 offen")
    P.label("G2_END")

def load_ptrs(P):
    P("s_load_dwordx2 s[6:7], s[0:1], 24")
    P("s_load_dwordx2 s[8:9], s[0:1], 32")
    P("s_load_dwordx2 s[10:11], s[0:1], 8")
    P("s_load_dwordx2 s[12:13], s[0:1], 16")
    P("s_load_dwordx2 s[14:15], s[0:1], 64")
    P("v_lshrrev_b32 v1, 6, v0")
    P("v_and_b32 v0, 63, v0")
    P("v_readfirstlane_b32 s16, v1")

def k2(opt):
    P = Prog()
    P("s_load_dwordx2 s[4:5], s[0:1], 80")
    P("s_cmp_ge_u32 s2, 256")
    P("s_cbranch_scc1 K2_A")
    attn(P, opt)
    P.label("K2_A")
    P("s_cmp_ge_u32 s2, 512")
    P("s_cbranch_scc1 K2_END")
    P("s_sub_u32 s3, s2, 256")
    load_ptrs(P)
    g1(P, opt, False)
    P.label("K2_END")
    P("s_endpgm")
    return "k2_kernel", P.L, 128, "grid=(512,1,1) block=(512,1,1) lds=65536"

def k4(opt):
    P = Prog()
    P("s_cmp_ge_u32 s2, 256")
    P("s_cbranch_scc1 K4_END")
    P("s_load_dwordx2 s[4:5], s[0:1], 80")
    P("s_mov_b32 s3, s2")
    load_ptrs(P)
    g2(P, opt, False)
    P.label("K4_END")
    P("s_endpgm")
    return "k4_kernel", P.L, 128, "grid=(256,1,1) block=(512,1,1) lds=65536"
```

```python
import sys, json
sys.path.insert(0, "gen")
from common import *
from k1 import k1
from k2 import k2, k4
from k3 import k3

REF = "concat_heads__spectral_fnet__mha_block__prompt.s.ref"

def k0(opt):
    return "k0_kernel", ["s_endpgm"], 8, "grid=(1,1,1) block=(64,1,1) lds=0"

def prof(name, L, idx):
    lab = name.upper() + "_PROF"
    pre = ["s_memrealtime s[90:91]", "s_memtime s[82:83]", "s_load_dwordx2 s[84:85], s[0:1], 80", "v_readfirstlane_b32 s89, v0", "s_mov_b32 s88, s2"]
    pre += [f"s_mov_b32 s{66+2*i}, 0" for i in range(8)]
    body = []
    for x in L:
        if x == "s_endpgm": body.append(f"s_branch {lab}")
        elif x.startswith("; TS "):
            n = int(x.split()[2])
            body += [f"s_memtime s[{66+2*n}:{67+2*n}]", "s_waitcnt lgkmcnt(0)", f"s_sub_u32 s{66+2*n}, s{66+2*n}, s82"]
        else: body.append(x)
    post = [lab + ":", "s_waitcnt vmcnt(0) lgkmcnt(0)", "s_memrealtime s[92:93]", "s_mov_b64 exec, 1",
            f"s_add_u32 s84, s84, {24*MB + idx*MB}", "s_addc_u32 s85, s85, 0", f"s_mov_b32 s86, {MB}", "s_mov_b32 s87, 0x00020000",
            "s_lshl_b32 s88, s88, 10", "s_add_u32 s88, s88, s89", "v_mov_b32 v0, s88",
            "s_memtime s[94:95]", "s_waitcnt lgkmcnt(0)", "s_sub_u32 s94, s94, s82", "s_getreg_b32 s95, hwreg(HW_REG_XCC_ID)",
            "v_mov_b32 v4, s90", "v_mov_b32 v5, s92", "v_mov_b32 v6, s94", "v_mov_b32 v7, s95"]
    post += [f"v_mov_b32 v{8+i}, s{66+2*i}" for i in range(8)]
    post += ["buffer_store_dwordx4 v[4:7], v0, s[84:87], 0 offen", "buffer_store_dwordx4 v[8:11], v0, s[84:87], 0 offen offset:16",
             "buffer_store_dwordx4 v[12:15], v0, s[84:87], 0 offen offset:32", "s_endpgm"]
    return pre + body + post

def build(opt, verbose=False):
    head = []
    for line in open(REF):
        if line.startswith("; @launch"): break
        head.append(line.rstrip("\n"))
    KS = dict(k0=k0, k1=k1, k2=k2, k3=k3, k4=k4)
    ks = [KS[f](opt) for f in opt.get("kernels", ["k1", "k2", "k4", "k3"])]
    if opt.get("prof"):
        ks = [(n, prof(n, L, i), v, la) for i, (n, L, v, la) in enumerate(ks)]
    out = list(head)
    for i in opt.get("launches", range(len(ks))):
        name, L, vg, launch = ks[i]
        out.append(f"; @launch kernel={name} {launch}")
    out.append('.amdgcn_target "amdgcn-amd-amdhsa--gfx950"')
    out.append(".text")
    for name, L, vg, launch in ks:
        rep = []
        out.append(khead(name))
        out.append(fmt(pad(L, rep)))
        if verbose:
            print(name, len(L), "instr; nops:", sum(k for k, _ in rep))
            for k, s in rep: print("   ", k, s)
    out.append('.section .rodata,"a"')
    for name, L, vg, launch in ks: out.append(kdesc(name, vg))
    return "\n".join(out) + "\n"

if __name__ == "__main__":
    opt = json.loads(sys.argv[2]) if len(sys.argv) > 2 else {}
    path = sys.argv[1] if len(sys.argv) > 1 else "concat_heads__spectral_fnet__mha_block__prompt.s"
    open(path, "w").write(build(opt, verbose=True))
```

```python
from common import *
import math, struct

def f32hex(x): return "0x%08x" % struct.unpack("<I", struct.pack("<f", x))[0]

def k1(opt):
    P = Prog()
    name = "k1_kernel"
    SLOT = 40960
    P("s_cmp_ge_u32 s2, 256")
    P("s_cbranch_scc1 K1_END")
    P("s_load_dwordx2 s[4:5], s[0:1], 40")
    P("s_load_dwordx2 s[6:7], s[0:1], 48")
    P("s_load_dwordx2 s[8:9], s[0:1], 80")
    P("s_load_dwordx2 s[10:11], s[0:1], 0")
    P("s_load_dwordx2 s[12:13], s[0:1], 24")
    P("v_lshrrev_b32 v1, 6, v0")
    P("v_and_b32 v0, 63, v0")
    P("v_readfirstlane_b32 s36, v1")
    P("s_and_b32 s37, s2, 7")
    P("s_lshr_b32 s38, s2, 3")
    P("s_and_b32 s39, s37, 1"); P("s_lshl_b32 s39, s39, 3"); P("s_and_b32 s46, s38, 7"); P("s_add_u32 s39, s39, s46")
    P("s_lshr_b32 s40, s37, 1"); P("s_lshl_b32 s40, s40, 2"); P("s_lshr_b32 s47, s38, 3"); P("s_add_u32 s40, s40, s47")
    sk, sv = opt.get("skew", (5, 10))
    P("s_mov_b32 s41, s40")
    P(f"s_add_u32 s42, s40, {sk}"); P("s_and_b32 s42, s42, 15")
    P(f"s_add_u32 s43, s40, {sv}"); P("s_and_b32 s43, s43, 15")
    P("s_cmp_ge_u32 s36, 4")
    P("s_cbranch_scc1 K1_LOADER")
    P("s_and_b32 s48, s36, 1"); P("s_lshr_b32 s49, s36, 1")
    ACC = [64 + 16 * i for i in range(6)]
    SET = [dict(X0=16, X1=20, WQ=24, WK=28, WV=32), dict(X0=36, X1=40, WQ=44, WK=48, WV=52)]
    XB = [2, 3, 4, 5]; WB = 6
    XA = [8, 9, 10, 11]; WA = 12
    P("v_and_b32 v1, 31, v0")
    P("v_lshrrev_b32 v7, 5, v0")
    P("v_bfe_u32 v13, v0, 1, 3")
    P("v_xor_b32 v7, v7, v13")
    P("v_lshlrev_b32 v7, 4, v7")
    P("v_lshl_add_u32 v7, v1, 7, v7")
    P("s_lshl_b32 s46, s48, 13")
    P(f"v_add_u32 v{XB[0]}, s46, v7")
    for ks in range(1, 4): P(f"v_xor_b32 v{XB[ks]}, {ks << 5}, v{XB[0]}")
    P("v_lshrrev_b32 v1, 5, v0")
    P("v_bfe_u32 v7, v0, 2, 2")
    P("v_lshl_add_u32 v1, v1, 3, v7")
    P("v_lshlrev_b32 v1, 7, v1")
    P("v_bfe_u32 v7, v0, 3, 1")
    P("v_xor_b32 v7, s49, v7")
    P("v_lshl_add_u32 v1, v7, 6, v1")
    P("v_bfe_u32 v7, v0, 4, 1")
    P("v_lshl_add_u32 v1, v7, 5, v1")
    P("v_and_b32 v7, 3, v0")
    P("v_lshl_add_u32 v1, v7, 3, v1")
    P(f"v_add_u32 v{WB}, 0x4000, v1")
    for a in ACC:
        for i in range(16): P(f"v_mov_b32 v{a+i}, 0")
    for i in range(4): P(f"v_mov_b32 v{XA[i]}, v{XB[i]}")
    P(f"v_mov_b32 v{WA}, v{WB}")
    P("s_mov_b32 s44, 0"); P("s_mov_b32 s45, 0")
    P("s_waitcnt lgkmcnt(0)")
    srd(P, 24, 8, WS_SIZE)
    pf = opt.get("pf", 0)
    if pf:
        srd(P, 16, 4, 4 * MB); srd(P, 20, 6, 6 * MB)
        P("s_and_b32 s50, s37, 1"); P("s_lshl_b32 s50, s50, 21"); P("s_lshr_b32 s51, s37, 1"); P("s_lshl_b32 s51, s51, 5"); P("s_add_u32 s51, s51, s38")
        P("s_lshl_b32 s52, s51, 14"); P("s_add_u32 s50, s50, s52"); P("s_lshl_b32 s52, s36, 12"); P("s_add_u32 s50, s50, s52")
        if pf & 1:
            P("v_lshlrev_b32 v1, 4, v0")
            for i in range(4): P(f"buffer_load_dwordx4 v[160:163], v1, s[16:19], s50 offen offset:{1024*i}")
        if pf & 4:
            P("v_lshlrev_b32 v1, 6, v0")
            P(f"buffer_load_dword v160, v1, s[16:19], s50 offen")
        if pf & 16:
            P("v_lshlrev_b32 v1, 7, v0")
            P("s_mov_b32 exec_hi, 0")
            P(f"buffer_load_dword v160, v1, s[16:19], s50 offen")
            P("s_mov_b32 exec_hi, -1")
        P("s_and_b32 s50, s37, 1"); P("s_lshl_b32 s50, s50, 5"); P("s_add_u32 s50, s50, s38"); P("s_lshl_b32 s50, s50, 4"); P("s_lshl_b32 s52, s36, 2"); P("s_add_u32 s50, s50, s52")
        P("s_mul_i32 s50, s50, 6144")
        P("s_lshr_b32 s51, s37, 1"); P("s_lshl_b32 s51, s51, 9")
        if pf & 2:
            P("v_and_b32 v1, 31, v0"); P("v_lshlrev_b32 v1, 4, v1"); P("v_add_u32 v1, s51, v1")
            P("v_lshrrev_b32 v7, 5, v0"); P("v_mul_u32_u24 v7, 0x1800, v7")
            for t, skw in enumerate((0, sk, sv)):
                P(f"v_add_u32 v13, {skw*128}, v1"); P("v_and_b32 v13, 0x7ff, v13"); P("v_add_u32 v13, v13, v7")
                P(f"s_add_u32 s52, s50, {t*2048}"); P(f"s_add_u32 s53, s50, {t*2048+12288}")
                P(f"buffer_load_dwordx4 v[160:163], v13, s[20:23], s52 offen")
                P(f"buffer_load_dwordx4 v[160:163], v13, s[20:23], s53 offen")
        if pf & 8:
            P("v_and_b32 v1, 7, v0"); P("v_lshlrev_b32 v1, 6, v1"); P("v_add_u32 v1, s51, v1")
            P("v_bfe_u32 v7, v0, 3, 2"); P("v_mul_u32_u24 v7, 0x1800, v7")
            P("s_mov_b32 exec_hi, 0")
            for t, skw in enumerate((0, sk, sv)):
                P(f"v_add_u32 v13, {skw*128}, v1"); P("v_and_b32 v13, 0x7ff, v13"); P("v_add_u32 v13, v13, v7")
                P(f"s_add_u32 s52, s50, {t*2048}")
                P(f"buffer_load_dword v160, v13, s[20:23], s52 offen")
            P("s_mov_b32 exec_hi, -1")
    if opt.get("prio", 1): P("s_setprio 2")
    P("; TS 0")
    P("s_barrier")
    P("; TS 1")
    lg = LG(P)
    def reads(S, ks):
        s = SET[S]
        return [
            (f"ds_read_b128 {vr(s['X0'],4)}, v{XA[ks]}", f"X0{S}"),
            (f"ds_read_b64_tr_b16 {vr(s['WQ'],2)}, v{WA} offset:{ks*2048}", f"WQ{S}"),
            (f"ds_read_b64_tr_b16 {vr(s['WQ']+2,2)}, v{WA} offset:{ks*2048+512}", f"WQ{S}"),
            (f"ds_read_b128 {vr(s['X1'],4)}, v{XA[ks]} offset:4096", f"X1{S}"),
            (f"ds_read_b64_tr_b16 {vr(s['WK'],2)}, v{WA} offset:{8192+ks*2048}", f"WK{S}"),
            (f"ds_read_b64_tr_b16 {vr(s['WK']+2,2)}, v{WA} offset:{8192+ks*2048+512}", f"WK{S}"),
            (f"ds_read_b64_tr_b16 {vr(s['WV'],2)}, v{WA} offset:{16384+ks*2048}", f"WV{S}"),
            (f"ds_read_b64_tr_b16 {vr(s['WV']+2,2)}, v{WA} offset:{16384+ks*2048+512}", f"WV{S}"),
        ]
    def mf(S, i):
        s = SET[S]; a = ACC[i]
        x = "X0" if i % 2 == 0 else "X1"
        w = ("WQ", "WK", "WV")[i // 2]
        lg.need(f"{x}{S}", f"{w}{S}")
        A, B = (s[w], s[x]) if i < 4 else (s[x], s[w])
        P(f"v_mfma_f32_32x32x16_bf16 {vr(a,16)}, {vr(A,4)}, {vr(B,4)}, {vr(a,16)}")
    for t, g in reads(0, 0): lg.issue(t, g)
    q0 = list(lg.q)
    P.label("K1_LOOP")
    for ks in range(4):
        S = ks & 1
        if ks < 3:
            R = reads(1 - S, ks + 1)
            for i in range(6):
                mf(S, i)
                if i < 4:
                    for t, g in R[2 * i:2 * i + 2]: lg.issue(t, g)
        else:
            mf(S, 0)
            P("s_add_u32 s44, s44, 1")
            P(f"s_add_u32 s45, s45, {SLOT}")
            P("s_and_b32 s46, s44, 3")
            P("s_cselect_b32 s45, s45, 0")
            for i in range(4): P(f"v_add_u32 v{XA[i]}, s45, v{XB[i]}")
            P(f"v_add_u32 v{WA}, s45, v{WB}")
            mf(S, 1)
            lg.drain()
            P("s_cmp_eq_u32 s44, 16")
            P("s_cbranch_scc1 K1_NOBAR")
            P("s_barrier")
            P.label("K1_NOBAR")
            R = reads(0, 0)
            for i in range(2, 6):
                for t, g in R[2 * (i - 2):2 * (i - 2) + 2]: lg.issue(t, g)
                mf(S, i)
    assert lg.q == q0, (lg.q, q0)
    P("s_cmp_lg_u32 s44, 16")
    P("s_cbranch_scc1 K1_LOOP")
    P("s_setprio 0")
    P("; TS 2")
    P("s_waitcnt lgkmcnt(0)")
    P("s_lshl_b32 s50, s39, 2"); P("s_lshl_b32 s46, s48, 1"); P("s_add_u32 s50, s50, s46")
    P("s_lshl_b32 s51, s41, 1"); P("s_add_u32 s51, s51, s49"); P("s_lshl_b32 s51, s51, 6"); P("s_add_u32 s51, s51, s50"); P("s_lshl_b32 s51, s51, 11")
    P("s_lshl_b32 s52, s42, 1"); P("s_add_u32 s52, s52, s49"); P("s_lshl_b32 s52, s52, 6"); P("s_add_u32 s52, s52, s50"); P("s_lshl_b32 s52, s52, 12"); P(f"s_add_u32 s52, s52, {WS_KV}")
    P("s_lshl_b32 s53, s43, 1"); P("s_add_u32 s53, s53, s49"); P("s_lshl_b32 s53, s53, 6"); P("s_add_u32 s53, s53, s50"); P("s_lshl_b32 s53, s53, 12"); P(f"s_add_u32 s53, s53, {WS_KV+2048}")
    P("s_add_u32 s54, s52, 4096"); P("s_add_u32 s55, s53, 4096")
    P("v_lshlrev_b32 v1, 4, v0")
    P("v_and_b32 v2, 0x33, v0")
    P("v_bfe_u32 v3, v0, 2, 1"); P("v_lshl_or_b32 v2, v3, 3, v2")
    P("v_bfe_u32 v3, v0, 3, 1"); P("v_lshl_or_b32 v2, v3, 2, v2")
    P("v_lshlrev_b32 v2, 4, v2")
    P(f"s_mov_b32 s56, {f32hex(math.log2(math.e) / math.sqrt(32.0))}")
    T = [16, 24, 32, 40, 48, 56]
    order = [2, 3, 4, 5, 0, 1] if opt.get("kvfirst", 1) else [0, 1, 2, 3, 4, 5]
    for n, i in enumerate(order):
        a = ACC[i]; t = T[n]
        if i < 2:
            for r in range(16): P(f"v_mul_f32 v{a+r}, s56, v{a+r}")
        for r in range(8): P(f"v_cvt_pk_bf16_f32 v{t+r}, v{a+2*r}, v{a+2*r+1}")
        if i < 2:   va, so, off = 1, "s51", 2048 * i
        elif i < 4: va, so, off = 2, ("s52", "s54")[i - 2], 0
        else:       va, so, off = 1, ("s53", "s55")[i - 4], 0
        P(f"buffer_store_dwordx4 {vr(t,4)}, v{va}, s[24:27], {so} offen offset:{off}")
        P(f"buffer_store_dwordx4 {vr(t+4,4)}, v{va}, s[24:27], {so} offen offset:{off+1024}")
    P("; TS 3")
    P("s_endpgm")
    P.label("K1_LOADER")
    P("s_sub_u32 s36, s36, 4")
    P("v_lshrrev_b32 v1, 3, v0")
    P("v_and_b32 v6, 7, v0")
    P("v_lshrrev_b32 v7, 4, v0")
    P("v_xor_b32 v8, v6, v7")
    P("v_lshlrev_b32 v8, 4, v8")
    P("v_lshl_add_u32 v8, v1, 11, v8")
    P("s_lshl_b32 s46, s39, 18"); P("s_lshl_b32 s47, s36, 16"); P("s_add_u32 s46, s46, s47")
    P("v_add_u32 v2, s46, v8")
    P("v_xor_b32 v3, 64, v2")
    P(f"v_add_u32 v3, {16384-1024}, v3")
    P(f"v_add_u32 v4, {32768-2048}, v2")
    P(f"v_add_u32 v5, {32768-2048}, v3")
    P("v_and_b32 v7, 1, v7")
    P("v_lshlrev_b32 v7, 2, v7")
    P("v_xor_b32 v6, v6, v7")
    P("v_lshlrev_b32 v6, 4, v6")
    P("s_lshl_b32 s46, s36, 4")
    P("v_add_u32 v1, s46, v1")
    P("v_mul_u32_u24 v1, 0x1800, v1")
    P("v_add_u32 v9, v1, v6")
    P(f"v_add_u32 v10, {8*6144-1024}, v9")
    P("s_lshl_b32 s41, s41, 7")
    P("s_lshl_b32 s42, s42, 7"); P("s_add_u32 s42, s42, 2048")
    P("s_lshl_b32 s43, s43, 7"); P("s_add_u32 s43, s43, 4096")
    P("s_lshl_b32 s48, s36, 12")
    P("s_lshl_b32 s49, s36, 11"); P("s_add_u32 s49, s49, 16384")
    if opt.get("rot", 0):
        P("s_and_b32 s46, s38, 7"); P("s_lshl_b32 s46, s46, 1"); P("s_lshr_b32 s47, s38, 3"); P("s_lshl_b32 s47, s47, 2")
        P("s_add_u32 s50, s46, s47"); P("s_and_b32 s50, s50, 15")
    else:
        P("s_mov_b32 s50, 0")
    P("s_mov_b32 s45, 0")
    P("s_mov_b32 s44, 0")
    P("s_waitcnt lgkmcnt(0)")
    srd(P, 16, 4, 4 * MB); srd(P, 20, 6, 6 * MB)
    def issue_stage():
        P("s_lshl_b32 s51, s50, 7")
        P("s_mul_i32 s52, s50, 393216")
        P("s_add_u32 m0, s45, s48")
        P("s_add_u32 s53, s52, s41")
        for i in range(4):
            P(f"buffer_load_dwordx4 v{2+i}, s[16:19], s51 offen offset:{1024*i} lds")
        P("s_add_u32 m0, s45, s49")
        P("s_add_u32 s54, s52, s42")
        P("buffer_load_dwordx4 v9, s[20:23], s53 offen lds")
        P("buffer_load_dwordx4 v10, s[20:23], s53 offen offset:1024 lds")
        P("s_add_u32 m0, m0, 8192")
        P("s_add_u32 s55, s52, s43")
        P("buffer_load_dwordx4 v9, s[20:23], s54 offen lds")
        P("buffer_load_dwordx4 v10, s[20:23], s54 offen offset:1024 lds")
        P("s_add_u32 m0, m0, 8192")
        P("s_add_u32 s50, s50, 1")
        P("buffer_load_dwordx4 v9, s[20:23], s55 offen lds")
        P("buffer_load_dwordx4 v10, s[20:23], s55 offen offset:1024 lds")
        P("s_and_b32 s50, s50, 15")
        P("s_add_u32 s44, s44, 1")
        P(f"s_add_u32 s45, s45, {SLOT}")
        P("s_and_b32 s46, s44, 3")
        P("s_cselect_b32 s45, s45, 0")
    pre = opt.get("pre", 2)
    nodma = opt.get("nodma", 99)
    TSB = {0: 0, 1: 1, 2: 2, 4: 3, 8: 4, 12: 5}
    issued = 0
    q = []
    def iss():
        nonlocal issued
        if issued < nodma:
            issue_stage(); q.append(10)
        else: q.append(0)
        issued += 1
    for i in range(pre): iss()
    for s in range(13):
        P(f"s_waitcnt vmcnt({sum(q[s+1:])})")
        P("s_barrier")
        if s in TSB: P(f"; TS {TSB[s]}")
        while issued <= s + 3: iss()
    srd(P, 24, 8, WS_SIZE); srd(P, 28, 10, 4 * MB); srd(P, 32, 12, 2 * MB)
    P("s_lshl_b32 s46, s37, 2"); P("s_lshr_b32 s47, s38, 3"); P("s_add_u32 s46, s46, s47")
    P("s_and_b32 s47, s38, 7"); P("s_lshl_b32 s47, s47, 2"); P("s_add_u32 s47, s47, s36")
    P("s_lshl_b32 s51, s46, 5"); P("s_add_u32 s51, s51, s47")
    P("s_lshl_b32 s52, s51, 11")
    P(f"s_sub_u32 s53, {4*MB}, s52")
    P("v_lshlrev_b32 v1, 4, v0")
    P("v_sub_u32 v2, 2032, v1")
    P("v_add_u32 v3, 16, v2")
    P("v_cmp_eq_u32 vcc, 0, v0")
    P("v_mov_b32 v4, 0x7fffffff")
    P("v_cndmask_b32 v3, v3, v4, vcc")
    P("v_add_u32 v5, s53, v1")
    P("v_add_u32 v6, s53, v2")
    P("v_add_u32 v7, s53, v3")
    F1, F2, R1, R2, E1, E2, GX, GW = 16, 20, 24, 28, 32, 33, 36, 44
    P(f"buffer_load_dwordx4 {vr(F1,4)}, v1, s[28:31], s52 offen")
    P(f"buffer_load_dwordx4 {vr(F2,4)}, v5, s[28:31], 0 offen")
    P(f"buffer_load_dwordx4 {vr(R1,4)}, v2, s[28:31], s52 offen")
    P(f"buffer_load_dwordx4 {vr(R2,4)}, v6, s[28:31], 0 offen")
    P(f"buffer_load_ushort v{E1}, v3, s[28:31], s52 offen")
    P(f"buffer_load_ushort v{E2}, v7, s[28:31], 0 offen")
    P("s_lshl_b32 s54, s2, 1"); P("s_add_u32 s54, s54, s36")
    P("s_cmp_eq_u32 s54, 2")
    P("s_movk_i32 s56, 512")
    P("s_cselect_b32 s55, s56, 0x40000")
    P("s_cmp_lt_u32 s36, 2")
    P("s_cselect_b32 s54, s54, s55")
    P("s_lshl_b32 s55, s54, 11")
    P("v_lshlrev_b32 v8, 5, v0")
    P("v_add_u32 v9, s55, v8")
    P(f"s_mov_b32 s56, {2*MB}")
    P("s_cmp_le_u32 s54, 512")
    P("s_cselect_b32 s56, s56, 0x7f000000")
    P("v_add_u32 v10, s56, v8")
    P(f"buffer_load_dwordx4 {vr(GX,4)}, v10, s[28:31], 0 offen")
    P(f"buffer_load_dwordx4 {vr(GX+4,4)}, v10, s[28:31], 0 offen offset:16")
    P(f"buffer_load_dwordx4 {vr(GW,4)}, v9, s[32:35], 0 offen")
    P(f"buffer_load_dwordx4 {vr(GW+4,4)}, v9, s[32:35], 0 offen offset:16")
    F = 10
    P(f"s_waitcnt vmcnt({20+F})"); P("s_barrier")
    P(f"s_waitcnt vmcnt({10+F})"); P("s_barrier")
    P(f"s_waitcnt vmcnt({F})"); P("s_barrier")
    P("; TS 6")
    P("s_waitcnt vmcnt(4)")
    P("; TS 7")
    def unp(dst, src, j):
        if j & 1: P(f"v_and_b32 v{dst}, 0xffff0000, v{src + (j >> 1)}")
        else:     P(f"v_lshlrev_b32 v{dst}, 16, v{src + (j >> 1)}")
    EE, OO = 64, 72
    for j in range(8):
        unp(52, F1, j); unp(53, F2, j)
        if j == 0:
            P(f"v_lshlrev_b32 v54, 16, v{E1}"); P(f"v_lshlrev_b32 v55, 16, v{E2}")
        else:
            unp(54, R1, 8 - j); unp(55, R2, 8 - j)
        P("v_add_f32 v52, v52, v55")
        P("v_add_f32 v53, v53, v54")
        P(f"v_add_f32 v{EE+j}, v52, v53")
        P(f"v_sub_f32 v{OO+j}, v52, v53")
    unp(54, R1, 0); unp(55, R2, 0)
    P("v_add_f32 v56, v54, v55")
    for r in range(4): P(f"v_cvt_pk_bf16_f32 v{80+r}, v{EE+2*r}, v{EE+2*r+1}")
    for r in range(4): P(f"v_cvt_pk_bf16_f32 v{84+r}, v{OO+2*r}, v{OO+2*r+1}")
    P("v_lshlrev_b32 v1, 9, v0")
    P("s_lshl_b32 s46, s46, 15"); P("s_lshl_b32 s47, s47, 4"); P("s_add_u32 s46, s46, s47")
    P(f"s_add_u32 s47, s46, {WS_XOO}"); P(f"s_add_u32 s46, s46, {WS_XEE}")
    P("buffer_store_dwordx4 v[80:83], v1, s[24:27], s46 offen")
    P("buffer_store_dwordx4 v[84:87], v1, s[24:27], s47 offen")
    P(f"v_sub_f32 v57, v{EE}, v{EE+1}")
    for r in range(1, 4):
        P(f"v_add_f32 v57, v57, v{EE+2*r}"); P(f"v_sub_f32 v57, v57, v{EE+2*r+1}")
    dpp_sum(P, 57)
    P("v_add_f32 v57, v57, v56")
    P("v_cvt_pk_bf16_f32 v57, v57, v57")
    P("s_waitcnt vmcnt(2)")
    P("v_mov_b32 v58, 0")
    for r in range(8): P(f"v_dot2_f32_bf16 v58, v{GX+r}, v{GW+r}, v58")
    dpp_sum(P, 58)
    P("s_lshl_b32 s46, s51, 2"); P(f"s_add_u32 s46, s46, {WS_SM+SM_X512}")
    P("s_lshl_b32 s47, s51, 1"); P(f"s_add_u32 s47, s47, {WS_SM+SM_C}")
    P("s_lshl_b32 s55, s54, 2"); P(f"s_add_u32 s55, s55, {WS_SM+SM_G}")
    P("v_mov_b32 v1, s46"); P("v_mov_b32 v2, s47"); P("v_mov_b32 v3, s55")
    P("s_mov_b32 exec_lo, 0"); P("s_mov_b32 exec_hi, 0x80000000")
    P("buffer_store_dword v56, v1, s[24:27], 0 offen")
    P("buffer_store_short v57, v2, s[24:27], 0 offen")
    P("buffer_store_dword v58, v3, s[24:27], 0 offen")
    P.label("K1_END")
    P("s_endpgm")
    return name, P.L, 168, "grid=(256,1,1) block=(512,1,1) lds=163840"
```

```python
import sys, math, struct
sys.path.insert(0, "gen")
from asmlib import Prog, pad, fmt, Ins
from common import srd, LG, kdesc, khead, vr, sr, dpp_sum, MB

def f32hex(x): return "0x%08x" % struct.unpack("<I", struct.pack("<f", x))[0]
M32 = "v_mfma_f32_32x32x16_bf16"
M16 = "v_mfma_f32_16x16x32_bf16"
WS_KV = 0
WS_OF = 8 * MB
WS_XE = 12 * MB
WS_TE = 14 * MB
WS_SM = 16 * MB
SM_X512 = WS_SM
SM_G = WS_SM + 4096
SM_C = WS_SM + 8192
FL1 = WS_SM + 65536
FL2 = FL1 + 8192
FL3 = FL1 + 24576
FL4 = FL1 + 40960
WS_QD = 17 * MB
WS_SIZE = 21 * MB
OOB = 0x40000000
U = [32768 * i for i in range(5)]
P_AX, P_WSR, P_WSI, P_WDR, P_WDI, P_BX, P_WQKV, P_WO, P_OUT, P_DBG, P_WS = 4, 6, 8, 10, 12, 14, 16, 18, 20, 22, 24
S_W, S_XCD, S_J, S_RB, S_CB, S_PRB, S_WL, S_TMO = "s26", "s27", "s28", "s29", "s30", "s31", "s34", "s35"
NON = "s[32:33]"
RWS = "s[36:39]"

class VM:
    def __init__(self, P): self.P = P; self.q = []
    def issue(self, text, tag=None):
        self.P(text); self.q.append(tag)
    def need(self, *tags):
        idx = -1
        for t in tags:
            if t in self.q: idx = max(idx, len(self.q) - 1 - self.q[::-1].index(t))
        if idx >= 0:
            n = min(len(self.q) - 1 - idx, 63)
            self.P(f"s_waitcnt vmcnt({n})")
            self.q = self.q[len(self.q) - n:] if n else []
    def drain(self):
        self.P("s_waitcnt vmcnt(0)"); self.q = []

_uid = [0]
def uid(p):
    _uid[0] += 1
    return f"{p}{_uid[0]}"

def spin(P, load, cond_ok):
    a, b = uid("SP"), uid("SQ")
    P.label(a)
    cond_ok()
    P(f"s_cbranch_scc1 {b}")
    P(f"s_sub_u32 {S_TMO}, {S_TMO}, 1")
    P(f"s_cbranch_scc1 {b}_t")
    P("s_sleep 2")
    P(load)
    P("s_waitcnt vmcnt(0)")
    P(f"s_branch {a}")
    P.label(b + "_t")
    P(f"s_mov_b32 {S_TMO}, 0")
    P.label(b)

def flags_ok(P, v):
    def f():
        P(f"v_cmp_eq_u64 vcc, {NON}, {vr(v,2)}")
        P("s_cmp_eq_u64 vcc, -1")
    return f

def nonce_ok(P, v):
    def f():
        P(f"v_readfirstlane_b32 s32, v{v}")
        P(f"v_readfirstlane_b32 s33, v{v+1}")
        P("s_cmp_lg_u32 s32, 0")
    return f
```

```python
from fcommon import *

RET, ACC = 128, 64
QF = [8, 16, 24]
QO, QX = 32, 48
XF = 64
GA, GC, GI, QP = 128, 136, 140, 144

def lit(x): return f"0x{x & 0xffffffff:x}"

def w_addr(P, dst, half):
    P(f"v_lshrrev_b32 v{dst}, 5, v0")
    P("v_bfe_u32 v11, v0, 2, 2")
    P(f"v_lshl_add_u32 v{dst}, v{dst}, 3, v11")
    P(f"v_lshlrev_b32 v{dst}, 7, v{dst}")
    P("v_bfe_u32 v11, v0, 3, 1")
    P(f"v_xor_b32 v11, {half}, v11")
    P(f"v_lshl_add_u32 v{dst}, v11, 6, v{dst}")
    P("v_bfe_u32 v11, v0, 4, 1")
    P(f"v_lshl_add_u32 v{dst}, v11, 5, v{dst}")
    P("v_and_b32 v11, 3, v0")
    P(f"v_lshl_add_u32 v{dst}, v11, 3, v{dst}")

def x_addr(P, dst, tmp):
    P(f"v_and_b32 v{tmp}, 31, v0")
    P(f"v_lshrrev_b32 v{dst}, 5, v0")
    P(f"v_bfe_u32 v{tmp+1}, v0, 1, 3")
    P(f"v_xor_b32 v{dst}, v{dst}, v{tmp+1}")
    P(f"v_lshlrev_b32 v{dst}, 4, v{dst}")
    P(f"v_lshl_add_u32 v{dst}, v{tmp}, 7, v{dst}")
    P(f"s_lshl_b32 s3, {S_WL}, 12")
    P(f"v_add_u32 v{dst}, s3, v{dst}")
    for ks in range(1, 4): P(f"v_xor_b32 v{dst+ks}, {ks << 5}, v{dst}")

def g1_ids(P):
    P(f"s_lshr_b32 s54, {S_J}, 1")
    P(f"s_lshl_b32 s55, {S_XCD}, 1"); P(f"s_and_b32 s3, {S_J}, 1"); P("s_add_u32 s55, s55, s3")
    P("s_lshl_b32 s55, s55, 2"); P(f"s_add_u32 s55, s55, {S_WL}")

def qg(P, opt, role, vm, lg, hooks):
    barstep = opt.get("barC", 0) if role == "C" else opt.get("barL", 6)
    def reads(i):
        f = QF[i % 3]
        if i < 32:
            o = (i & 7) * 2048
            return [(f"ds_read_b64_tr_b16 {vr(f,2)}, v2 offset:{o}", f"F{i}a"), (f"ds_read_b64_tr_b16 {vr(f+2,2)}, v2 offset:{o+512}", f"F{i}a"),
                    (f"ds_read_b64_tr_b16 {vr(f+4,2)}, v3 offset:{o}", f"F{i}b"), (f"ds_read_b64_tr_b16 {vr(f+6,2)}, v3 offset:{o+512}", f"F{i}b")]
        k = i - 32
        o = (k >> 3) * 32768 + ((k >> 2) & 1) * 8192
        return [(f"ds_read_b128 {vr(f,4)}, v{4+(k&3)} offset:{o}", f"F{i}a"), (f"ds_read_b128 {vr(f+4,4)}, v{4+(k&3)} offset:{o+4096}", f"F{i}b")]
    for i in range(48):
        n = 16 + (i >> 3)
        if (i & 7) == barstep:
            if f"pre{n}" in hooks: hooks[f"pre{n}"]()
            P("s_barrier")
            if f"post{n}" in hooks: hooks[f"post{n}"]()
        if i + 2 < 32 and ((i + 2) & 7) == 0:
            P("v_add_u32 v2, 0x8000, v2"); P("v_add_u32 v3, 0x8000, v3")
        R = reads(i + 2) if i + 2 < 48 else []
        f = QF[i % 3]
        for half in range(2):
            lg.need(f"F{i}" + "ab"[half])
            if i < 32:
                a = (QO, QX)[half]
                P(f"{M32} {vr(a,16)}, {vr(f+4*half,4)}, {vr(RET+4*i,4)}, {vr(a,16) if i else 0}")
            else:
                k = i - 32
                if half == 0: vm.need(f"X{k}")
                a = GA + 4 * half
                c = vr(a, 4) if k else (vr(GI, 4) if role == "C" else "0")
                P(f"{M16} {vr(a,4)}, {vr(XF+4*k,4)}, {vr(f+4*half,4)}, {c}")
            h = len(R) // 2
            for r in R[half * h:(half + 1) * h]: lg.issue(*r)
        if i in hooks: hooks[i]()

def g1_addr(P, role):
    P("v_and_b32 v5, 15, v0")
    P("v_lshrrev_b32 v4, 4, v0")
    P("v_xor_b32 v4, v4, v5")
    P("v_lshlrev_b32 v4, 4, v4")
    P("v_lshl_add_u32 v4, v5, 8, v4")
    if role == "L": P("v_add_u32 v4, 0x4000, v4")
    for k in range(1, 4): P(f"v_xor_b32 v{4+k}, {k<<6}, v4")

def x_loads(P, vm, role, ks):
    for k in ks:
        if k % 4 == 0:
            P("s_lshl_b32 s56, s55, 14"); P(f"s_add_u32 s56, s56, {WS_XE + (MB if role == 'L' else 0) + 1024*k}")
        vm.issue(f"buffer_load_dwordx4 {vr(XF+4*k,4)}, v1, {RWS}, s56 offen offset:{1024*(k%4)} sc1", f"X{k}")

def q_xchg(P, lg):
    def wr():
        P(f"s_lshl_b32 s3, {S_W}, 12"); P(f"s_add_u32 s3, s3, {U[4]}")
        P("v_add_u32 v2, s3, v1")
        P("v_xor_b32 v3, 0x4000, v2")
        for g in range(4): lg.issue(f"ds_write_b128 v2, {vr(QX+4*g,4)} offset:{1024*g}", "QW")
    def rd():
        for g in range(4): lg.issue(f"ds_read_b128 {vr(QP+4*g,4)}, v3 offset:{1024*g}", "QP")
    return wr, rd

def phase1_C(P, opt):
    XO, XT, WA = 2, 6, 10
    SET = [dict(XO=32, XT=36, WK=40, WV=44), dict(XO=48, XT=52, WK=56, WV=60)]
    vm = VM(P); lg = LG(P)
    x_addr(P, XO, 10)
    for k in range(4): P(f"v_xor_b32 v{XT+k}, 0x1000, v{XO+k}")
    P(f"s_and_b32 s57, {S_W}, 1")
    w_addr(P, WA, "s57")
    P(f"v_add_u32 v{WA}, 0x4000, v{WA}")
    P("v_lshlrev_b32 v1, 4, v0")
    g1_ids(P)
    P("v_and_b32 v11, 15, v0"); P("v_lshlrev_b32 v11, 3, v11"); P("s_lshl_b32 s3, s55, 7"); P(f"s_add_u32 s3, s3, {FL1}"); P("v_add_u32 v11, s3, v11")
    P("v_mov_b32 v16, 0")
    P("s_waitcnt lgkmcnt(0)")
    srd(P, 36, P_WS, WS_SIZE); srd(P, 48, P_DBG, 256)
    P(f"s_or_b32 s3, s2, {S_W}"); P("s_cmp_lg_u32 s3, 0"); P("s_cbranch_scc1 C_NN")
    P("s_memrealtime s[58:59]"); P("s_waitcnt lgkmcnt(0)"); P("s_or_b32 s58, s58, 1")
    P("v_mov_b32 v12, s58"); P("v_mov_b32 v13, s59")
    P("buffer_store_dwordx2 v[12:13], v16, s[48:51], 0 offen sc1")
    P.label("C_NN")
    P("s_setprio 2")
    P("; TS 0")
    P("s_barrier")
    P("; TS 1")
    def xo(s, ks): return RET + 4 * (4 * (s - 8) + ks) if s >= 8 else SET[ks & 1]["XO"]
    def reads(s, ks):
        t = SET[ks & 1]; g = f"{s}_{ks}"
        return [(f"ds_read_b128 {vr(xo(s,ks),4)}, v{XO+ks}", "XO" + g),
                (f"ds_read_b64_tr_b16 {vr(t['WK'],2)}, v{WA} offset:{ks*2048}", "WK" + g),
                (f"ds_read_b64_tr_b16 {vr(t['WK']+2,2)}, v{WA} offset:{ks*2048+512}", "WK" + g),
                (f"ds_read_b128 {vr(t['XT'],4)}, v{XT+ks}", "XT" + g),
                (f"ds_read_b64_tr_b16 {vr(t['WV'],2)}, v{WA} offset:{8192+ks*2048}", "WV" + g),
                (f"ds_read_b64_tr_b16 {vr(t['WV']+2,2)}, v{WA} offset:{8192+ks*2048+512}", "WV" + g)]
    for r in reads(0, 0): lg.issue(*r)
    NLOAD = "buffer_load_dwordx2 v[12:13], v16, s[48:51], 0 offen sc1"
    FLOAD = f"buffer_load_dwordx2 v[14:15], v11, {RWS}, 0 offen sc1"
    for s in range(16):
        for ks in range(4):
            t = SET[ks & 1]; g = f"{s}_{ks}"
            last = ks == 3
            R = reads(s, ks + 1) if not last else (reads(s + 1, 0) if s < 15 else [])
            d = lit(32768 if s % 5 != 4 else -131072)
            for i in range(4):
                x, xt = (xo(s, ks), "XO") if i % 2 == 0 else (t["XT"], "XT")
                w = "WK" if i < 2 else "WV"
                lg.need(xt + g, w + g)
                A, B = (t[w], x) if i < 2 else (x, t[w])
                a = ACC + 16 * i
                P(f"{M32} {vr(a,16)}, {vr(A,4)}, {vr(B,4)}, {vr(a,16) if (s or ks) else 0}")
                if last and s < 15:
                    if i == 0:
                        for r in (XO, WA, XT): P(f"v_add_u32 v{r}, {d}, v{r}")
                    if i == 2:
                        for k in range(1, 4): P(f"v_add_u32 v{XO+k}, {d}, v{XO+k}"); P(f"v_add_u32 v{XT+k}, {d}, v{XT+k}")
                if i < 2:
                    for r in R[3 * i:3 * i + 3]: lg.issue(*r)
                if ks == 1 and i == 3:
                    P("s_barrier")
                    if s in (0, 4, 8, 12): P(f"; TS {2 + s // 4}")
                if s == 12 and ks == 2 and i == 2:
                    vm.issue(NLOAD, "N"); vm.issue(FLOAD, "F")
                if s == 15 and ks == 0 and i == 2:
                    vm.need("F")
                    spin(P, NLOAD, nonce_ok(P, 12))
                    spin(P, FLOAD, flags_ok(P, 14))
                if s == 15 and ks == 3 and i == 0:
                    P(f"s_lshl_b32 s3, s57, 6"); P(f"v_xor_b32 v2, s3, v{WA}"); P(f"v_add_u32 v2, {U[1]}, v2"); P("v_xor_b32 v3, 64, v2")
    P("; TS 6")
    for i in range(2):
        f = QF[i]; o = i * 2048
        lg.issue(f"ds_read_b64_tr_b16 {vr(f,2)}, v2 offset:{o}", f"F{i}a"); lg.issue(f"ds_read_b64_tr_b16 {vr(f+2,2)}, v2 offset:{o+512}", f"F{i}a")
        lg.issue(f"ds_read_b64_tr_b16 {vr(f+4,2)}, v3 offset:{o}", f"F{i}b"); lg.issue(f"ds_read_b64_tr_b16 {vr(f+6,2)}, v3 offset:{o+512}", f"F{i}b")
    P(f"s_lshl_b32 s58, {S_PRB}, 2"); P(f"s_add_u32 s58, s58, {S_W}"); P("s_lshl_b32 s58, s58, 12")
    P("s_lshl_b32 s59, s52, 1"); P("s_add_u32 s59, s59, s57")
    P("s_lshl_b32 s60, s53, 1"); P("s_add_u32 s60, s60, s57")
    P("s_lshl_b32 s61, s59, 18"); P("s_add_u32 s61, s61, s58"); P("s_xor_b32 s62, s61, 0x1000")
    P("s_lshl_b32 s63, s60, 18"); P("s_add_u32 s63, s63, s58"); P("s_xor_b32 s64, s63, 0x1000")
    P("v_and_b32 v4, 0x33, v0")
    P("v_bfe_u32 v5, v0, 2, 1"); P("v_lshl_or_b32 v4, v5, 3, v4")
    P("v_bfe_u32 v5, v0, 3, 1"); P("v_lshl_or_b32 v4, v5, 2, v4")
    P("v_lshlrev_b32 v4, 4, v4")
    for i in range(4):
        a = ACC + 16 * i
        for r in range(8): P(f"v_cvt_pk_bf16_f32 v{a+r}, v{a+2*r}, v{a+2*r+1}")
        va, off = (4, 0) if i < 2 else (1, 2048)
        vm.issue(f"buffer_store_dwordx4 {vr(a,4)}, v{va}, {RWS}, s{61+i} offen offset:{off} sc1", "KV")
        vm.issue(f"buffer_store_dwordx4 {vr(a+4,4)}, v{va}, {RWS}, s{61+i} offen offset:{off+1024} sc1", "KV")
    P("s_setprio 0")
    P("; TS 7")
    wr, rd = q_xchg(P, lg)
    def x512():
        P("v_lshrrev_b32 v4, 4, v0"); P("v_lshlrev_b32 v4, 4, v4"); P("s_lshl_b32 s3, s55, 6"); P(f"s_add_u32 s3, s3, {SM_X512}")
        vm.issue(f"buffer_load_dwordx4 {vr(GC,4)}, v4, {RWS}, s3 offen sc1", "X512")
    def ginit():
        g1_addr(P, "C")
        vm.need("X512")
        P(f"v_lshlrev_b32 v{QP}, 31, v0")
        for i in range(4): P(f"v_xor_b32 v{GI+i}, v{QP}, v{GC+i}")
    def kvflag():
        vm.need("KV")
        P("; TS 8")
        P("s_add_u32 s60, s60, 32"); P("s_lshl_b32 s59, s59, 8"); P("s_lshl_b32 s60, s60, 8")
        P(f"s_lshl_b32 s3, {S_PRB}, 1"); P(f"s_lshr_b32 s58, {S_W}, 1"); P("s_add_u32 s3, s3, s58"); P("s_lshl_b32 s3, s3, 3"); P(f"s_add_u32 s3, s3, {FL2}")
        P(f"v_mov_b32 v{QP}, s59"); P(f"v_mov_b32 v{QP+1}, s60"); P("v_cmp_eq_u32 vcc, 0, v0"); P(f"v_cndmask_b32 v{QP}, v{QP+1}, v{QP}, vcc")
        P(f"v_mov_b32 v{QP+2}, s32"); P(f"v_mov_b32 v{QP+3}, s33")
        vm.issue(f"buffer_store_dwordx2 {vr(QP+2,2)}, v{QP}, {RWS}, s3 offen sc1", "FK")
    H = {}
    for n in range(4): H[1 + 2 * n] = (lambda n=n: x_loads(P, vm, "C", range(4 * n, 4 * n + 4)))
    H[10] = x512
    H[opt.get("kvflag", 27)] = kvflag
    H[29] = ginit
    H["post20"] = wr
    H["pre21"] = lambda: lg.need("QW")
    H["post21"] = rd
    qg(P, opt, "C", vm, lg, H)
    P("s_cmp_lg_u32 s54, 0"); P("s_cbranch_scc1 C_NOC")
    for i in range(4): P(f"v_mov_b32 v{8+i}, 0xbf803f80")
    for k in range(16): P(f"{M16} {vr(GC,4)}, {vr(XF+4*k,4)}, v[8:11], {vr(GC,4)}")
    P("v_lshrrev_b32 v4, 4, v0"); P("v_lshlrev_b32 v4, 3, v4"); P("s_lshl_b32 s3, s55, 5"); P(f"s_add_u32 s3, s3, {SM_C}")
    P(f"v_cvt_pk_bf16_f32 v{GC}, v{GC}, v{GC+1}"); P(f"v_cvt_pk_bf16_f32 v{GC+1}, v{GC+2}, v{GC+3}")
    P(f"buffer_store_dwordx2 {vr(GC,2)}, v4, {RWS}, s3 offen sc1")
    P.label("C_NOC")
    lg.drain()
    P("s_branch F_ATT")

def phase1_L(P, opt):
    vm = VM(P); lg = LG(P)
    DX, DW, XA = 2, 6, 8
    P("v_lshrrev_b32 v1, 3, v0")
    P("v_and_b32 v6, 7, v0")
    P("v_lshrrev_b32 v7, 4, v0")
    P("v_xor_b32 v8, v6, v7")
    P("v_lshlrev_b32 v8, 4, v8")
    P("v_lshl_add_u32 v8, v1, 11, v8")
    P(f"s_lshl_b32 s56, {S_RB}, 18"); P(f"s_lshl_b32 s57, {S_WL}, 16"); P("s_add_u32 s56, s56, s57")
    P("v_add_u32 v2, s56, v8")
    P("v_xor_b32 v3, 64, v2")
    P(f"v_add_u32 v3, {16384-1024}, v3")
    P(f"v_add_u32 v4, {32768-2048}, v2")
    P(f"v_add_u32 v5, {32768-2048}, v3")
    P("v_and_b32 v7, 1, v7")
    P("v_lshlrev_b32 v7, 2, v7")
    P("v_xor_b32 v6, v6, v7")
    P("v_lshlrev_b32 v6, 4, v6")
    P(f"s_lshl_b32 s56, {S_WL}, 4")
    P("v_add_u32 v1, s56, v1")
    P("v_mul_u32_u24 v1, 0x1800, v1")
    P("v_add_u32 v6, v1, v6")
    P(f"v_add_u32 v7, {8*6144-1024}, v6")
    P("s_lshl_b32 s52, s52, 7"); P("s_add_u32 s52, s52, 2048")
    P("s_lshl_b32 s53, s53, 7"); P("s_add_u32 s53, s53, 4096")
    P(f"s_lshl_b32 s58, {S_WL}, 12")
    P(f"s_lshl_b32 s59, {S_WL}, 11")
    P(f"s_lshl_b32 s60, {S_CB}, 7")
    P("s_waitcnt lgkmcnt(0)")
    srd(P, 40, P_BX, 4 * MB); srd(P, 44, P_WQKV, 6 * MB)
    def D(n):
        u = U[n % 5]; t = f"D{n}"
        if n < 16:
            P(f"s_add_u32 m0, s58, {u}"); P(f"s_movk_i32 s3, {n*128}")
            for i in range(4): vm.issue(f"buffer_load_dwordx4 v{DX+i}, s[40:43], s3 offen offset:{1024*i} lds", t)
            subs = [(16384, "s52", n), (24576, "s53", n)]
        elif n < 20:
            q = n - 16
            subs = [(8192 * b, "s60", (b >> 1) * 8 + 2 * q + (b & 1)) for b in range(4)]
        else:
            P(f"s_lshl_b32 s3, {S_WL}, 13"); P(f"s_add_u32 m0, s3, {u}"); P(f"s_movk_i32 s3, {(n-20)*512}")
            for i in range(4): vm.issue(f"buffer_load_dwordx4 v{DA+i}, s[40:43], s3 offen offset:{1024*i} lds", t)
            P("s_add_u32 m0, m0, 4096"); P(f"s_mov_b32 s3, {(n-20)*512+32768}")
            for i in range(4): vm.issue(f"buffer_load_dwordx4 v{DA+i}, s[40:43], s3 offen offset:{1024*i} lds", t)
            subs = []
        for lo, sc, st in subs:
            P(f"s_add_u32 m0, s59, {u+lo}"); P(f"s_add_u32 s3, {sc}, {st*393216}")
            vm.issue(f"buffer_load_dwordx4 v{DW}, s[44:47], s3 offen lds", t)
            vm.issue(f"buffer_load_dwordx4 v{DW+1}, s[44:47], s3 offen offset:1024 lds", t)
    D(0); D(1)
    srd(P, 36, P_WS, WS_SIZE); srd(P, 48, P_AX, 4 * MB)
    F1, F2, R1, R2, E1, E2, GX, GW, NV = 32, 36, 40, 44, 48, 49, 52, 60, 50
    P(f"s_lshl_b32 s61, s2, 2"); P(f"s_add_u32 s61, s61, {S_WL}")
    P("s_lshr_b32 s3, s61, 4"); P("s_lshl_b32 s3, s3, 15")
    P("v_and_b32 v12, 15, v0"); P("v_lshlrev_b32 v12, 11, v12"); P("v_add_u32 v12, s3, v12")
    P(f"v_sub_u32 v13, {4*MB}, v12")
    P("s_and_b32 s3, s61, 15"); P("s_lshl_b32 s3, s3, 6")
    P("v_and_b32 v14, 48, v0"); P("v_add_u32 v14, s3, v14")
    P("v_sub_u32 v15, 2032, v14")
    P("v_add_u32 v16, 16, v15")
    P("v_cmp_eq_u32 vcc, 0, v14"); P(f"v_mov_b32 v17, {OOB}"); P("v_cndmask_b32 v16, v16, v17, vcc")
    P("v_add_u32 v18, v12, v14"); P("v_add_u32 v19, v13, v14"); P("v_add_u32 v20, v12, v15"); P("v_add_u32 v21, v13, v15")
    P("v_add_u32 v22, v12, v16"); P("v_add_u32 v23, v13, v16")
    for r, a in ((F1, 18), (F2, 19), (R1, 20), (R2, 21)): vm.issue(f"buffer_load_dwordx4 {vr(r,4)}, v{a}, s[48:51], 0 offen", "FO")
    vm.issue(f"buffer_load_ushort v{E1}, v22, s[48:51], 0 offen", "FO"); vm.issue(f"buffer_load_ushort v{E2}, v23, s[48:51], 0 offen", "FO")
    P("v_lshlrev_b32 v18, 5, v0"); P(f"s_mov_b32 s3, {2*MB}")
    vm.issue(f"buffer_load_dwordx4 {vr(GX,4)}, v18, s[48:51], s3 offen", "G"); vm.issue(f"buffer_load_dwordx4 {vr(GX+4,4)}, v18, s[48:51], s3 offen offset:16", "G")
    srd(P, 48, P_WDR, 513 * 2048)
    P("s_lshl_b32 s3, s61, 11"); P("v_add_u32 v19, s3, v18")
    vm.issue(f"buffer_load_dwordx4 {vr(GW,4)}, v19, s[48:51], 0 offen", "G"); vm.issue(f"buffer_load_dwordx4 {vr(GW+4,4)}, v19, s[48:51], 0 offen offset:16", "G")
    x_addr(P, XA, 18)
    P("v_lshlrev_b32 v1, 4, v0")
    g1_ids(P)
    srd(P, 48, P_DBG, 256)
    P("v_mov_b32 v24, 0")
    NLOAD = f"buffer_load_dwordx2 {vr(NV,2)}, v24, s[48:51], 0 offen sc1"
    FLOAD = f"buffer_load_dwordx2 v[26:27], v25, {RWS}, 0 offen sc1"
    def unp(dst, src, j):
        if j & 1: P(f"v_and_b32 v{dst}, 0xffff0000, v{src + (j >> 1)}")
        else:     P(f"v_lshlrev_b32 v{dst}, 16, v{src + (j >> 1)}")
    EE, OO = 72, 80
    def fold_a(js):
        vm.need("FO")
        for j in js:
            unp(68, F1, j); unp(69, F2, j)
            if j == 0: P(f"v_lshlrev_b32 v70, 16, v{E1}"); P(f"v_lshlrev_b32 v71, 16, v{E2}")
            else: unp(70, R1, 8 - j); unp(71, R2, 8 - j)
            P("v_add_f32 v68, v68, v71"); P("v_add_f32 v69, v69, v70")
            P(f"v_add_f32 v{EE+j}, v68, v69"); P(f"v_sub_f32 v{OO+j}, v68, v69")
    def fold_b():
        unp(70, R1, 0); unp(71, R2, 0); P("v_add_f32 v70, v70, v71")
        for r in range(4): P(f"v_cvt_pk_bf16_f32 v{88+r}, v{EE+2*r}, v{EE+2*r+1}")
        for r in range(4): P(f"v_cvt_pk_bf16_f32 v{92+r}, v{OO+2*r}, v{OO+2*r+1}")
        P("s_lshl_b32 s56, s61, 10"); P(f"s_add_u32 s57, s56, {WS_XE+MB}"); P(f"s_add_u32 s56, s56, {WS_XE}")
        vm.issue(f"buffer_store_dwordx4 v[88:91], v1, {RWS}, s56 offen sc1", "FS")
        vm.issue(f"buffer_store_dwordx4 v[92:95], v1, {RWS}, s57 offen sc1", "FS")
        P("v_lshrrev_b32 v12, 9, v12"); P(f"v_add_u32 v12, {SM_X512}, v12")
        P("v_cmp_eq_u32 vcc, 0x3f0, v14"); P("v_cndmask_b32 v12, v17, v12, vcc")
        vm.issue(f"buffer_store_dword v70, v12, {RWS}, 0 offen sc1", "FS")
    def gjob():
        vm.need("G")
        P("v_mov_b32 v68, 0")
        for r in range(8): P(f"v_dot2_f32_bf16 v68, v{GX+r}, v{GW+r}, v68")
        dpp_sum(P, 68)
        P("s_lshl_b32 s3, s61, 2"); P(f"s_add_u32 s3, s3, {SM_G}"); P("s_cmp_le_u32 s61, 512"); P(f"s_cselect_b32 s3, s3, {OOB}")
        P("v_mov_b32 v69, s3"); P("v_cmp_eq_u32 vcc, 63, v0"); P("v_cndmask_b32 v69, v17, v69, vcc")
        vm.issue(f"buffer_store_dword v68, v69, {RWS}, 0 offen sc1", "FS")
        vm.issue(NLOAD, "N")
    def f1flag():
        vm.need("N")
        spin(P, NLOAD, nonce_ok(P, NV))
        P("s_lshl_b32 s3, s61, 3"); P(f"s_add_u32 s3, s3, {FL1}")
        vm.issue(f"buffer_store_dwordx2 {vr(NV,2)}, v24, {RWS}, s3 offen sc1", "F1")
    def f1poll():
        P("v_and_b32 v25, 15, v0"); P("v_lshlrev_b32 v25, 3, v25"); P("s_lshl_b32 s3, s55, 7"); P(f"s_add_u32 s3, s3, {FL1}"); P("v_add_u32 v25, s3, v25")
        vm.issue(FLOAD, "F")
    def f1check():
        vm.need("F")
        spin(P, FLOAD, flags_ok(P, 26))
    DA = 28
    def wd_setup():
        P(f"s_cmp_lt_u32 {S_WL}, 2")
        P(f"s_cselect_b32 s40, s{P_WDR}, s{P_WDI}"); P(f"s_cselect_b32 s41, s{P_WDR+1}, s{P_WDI+1}"); P(f"s_mov_b32 s42, {2*MB}")
        P("s_lshl_b32 s56, s54, 16"); P(f"s_and_b32 s3, {S_WL}, 1"); P("s_lshl_b32 s3, s3, 8"); P("s_add_u32 s56, s56, s3")
        P("v_lshrrev_b32 v2, 4, v0"); P("v_and_b32 v3, 15, v0"); P("v_xor_b32 v3, v3, v2"); P("v_lshlrev_b32 v3, 4, v3")
        P("v_lshl_add_u32 v3, v2, 11, v3"); P(f"v_add_u32 v{DA}, s56, v3")
        for n in range(1, 4):
            P(f"v_xor_b32 v{DA+n}, {n<<6}, v{DA}"); P(f"v_add_u32 v{DA+n}, {(4*n<<11) - 1024*n}, v{DA+n}")
    def ret(s):
        for ks in range(4): lg.issue(f"ds_read_b128 {vr(RET+16*s+4*ks,4)}, v{XA+ks}", "R")
        d = lit(32768 if s % 5 != 4 else -131072)
        for ks in range(4): P(f"v_add_u32 v{XA+ks}, {d}, v{XA+ks}")
    jobs = {1: lambda: fold_a(range(0, 5)), 2: lambda: (fold_a(range(5, 8)), fold_b()), 3: gjob, 7: f1flag, 12: wd_setup, 14: f1check}
    pre = {11: f1poll}
    vm.need("D0")
    P("; TS 0")
    P("s_barrier")
    P("; TS 1")
    ret(0)
    D(2); D(3)
    for n in range(16):
        vm.need(f"D{n+1}")
        lg.drain()
        P("s_barrier")
        if n in (0, 4, 8, 12): P(f"; TS {2 + n // 4}")
        if n < 7: ret(n + 1)
        if n in pre: pre[n]()
        D(n + 4)
        if n in jobs: jobs[n]()
    P("; TS 6")
    DA2 = 144
    w_addr(P, 2, "1"); P(f"v_add_u32 v2, {U[1]}, v2"); P("v_xor_b32 v3, 64, v2")
    for n in range(4): P(f"v_mov_b32 v{4+n}, v{DA+n}")
    DA = 4
    for i in range(2):
        f = QF[i]; o = i * 2048
        lg.issue(f"ds_read_b64_tr_b16 {vr(f,2)}, v2 offset:{o}", f"F{i}a"); lg.issue(f"ds_read_b64_tr_b16 {vr(f+2,2)}, v2 offset:{o+512}", f"F{i}a")
        lg.issue(f"ds_read_b64_tr_b16 {vr(f+4,2)}, v3 offset:{o}", f"F{i}b"); lg.issue(f"ds_read_b64_tr_b16 {vr(f+6,2)}, v3 offset:{o+512}", f"F{i}b")
    wr, rd = q_xchg(P, lg)
    H = {}
    for n in range(16, 21): H[f"pre{n}"] = (lambda n=n: vm.need(f"D{n+1}"))
    H["post16"] = lambda: D(20)
    H["post17"] = lambda: D(21)
    for n in range(4): H[16 + 2 * n] = (lambda n=n: x_loads(P, vm, "L", range(4 * n, 4 * n + 4)))
    H[28] = lambda: g1_addr(P, "L")
    H["post20"] = wr
    H["pre21"] = lambda: lg.need("QW")
    H["post21"] = rd
    qg(P, opt, "L", vm, lg, H)
    lg.drain()

ONES, LS, Q, K, V, C, O, SA, SB = 8, 12, 16, 24, 32, 40, 56, 72, 88
FA, FV = 104, 106
WD = 108
TA_, TV = 112, 114

def g2_ids(P):
    P(f"s_lshr_b32 s54, {S_W}, 2"); P(f"s_bfe_u32 s55, {S_W}, 0x10001"); P(f"s_and_b32 s56, {S_W}, 1")
    P(f"s_lshl_b32 s57, {S_XCD}, 2"); P(f"s_and_b32 s3, {S_J}, 3"); P("s_add_u32 s57, s57, s3")
    P(f"s_lshr_b32 s58, {S_J}, 2"); P("s_lshl_b32 s58, s58, 1"); P("s_add_u32 s58, s58, s55")
    P("s_cmp_eq_u32 s54, 0")
    P(f"s_cselect_b32 s44, s{P_WSR}, s{P_WSI}"); P(f"s_cselect_b32 s45, s{P_WSR+1}, s{P_WSI+1}"); P(f"s_mov_b32 s46, {8*MB}"); P("s_mov_b32 s47, 0x00020000")
    P("s_lshl_b32 s59, s57, 17"); P("s_lshl_b32 s3, s55, 16"); P("s_add_u32 s59, s59, s3"); P("s_lshl_b32 s3, s56, 10"); P("s_add_u32 s59, s59, s3")
    P("v_lshrrev_b32 v6, 4, v0"); P("v_and_b32 v7, 15, v0"); P("v_xor_b32 v7, v7, v6"); P("v_lshlrev_b32 v7, 4, v7")
    P("v_lshl_add_u32 v7, v6, 12, v7"); P(f"v_add_u32 v{WD}, s59, v7")
    for n in range(1, 4):
        P(f"v_xor_b32 v{WD+n}, {n<<6}, v{WD}"); P(f"v_add_u32 v{WD+n}, {(4*n<<12) - 1024*n}, v{WD+n}")
    P("s_lshl_b32 s59, s54, 14"); P("s_lshl_b32 s3, s56, 13"); P("s_add_u32 s59, s59, s3"); P("s_lshl_b32 s3, s55, 12"); P("s_add_u32 s59, s59, s3")
    P("s_lshl_b32 s3, s54, 4"); P("s_add_u32 s3, s3, s58"); P("s_lshl_b32 s3, s3, 1"); P("s_add_u32 s3, s3, s56"); P("s_lshl_b32 s60, s3, 15"); P("s_lshl_b32 s3, s3, 8"); P(f"s_add_u32 s3, s3, {FL3}")
    P(f"s_add_u32 s60, s60, {WS_TE}")
    P(f"v_and_b32 v{TA_}, 31, v0"); P(f"v_lshlrev_b32 v{TA_}, 3, v{TA_}"); P(f"v_add_u32 v{TA_}, s3, v{TA_}")

WSU = [0, 1, 3, 4]
WOU = [2, 0, 1, 3]
def ws_dma(P, vm, r):
    P(f"s_add_u32 m0, s59, {U[WSU[r]]}"); P(f"s_movk_i32 s3, {r*256}")
    for n in range(4): vm.issue(f"buffer_load_dwordx4 v{WD+n}, s[44:47], s3 offen offset:{1024*n} lds", f"WS{r}")

def attention(P, opt):
    vm = VM(P)
    P.label("F_ATT")
    P("; TS 9")
    P(f"s_lshr_b32 s61, {S_W}, 2")
    P(f"s_and_b32 s3, {S_W}, 1"); P("s_lshl_b32 s3, s3, 4"); P(f"s_add_u32 s3, s3, {S_CB}"); P("s_lshl_b32 s3, s3, 1"); P("s_add_u32 s3, s3, s61")
    P("s_lshl_b32 s3, s3, 8"); P(f"s_add_u32 s3, s3, {FL2}")
    P(f"v_and_b32 v{FA}, 31, v0"); P(f"v_lshlrev_b32 v{FA}, 3, v{FA}"); P(f"v_add_u32 v{FA}, s3, v{FA}")
    KLOAD = f"buffer_load_dwordx2 {vr(FV,2)}, v{FA}, {RWS}, 0 offen sc1"
    vm.issue(KLOAD, "KF")
    for i in range(4): P(f"v_cvt_pk_bf16_f32 v{GI+i}, v{GA+2*i}, v{GA+2*i+1}")
    P(f"v_permlane16_swap_b32 v{GI}, v{GI+2}"); P(f"v_permlane16_swap_b32 v{GI+1}, v{GI+3}")
    P("s_lshl_b32 s62, s61, 4"); P("s_add_u32 s62, s62, s54"); P("s_lshl_b32 s62, s62, 6"); P("s_add_u32 s62, s62, s55")
    P("s_lshl_b32 s3, s62, 10"); P(f"s_add_u32 s3, s3, {WS_TE}")
    vm.issue(f"buffer_store_dwordx4 {vr(GI,4)}, v1, {RWS}, s3 offen sc1", "TS")
    P("s_lshl_b32 s62, s62, 3"); P(f"s_add_u32 s62, s62, {FL3}")
    P(f"s_mov_b32 s3, {f32hex(math.log2(math.e) / math.sqrt(32.0))}")
    for i in range(16): P(f"v_add_f32 v{QO+i}, v{QO+i}, v{QP+i}")
    for i in range(16): P(f"v_mul_f32 v{QO+i}, s3, v{QO+i}")
    for i in range(8): P(f"v_cvt_pk_bf16_f32 v{Q+i}, v{QO+2*i}, v{QO+2*i+1}")
    P(f"s_lshl_b32 s63, {S_CB}, 1"); P("s_add_u32 s63, s63, s61")
    P(f"s_lshl_b32 s64, {S_RB}, 2"); P(f"s_add_u32 s64, s64, {S_WL}")
    if opt.get("qdump"):
        P("s_lshl_b32 s3, s63, 6"); P("s_add_u32 s3, s3, s64"); P("s_lshl_b32 s3, s3, 11"); P(f"s_add_u32 s3, s3, {WS_QD}")
        vm.issue(f"buffer_store_dwordx4 {vr(Q,4)}, v1, {RWS}, s3 offen"); vm.issue(f"buffer_store_dwordx4 {vr(Q+4,4)}, v1, {RWS}, s3 offen offset:1024")
    P("s_lshl_b32 s64, s64, 5"); P("s_add_u32 s64, s64, s63")
    P(f"s_lshl_b32 s3, {S_CB}, 19")
    srd(P, 40, P_WS, 512 * 1024, "s3")
    P("s_lshl_b32 s65, s61, 18")
    P(f"s_lshl_b32 s3, {S_WL}, 11"); P("s_add_u32 s3, s3, s65"); P("v_add_u32 v4, s3, v1")
    P(f"s_lshl_b32 s52, {S_W}, 11"); P(f"s_add_u32 s52, s52, {U[2]}")
    P("s_lshl_b32 s3, s61, 13"); P(f"s_add_u32 s3, s3, {U[2]}"); P("v_add_u32 v2, s3, v1"); P("v_add_u32 v3, 0x8000, v2")
    P("v_mov_b32 v5, 0xdddddddd")
    P("v_and_b32 v6, 7, v0"); P("v_mov_b32 v7, 0x3f803f80")
    P("v_cmp_eq_u32 vcc, 0, v6"); P(f"v_cndmask_b32 v{ONES}, 0, v7, vcc"); P(f"v_cndmask_b32 v{ONES+1}, 0, v7, vcc")
    P("v_cmp_eq_u32 vcc, 4, v6"); P(f"v_cndmask_b32 v{ONES+2}, 0, v7, vcc"); P(f"v_cndmask_b32 v{ONES+3}, 0, v7, vcc")
    for i in range(8, 16): P(f"v_mov_b32 v{SB+i}, 0")
    for i in range(16): P(f"v_mov_b32 v{O+i}, 0")
    for i in range(4): P(f"v_mov_b32 v{LS+i}, 0")
    g2_ids(P)
    vm.need("KF")
    def kv_ok(bits):
        def f():
            P(f"v_cmp_eq_u64 vcc, {NON}, {vr(FV,2)}")
            P("s_mov_b32 s53, vcc_lo")
            P(f"s_andn2_b32 s3, {bits}, s53")
            P("s_cmp_eq_u32 s3, 0")
        return f
    spin(P, KLOAD, kv_ok("31"))
    P("; TS 10")
    def dma(tag=None):
        P("s_mov_b32 m0, s52")
        P("s_add_u32 s52, s52, 0x4000")
        vm.issue("buffer_load_dwordx4 v4, s[40:43], 0 offen sc1 lds", tag)
        vm.issue("buffer_load_dwordx4 v4, s[40:43], 0 offen offset:1024 sc1 lds", tag)
        P("v_add_u32 v4, 0x2000, v4")
    for h in range(4): dma(f"H{h}")
    vm.need("H0")
    P(f"v_mov_b32 v6, s32"); P("v_mov_b32 v7, s33"); P("v_mov_b32 v24, 0")
    vm.issue(f"buffer_store_dwordx2 v[6:7], v24, {RWS}, s62 offen sc1", "F3")
    P("s_barrier")
    P("; TS 11")
    dma("H4")
    lg = LG(P)
    lg.issue(f"ds_read_b128 {vr(K,4)}, v2", "K0"); lg.issue(f"ds_read_b128 {vr(K+4,4)}, v2 offset:1024", "K1")
    vm.issue(KLOAD, "KF")
    ws_dma(P, vm, 0); ws_dma(P, vm, 1)
    P(f"s_mov_b32 s62, {f32hex(float(opt.get('margin', 88)))}")
    lg.need("K0"); P(f"{M32} {vr(SA,16)}, {vr(K,4)}, {vr(Q,4)}, 0")
    lg.need("K1"); P(f"{M32} {vr(SA,16)}, {vr(K+4,4)}, {vr(Q+4,4)}, {vr(SA,16)}")
    lg.issue(f"ds_read_b128 {vr(V+4,4)}, v2 offset:3072", "V1")
    lg.issue(f"ds_read_b128 {vr(K,4)}, v2 offset:4096", "K0")
    lg.issue(f"ds_read_b128 {vr(K+4,4)}, v2 offset:5120", "K1")
    lg.issue(f"ds_read_b128 {vr(V,4)}, v2 offset:2048", "V0")
    P(f"v_max3_f32 v6, v{SA}, v{SA+1}, v{SA+2}")
    for i in range(3, 15, 2): P(f"v_max3_f32 v6, v6, v{SA+i}, v{SA+i+1}")
    P(f"v_max_f32 v6, v6, v{SA+15}")
    P("v_mov_b32 v7, v6"); P("v_permlane32_swap_b32 v6, v7"); P("v_max_f32 v6, v6, v7")
    P("v_add_f32 v6, s62, v6")
    for i in range(16): P(f"v_sub_f32 v{C+i}, 0, v6")
    for i in range(16): P(f"v_sub_f32 v{SA+i}, v{SA+i}, v6")
    P("s_mov_b32 s61, 5")
    P("s_mov_b32 s63, 1")
    q0 = list(lg.q)
    order = opt.get("order", "ee P eee L ee M eee N ee p eee l e").replace(" ", "")
    P.label("AT_LOOP")
    ool = []
    for u in range(4):
        S, T = (SA, SB) if u % 2 == 0 else (SB, SA)
        def at(t, off):
            o = ((t >> 1) & 1) * 16384 + (t & 1) * 4096 + off
            return f"v{2 if t < 4 else 3} offset:{o}"
        e = 0
        for ch in order:
            if ch == "e":
                P(f"v_exp_f32 v{S+e}, v{S+e}"); e += 1
            elif ch == "P":
                lg.need("V1")
                P(f"v_smfmac_f32_32x32x32_bf16 {vr(O,16)}, {vr(V+4,4)}, {vr(T+8,8)}, v5")
                lg.issue(f"ds_read_b128 {vr(V+4,4)}, {at(u,3072)}", "V1")
            elif ch == "L":
                P(f"v_smfmac_f32_16x16x64_bf16 {vr(LS,4)}, {vr(ONES,4)}, {vr(T+8,8)}, v5")
                if u % 2 == 0:
                    P("s_cmp_gt_u32 s61, 31")
                    P(f"s_cbranch_scc1 AT_TAIL{u}")
                    P("s_cmp_lg_u32 s53, -1")
                    P(f"s_cbranch_scc1 AT_POLL{u}")
                    P.label(f"AT_BACK{u}")
                    P("s_waitcnt vmcnt(6)")
                    P("s_barrier")
                    P("s_mov_b32 m0, s52")
                    if u == 0:
                        P("s_add_u32 s52, s52, 0x4000"); P(f"s_cmp_ge_u32 s52, {U[4]+32768}"); P("s_cselect_b32 s3, 0x18000, 0"); P("s_sub_u32 s52, s52, s3")
                    else: P("s_add_u32 s52, s52, 0x4000")
                    P("buffer_load_dwordx4 v4, s[40:43], 0 offen sc1 lds")
                    P("buffer_load_dwordx4 v4, s[40:43], 0 offen offset:1024 sc1 lds")
                    P("v_add_u32 v4, 0x2000, v4")
                    P.label(f"AT_CONT{u}")
                    P("s_add_u32 s61, s61, 1")
            elif ch == "M":
                lg.need("K0")
                P(f"{M32} {vr(T,16)}, {vr(K,4)}, {vr(Q,4)}, {vr(C,16)}")
                lg.issue(f"ds_read_b128 {vr(K,4)}, {at(u+2,0)}", "K0")
            elif ch == "N":
                lg.need("K1")
                P(f"{M32} {vr(T,16)}, {vr(K+4,4)}, {vr(Q+4,4)}, {vr(T,16)}")
                lg.issue(f"ds_read_b128 {vr(K+4,4)}, {at(u+2,1024)}", "K1")
            elif ch == "p":
                lg.need("V0")
                P(f"v_smfmac_f32_32x32x32_bf16 {vr(O,16)}, {vr(V,4)}, {vr(S,8)}, v5")
                lg.issue(f"ds_read_b128 {vr(V,4)}, {at(u+1,2048)}", "V0")
                if u == 3:
                    P("s_cmp_eq_u32 s63, 2"); P("s_cselect_b32 s3, -2, 1"); P("s_lshl_b32 s3, s3, 15"); P("s_add_u32 s63, s63, 1"); P("s_cmp_eq_u32 s63, 3"); P("s_cselect_b32 s63, 0, s63")
                    P("v_mov_b32 v2, v3")
                    P("v_add_u32 v3, s3, v3")
            elif ch == "l":
                P(f"v_smfmac_f32_16x16x64_bf16 {vr(LS,4)}, {vr(ONES,4)}, {vr(S,8)}, v5")
        assert e == 16
    assert lg.q == q0, (lg.q, q0)
    P("s_cmp_lg_u32 s61, 37")
    P("s_cbranch_scc1 AT_LOOP")
    P("s_branch AT_DONE")
    for u in (0, 2):
        P.label(f"AT_TAIL{u}")
        P("s_waitcnt vmcnt(0)")
        P("s_barrier")
        P(f"s_branch AT_CONT{u}")
        P.label(f"AT_POLL{u}")
        P("s_lshl_b32 s62, 1, s61")
        spin(P, KLOAD, kv_ok("s62"))
        P(KLOAD)
        P(f"s_branch AT_BACK{u}")
    P.label("AT_DONE")
    lg.need("V1")
    P(f"v_smfmac_f32_32x32x32_bf16 {vr(O,16)}, {vr(V+4,4)}, {vr(SB+8,8)}, v5")
    P(f"v_smfmac_f32_16x16x64_bf16 {vr(LS,4)}, {vr(ONES,4)}, {vr(SB+8,8)}, v5")
    lg.drain()
    P("; TS 12")
    vm = VM(P)
    TLOAD = f"buffer_load_dwordx2 {vr(TV,2)}, v{TA_}, {RWS}, 0 offen sc1"
    vm.issue(TLOAD, "TF")
    P(f"v_add_f32 v6, |v{O}|, |v{O+1}|"); P(f"v_add_f32 v7, |v{O+2}|, |v{O+3}|")
    for i in range(4, 16, 2):
        P(f"v_add_f32 v6, v6, |v{O+i}|"); P(f"v_add_f32 v7, v7, |v{O+i+1}|")
    P("v_add_f32 v6, v6, v7")
    P(f"s_mov_b32 s3, {f32hex(2.0**-104)}"); P(f"s_mov_b32 s61, {f32hex(2.0**120)}")
    P("v_cmp_lt_f32 s[52:53], s3, v6"); P("v_cmp_gt_f32 s[62:63], s61, v6"); P(f"v_cmp_gt_f32 vcc, s61, v{LS}")
    P("s_and_b64 s[52:53], s[52:53], s[62:63]"); P("s_and_b64 s[52:53], s[52:53], vcc")
    if opt.get("force_slow"): P("s_mov_b64 s[52:53], 0")
    P("s_cmp_eq_u64 s[52:53], -1")
    P("s_cbranch_scc1 AT_FIN")
    P("v_mov_b32 v6, 0xff800000"); P("s_mov_b32 s3, s65"); P("s_add_u32 s61, s65, 0x40000")
    P.label("AT_MP")
    P(f"buffer_load_dwordx4 {vr(K,4)}, v1, s[40:43], s3 offen sc1"); P(f"buffer_load_dwordx4 {vr(K+4,4)}, v1, s[40:43], s3 offen offset:1024 sc1")
    P("s_waitcnt vmcnt(0)")
    P(f"{M32} {vr(SA,16)}, {vr(K,4)}, {vr(Q,4)}, 0"); P(f"{M32} {vr(SA,16)}, {vr(K+4,4)}, {vr(Q+4,4)}, {vr(SA,16)}")
    for i in range(8): P(f"v_max3_f32 v6, v6, v{SA+2*i}, v{SA+2*i+1}")
    P("s_add_u32 s3, s3, 4096"); P("s_cmp_lg_u32 s3, s61"); P("s_cbranch_scc1 AT_MP")
    P("v_mov_b32 v7, v6"); P("v_permlane32_swap_b32 v6, v7"); P("v_max_f32 v6, v6, v7")
    for i in range(16): P(f"v_sub_f32 v{C+i}, 0, v6")
    for i in range(16): P(f"v_mov_b32 v{O+i}, 0")
    for i in range(4): P(f"v_mov_b32 v{LS+i}, 0")
    P("s_mov_b32 s3, s65")
    P.label("AT_SL")
    for i, r in enumerate((K, K + 4, V, V + 4)): P(f"buffer_load_dwordx4 {vr(r,4)}, v1, s[40:43], s3 offen offset:{1024*i} sc1")
    P("s_waitcnt vmcnt(0)")
    P(f"{M32} {vr(SA,16)}, {vr(K,4)}, {vr(Q,4)}, {vr(C,16)}"); P(f"{M32} {vr(SA,16)}, {vr(K+4,4)}, {vr(Q+4,4)}, {vr(SA,16)}")
    for i in range(16): P(f"v_exp_f32 v{SA+i}, v{SA+i}")
    P(f"v_smfmac_f32_32x32x32_bf16 {vr(O,16)}, {vr(V,4)}, {vr(SA,8)}, v5"); P(f"v_smfmac_f32_16x16x64_bf16 {vr(LS,4)}, {vr(ONES,4)}, {vr(SA,8)}, v5")
    P(f"v_smfmac_f32_32x32x32_bf16 {vr(O,16)}, {vr(V+4,4)}, {vr(SA+8,8)}, v5"); P(f"v_smfmac_f32_16x16x64_bf16 {vr(LS,4)}, {vr(ONES,4)}, {vr(SA+8,8)}, v5")
    P("s_nop 15")
    P("s_add_u32 s3, s3, 4096"); P("s_cmp_lg_u32 s3, s61"); P("s_cbranch_scc1 AT_SL")
    P.label("AT_FIN")
    P(f"v_rcp_f32 v6, v{LS}")
    P("s_lshl_b32 s3, s64, 11"); P(f"s_add_u32 s3, s3, {WS_OF}")
    for i in range(16): P(f"v_mul_f32 v{O+i}, v6, v{O+i}")
    for i in range(8): P(f"v_cvt_pk_bf16_f32 v{SA+i}, v{O+2*i}, v{O+2*i+1}")
    vm.issue(f"buffer_store_dwordx4 {vr(SA,4)}, v1, {RWS}, s3 offen sc1", "OS")
    vm.issue(f"buffer_store_dwordx4 {vr(SA+4,4)}, v1, {RWS}, s3 offen offset:1024 sc1", "OS")
    P("s_lshl_b32 s64, s64, 3"); P(f"s_add_u32 s64, s64, {FL4}")
    return vm, TLOAD

def tail(P, opt, vm, TLOAD):
    T = 128
    AC, AF, PA, RW, DO = 16, 32, 44, 52, 56
    CJ = 64
    P("s_barrier")
    P("; TS 13")
    ws_dma(P, vm, 2); ws_dma(P, vm, 3)
    vm.need("TF")
    spin(P, TLOAD, flags_ok(P, TV))
    for i in range(32):
        if i % 4 == 0 and i: P("s_add_u32 s60, s60, 4096")
        vm.issue(f"buffer_load_dwordx4 {vr(T+4*i,4)}, v1, {RWS}, s60 offen offset:{1024*(i%4)} sc1", f"T{i}")
        if i == 7:
            P("s_or_b32 s3, s54, s56"); P("s_lshl_b32 s3, s3, 30"); P("s_lshl_b32 s61, s58, 7"); P("s_add_u32 s3, s3, s61"); P(f"s_add_u32 s3, s3, {SM_G}")
            P("v_and_b32 v2, 31, v0"); P("v_lshlrev_b32 v2, 2, v2"); P("v_add_u32 v2, s3, v2")
            vm.issue(f"buffer_load_dword v{RW}, v2, {RWS}, 0 offen sc1", "GE")
            vm.need("OS")
            P(f"v_mov_b32 v6, s32"); P("v_mov_b32 v7, s33"); P("v_mov_b32 v8, 0")
            vm.issue(f"buffer_store_dwordx2 v[6:7], v8, {RWS}, s64 offen sc1", "F4")
            P("; TS 14")
    P(f"s_and_b32 s61, {S_XCD}, 1"); P("s_lshl_b32 s61, s61, 3"); P(f"s_lshr_b32 s3, {S_J}, 3"); P("s_lshl_b32 s3, s3, 1"); P("s_add_u32 s61, s61, s3")
    P(f"s_bfe_u32 s3, {S_XCD}, 0x10001"); P("s_add_u32 s61, s61, s3")
    P(f"s_lshr_b32 s62, {S_XCD}, 2"); P("s_lshl_b32 s62, s62, 3"); P(f"s_and_b32 s3, {S_J}, 7"); P("s_add_u32 s62, s62, s3")
    srd(P, 40, P_WO, 2 * MB); srd(P, 48, P_OUT, 8 * MB)
    P("v_lshrrev_b32 v2, 3, v0"); P("v_and_b32 v3, 7, v0"); P("v_bfe_u32 v4, v0, 4, 1"); P("v_lshlrev_b32 v4, 2, v4"); P("v_xor_b32 v3, v3, v4")
    P("v_lshlrev_b32 v3, 4, v3"); P("v_lshl_add_u32 v3, v2, 11, v3")
    P("s_lshl_b32 s3, s54, 20"); P(f"s_lshl_b32 s63, {S_WL}, 16"); P("s_add_u32 s3, s3, s63"); P("s_lshl_b32 s63, s62, 7"); P("s_add_u32 s3, s3, s63")
    P(f"v_add_u32 v{DO}, s3, v3")
    for n in range(1, 4): P(f"v_add_u32 v{DO+n}, {n*(16384-1024)}, v{DO}")
    P(f"s_lshl_b32 s63, {S_W}, 12")
    def wo_dma(o):
        P(f"s_add_u32 m0, s63, {U[WOU[o]]}"); P(f"s_mov_b32 s3, {o*0x40000}")
        for n in range(4): vm.issue(f"buffer_load_dwordx4 v{DO+n}, s[40:43], s3 offen offset:{1024*n} lds", f"WO{o}")
    wo_dma(0)
    P(f"s_lshl_b32 s64, s2, 2"); P(f"s_add_u32 s64, s64, {S_W}")
    P("s_cmp_eq_u32 s64, 4"); P("s_movk_i32 s3, 1024"); P("s_cselect_b32 s3, s3, 0x10000")
    P(f"s_cmp_lt_u32 {S_W}, 4"); P("s_cselect_b32 s64, s64, s3")
    srd(P, 44, P_WSR, 8 * MB)
    P("s_lshl_b32 s3, s64, 12"); P("v_lshlrev_b32 v2, 5, v0"); P("v_add_u32 v3, s3, v2")
    vm.issue(f"buffer_load_dwordx4 {vr(CJ,4)}, v3, s[44:47], 0 offen", "CW"); vm.issue(f"buffer_load_dwordx4 {vr(CJ+4,4)}, v3, s[44:47], 0 offen offset:16", "CW")
    P(f"v_lshlrev_b32 v{TA_}, 3, v0"); P(f"v_add_u32 v{TA_}, {FL3}, v{TA_}")
    vm.issue(TLOAD, "CF")
    P("s_lshl_b32 s65, s61, 2"); P(f"s_add_u32 s65, s65, {S_WL}")
    P("s_lshl_b32 s3, s65, 1"); P("s_add_u32 s3, s3, s54"); P("s_lshl_b32 s60, s3, 15"); P(f"s_add_u32 s60, s60, {WS_OF}"); P("s_lshl_b32 s3, s3, 7"); P(f"s_add_u32 s3, s3, {FL4}")
    P(f"v_and_b32 v{FA}, 15, v0"); P(f"v_lshlrev_b32 v{FA}, 3, v{FA}"); P(f"v_add_u32 v{FA}, s3, v{FA}")
    OLOAD = f"buffer_load_dwordx2 {vr(FV,2)}, v{FA}, {RWS}, 0 offen sc1"
    P("s_lshl_b32 s52, s54, 1"); P("s_add_u32 s52, s52, s56")
    P("s_lshl_b32 s3, s52, 3"); P("v_xor_b32 v2, s3, v0")
    P("v_and_b32 v3, 31, v2"); P("v_lshrrev_b32 v4, 5, v2"); P("v_and_b32 v2, 15, v2"); P("v_xor_b32 v4, v4, v2"); P("v_lshlrev_b32 v4, 4, v4")
    P(f"v_lshl_add_u32 v{PA}, v3, 8, v4"); P("s_lshl_b32 s3, s52, 13"); P(f"v_add_u32 v{PA}, s3, v{PA}")
    for k in range(1, 8): P(f"v_xor_b32 v{PA+k}, {k<<5}, v{PA}")
    P("s_or_b32 s53, s57, s54")
    P("s_mov_b32 s59, 0xbf803f80")
    vm.need("GE")
    for i in range(16):
        if i & 1: P(f"v_sub_f32 v{AC+i}, 0, v{RW}")
        else:     P(f"v_mov_b32 v{AC+i}, v{RW}")
    P("v_cmp_gt_u32 vcc, 32, v0"); P(f"v_cndmask_b32 v{RW}, 0, v{RW}, vcc")
    lg = LG(P)
    def rd(i):
        r, k = i >> 3, i & 7
        lg.issue(f"ds_read_b128 {vr(AF+4*(i%3),4)}, v{PA+k} offset:{32768*(r&1)}", f"A{i}")
        if r == 1: P(f"v_add_u32 v{PA+k}, {U[3]}, v{PA+k}")
    rd(0); rd(1)
    for i in range(32):
        r, k = i >> 3, i & 7
        if k == 2 and r >= 1:
            P("s_barrier")
            wo_dma(r)
        if i + 2 < 32: rd(i + 2)
        lg.need(f"A{i}"); vm.need(f"T{i}")
        P(f"{M32} {vr(AC,16)}, {vr(AF+4*(i%3),4)}, {vr(T+4*i,4)}, {vr(AC,16)}")
        if k == 7:
            P("s_cmp_lg_u32 s53, 0"); P(f"s_cbranch_scc1 G2_NR{r}")
            for j in range(32): P(f"v_dot2_f32_bf16 v{RW}, v{T+32*r+j}, s59, v{RW}")
            P.label(f"G2_NR{r}")
    P("; TS 15")
    vm.issue(OLOAD, "OF")
    vm.need("CF")
    spin(P, TLOAD, flags_ok(P, TV))
    P("v_lshlrev_b32 v2, 5, v0"); P(f"s_mov_b32 s3, {SM_C}")
    vm.issue(f"buffer_load_dwordx4 {vr(CJ+8,4)}, v2, {RWS}, s3 offen sc1", "CC"); vm.issue(f"buffer_load_dwordx4 {vr(CJ+12,4)}, v2, {RWS}, s3 offen offset:16 sc1", "CC")
    P(f"v_mov_b32 v2, {SM_G+2048}")
    vm.issue(f"buffer_load_dword v{CJ+16}, v2, {RWS}, 0 offen sc1", "CC")
    P("s_barrier")
    for q in range(1, 4):
        P(f"s_xor_b32 s3, {S_W}, {(q & 1) | ((q >> 1) << 2)}"); P("s_mul_i32 s3, s3, 3072"); P(f"s_add_u32 s3, s3, {U[4] + (q-1)*1024}")
        P(f"v_add_u32 v{1+q}, s3, v1")
        lg.issue(f"ds_write_b128 v{1+q}, {vr(AC+4*q,4)}", "XW")
    P(f"s_lshl_b32 s3, {S_W}, 8"); P(f"s_add_u32 s3, s3, {U[4]+24576}"); P("v_lshlrev_b32 v5, 2, v0"); P("v_add_u32 v5, s3, v5")
    lg.issue(f"ds_write_b32 v5, v{RW}", "XW")
    P(f"s_mul_i32 s3, {S_W}, 3072"); P(f"s_add_u32 s3, s3, {U[4]}"); P("v_add_u32 v2, s3, v1")
    lg.drain()
    P("s_barrier")
    for q in range(3): lg.issue(f"ds_read_b128 {vr(AC+4+4*q,4)}, v2 offset:{1024*q}", "XR")
    vm.need("OF")
    spin(P, OLOAD, flags_ok(P, FV))
    P("; TS 16")
    for i in range(32):
        if i % 4 == 0 and i: P("s_add_u32 s60, s60, 4096")
        vm.issue(f"buffer_load_dwordx4 {vr(T+4*i,4)}, v1, {RWS}, s60 offen offset:{1024*(i%4)} sc1", f"O{i}")
    P("v_and_b32 v3, 31, v0"); P("s_lshl_b32 s3, s58, 5"); P("v_add_u32 v3, s3, v3")
    P("v_lshlrev_b32 v4, 1, v3"); P("v_sub_u32 v5, 2048, v4"); P(f"v_mov_b32 v6, {OOB}"); P("v_cmp_eq_u32 vcc, 0, v3"); P("v_cndmask_b32 v5, v5, v6, vcc")
    P("v_lshrrev_b32 v6, 5, v0"); P("v_lshlrev_b32 v6, 14, v6")
    P("s_lshl_b32 s3, s57, 17"); P("s_lshl_b32 s59, s52, 15"); P("s_add_u32 s3, s3, s59"); P("v_add_u32 v6, s3, v6")
    P(f"v_sub_u32 v7, {8*MB}, v6")
    P("v_add_u32 v8, v6, v4"); P("v_add_u32 v9, v7, v5"); P("v_add_u32 v10, v7, v4"); P("v_add_u32 v11, v6, v5")
    P("s_lshl_b32 s59, s54, 31")
    lg.need("XR")
    for r in range(4):
        P(f"v_add_f32 v{AC+r}, v{AC+r}, v{AC+4+r}")
        P(f"v_add_f32 v{AC+8+r}, v{AC+8+r}, v{AC+12+r}")
        P(f"v_sub_f32 v12, v{AC+r}, v{AC+8+r}")
        P(f"v_add_f32 v13, v{AC+r}, v{AC+8+r}")
        P("v_xor_b32 v12, s59, v12")
        P(f"v_cvt_pk_bf16_f32 v{AF+r}, v12, v13")
        if r:
            a = 84 + 4 * r
            P(f"v_add_u32 v{a}, {4096*r}, v8"); P(f"v_subrev_u32 v{a+1}, {4096*r}, v9"); P(f"v_subrev_u32 v{a+2}, {4096*r}, v10"); P(f"v_add_u32 v{a+3}, {4096*r}, v11")
        else: a = 8
        vm.issue(f"buffer_store_short v{AF+r}, v{a}, s[48:51], 0 offen"); vm.issue(f"buffer_store_short v{AF+r}, v{a+1}, s[48:51], 0 offen")
        vm.issue(f"buffer_store_short_d16_hi v{AF+r}, v{a+2}, s[48:51], 0 offen"); vm.issue(f"buffer_store_short_d16_hi v{AF+r}, v{a+3}, s[48:51], 0 offen")
    P("s_or_b32 s53, s53, s56"); P("s_cmp_lg_u32 s53, 0"); P("s_cbranch_scc1 G2_END")
    P("v_and_b32 v3, 31, v0"); P("v_lshlrev_b32 v3, 2, v3"); P(f"s_lshl_b32 s3, {S_W}, 8"); P(f"s_add_u32 s3, s3, {U[4]+24576}"); P("v_add_u32 v3, s3, v3")
    for i in range(4): P(f"ds_read_b32 v{12+i}, v3 offset:{128*i}")
    P(f"v_add_u32 v8, {4*MB}, v4"); P(f"v_add_u32 v9, {4*MB}, v5")
    P("s_waitcnt lgkmcnt(0)")
    P("v_add_f32 v12, v12, v13"); P("v_add_f32 v14, v14, v15"); P("v_add_f32 v12, v12, v14"); P("v_cvt_pk_bf16_f32 v12, v12, v12")
    P("buffer_store_short v12, v8, s[48:51], 0 offen"); P("buffer_store_short v12, v9, s[48:51], 0 offen")
    P.label("G2_END")
    vm.need("CC", "CW")
    P("s_lshl_b32 s3, s64, 31"); P(f"v_xor_b32 v{CJ+16}, s3, v{CJ+16}")
    P("v_mov_b32 v2, 0")
    for r in range(8): P(f"v_dot2_f32_bf16 v2, v{CJ+r}, v{CJ+8+r}, v2")
    dpp_sum(P, 2)
    P(f"v_add_f32 v2, v2, v{CJ+16}"); P("v_cvt_pk_bf16_f32 v2, v2, v2")
    P("s_lshl_b32 s3, s64, 12"); P("s_add_u32 s59, s3, 1024"); P(f"s_sub_u32 s3, {8*MB+1024}, s3")
    P("v_mov_b32 v3, s59"); P("v_mov_b32 v4, s3"); P(f"v_mov_b32 v5, {OOB}"); P("v_cmp_eq_u32 vcc, 63, v0"); P("v_cndmask_b32 v3, v5, v3, vcc"); P("v_cndmask_b32 v4, v5, v4, vcc")
    vm.issue("buffer_store_short v2, v3, s[48:51], 0 offen"); vm.issue("buffer_store_short v2, v4, s[48:51], 0 offen")
    A0, A1 = 32, 48
    P("v_lshrrev_b32 v2, 5, v0"); P("v_bfe_u32 v3, v0, 2, 2"); P("v_lshl_add_u32 v2, v2, 2, v3"); P("v_lshlrev_b32 v2, 7, v2")
    P("v_bfe_u32 v3, v0, 3, 1"); P("v_xor_b32 v3, s54, v3"); P("v_lshl_add_u32 v2, v3, 6, v2")
    P("v_bfe_u32 v3, v0, 4, 1"); P("v_lshl_add_u32 v2, v3, 5, v2")
    P("v_and_b32 v3, 3, v0"); P("v_lshl_add_u32 v2, v3, 3, v2")
    P("s_lshl_b32 s3, s54, 14"); P("v_add_u32 v2, s3, v2"); P("v_xor_b32 v3, 64, v2")
    P("v_add_u32 v4, 0x10000, v2"); P("v_add_u32 v5, 0x10000, v3")
    vm.need("WO3")
    P("s_barrier")
    P("; TS 17")
    def ord_(i):
        o, k = i >> 3, i & 7
        f = QF[i % 3]; u = WOU[o]
        b = 2 + 2 * (u >> 1); off = (u & 1) * 32768 + k * 2048
        return [(f"ds_read_b64_tr_b16 {vr(f,2)}, v{b} offset:{off}", f"F{i}a"), (f"ds_read_b64_tr_b16 {vr(f+2,2)}, v{b} offset:{off+1024}", f"F{i}a"),
                (f"ds_read_b64_tr_b16 {vr(f+4,2)}, v{b+1} offset:{off}", f"F{i}b"), (f"ds_read_b64_tr_b16 {vr(f+6,2)}, v{b+1} offset:{off+1024}", f"F{i}b")]
    for r in ord_(0) + ord_(1): lg.issue(*r)
    for i in range(32):
        R = ord_(i + 2) if i + 2 < 32 else []
        f = QF[i % 3]
        for half in range(2):
            lg.need(f"F{i}" + "ab"[half])
            if half == 0: vm.need(f"O{i}")
            a = (A0, A1)[half]
            P(f"{M32} {vr(a,16)}, {vr(f+4*half,4)}, {vr(T+4*i,4)}, {vr(a,16) if i else 0}")
            for r in R[2 * half:2 * half + 2]: lg.issue(*r)
    P("; TS 18")
    P(f"s_lshl_b32 s3, {S_W}, 12"); P(f"s_add_u32 s3, s3, {U[4]}"); P("v_add_u32 v2, s3, v1"); P("v_xor_b32 v3, 0x4000, v2")
    for g in range(4): lg.issue(f"ds_write_b128 v2, {vr(A1+4*g,4)} offset:{1024*g}", "XW")
    P("v_and_b32 v4, 31, v0"); P("v_lshrrev_b32 v5, 5, v0"); P("v_lshlrev_b32 v5, 4, v5"); P("v_lshl_add_u32 v4, v4, 12, v5")
    P("s_lshl_b32 s3, s65, 17"); P("s_lshl_b32 s59, s62, 7"); P("s_add_u32 s3, s3, s59"); P("s_lshl_b32 s59, s54, 6"); P("s_add_u32 s3, s3, s59"); P("s_add_u32 s3, s3, 2048")
    lg.drain()
    P("s_barrier")
    for g in range(4): lg.issue(f"ds_read_b128 {vr(A1+4*g,4)}, v3 offset:{1024*g}", f"XR{g}")
    for g in range(4):
        lg.need(f"XR{g}")
        for i in range(4): P(f"v_add_f32 v{A0+4*g+i}, v{A0+4*g+i}, v{A1+4*g+i}")
        P(f"v_cvt_pk_bf16_f32 v{8+2*g}, v{A0+4*g}, v{A0+4*g+1}"); P(f"v_cvt_pk_bf16_f32 v{9+2*g}, v{A0+4*g+2}, v{A0+4*g+3}")
        if g & 1:
            t = 8 + 4 * (g >> 1)
            P(f"v_permlane32_swap_b32 v{t}, v{t+2}"); P(f"v_permlane32_swap_b32 v{t+1}, v{t+3}")
            P(f"buffer_store_dwordx4 {vr(t,4)}, v4, s[48:51], s3 offen offset:{32*(g>>1)}")

def fused(opt):
    P = Prog()
    sk, sv = opt.get("skew", (5, 10))
    P("s_cmp_ge_u32 s2, 256"); P("s_cbranch_scc1 F_END")
    P("s_load_dwordx16 s[4:19], s[0:1], 0")
    P("s_load_dwordx4 s[20:23], s[0:1], 64")
    P("s_load_dwordx2 s[24:25], s[0:1], 80")
    P("v_lshrrev_b32 v1, 6, v0"); P("v_and_b32 v0, 63, v0"); P(f"v_readfirstlane_b32 {S_W}, v1")
    P(f"s_and_b32 {S_XCD}, s2, 7"); P(f"s_lshr_b32 {S_J}, s2, 3")
    P(f"s_and_b32 s3, {S_XCD}, 1"); P(f"s_lshr_b32 s52, {S_J}, 2")
    P(f"s_lshl_b32 {S_RB}, s3, 3"); P(f"s_add_u32 {S_RB}, {S_RB}, s52")
    P(f"s_lshl_b32 {S_PRB}, s52, 1"); P(f"s_add_u32 {S_PRB}, {S_PRB}, s3")
    P(f"s_lshr_b32 {S_CB}, {S_XCD}, 1"); P(f"s_lshl_b32 {S_CB}, {S_CB}, 2"); P(f"s_and_b32 s3, {S_J}, 3"); P(f"s_add_u32 {S_CB}, {S_CB}, s3")
    P(f"s_add_u32 s52, {S_CB}, {sk}"); P("s_and_b32 s52, s52, 15")
    P(f"s_add_u32 s53, {S_CB}, {sv}"); P("s_and_b32 s53, s53, 15")
    P(f"s_and_b32 {S_WL}, {S_W}, 3")
    P(f"s_movk_i32 {S_TMO}, {opt.get('tmo', 20000)}")
    P(f"s_cmp_ge_u32 {S_W}, 4"); P("s_cbranch_scc1 F_L")
    phase1_C(P, opt)
    P.label("F_L")
    phase1_L(P, opt)
    vm, TLOAD = attention(P, opt)
    tail(P, opt, vm, TLOAD)
    P.label("F_END")
    P("s_endpgm")
    return P.L

def prof(L):
    pre = ["s_memrealtime s[66:67]", "s_memtime s[68:69]", "s_waitcnt lgkmcnt(0)", "s_mov_b32 s67, s68"]
    pre += [f"s_mov_b32 s{70+i}, 0" for i in range(24)]
    body = []
    for x in L:
        if x == "s_endpgm": continue
        if x == "F_END:": body.append("s_branch F_PROF"); body.append(x); body.append("s_endpgm"); continue
        if x.startswith("; TS "):
            n = int(x.split()[2])
            body += ["s_memtime s[68:69]", "s_waitcnt lgkmcnt(0)", f"s_sub_u32 s{70+n}, s68, s67"]
        else: body.append(x)
    post = ["F_PROF:", "s_waitcnt vmcnt(0) lgkmcnt(0)", "s_memrealtime s[94:95]", "s_memtime s[68:69]", "s_mov_b64 exec, 1",
            f"s_add_u32 s40, s24, {24*MB}", "s_addc_u32 s41, s25, 0", f"s_mov_b32 s42, {MB}", "s_mov_b32 s43, 0x00020000",
            "s_lshl_b32 s3, s2, 3", f"s_add_u32 s3, s3, {S_W}", "s_lshl_b32 s3, s3, 7", "v_mov_b32 v0, s3",
            "s_waitcnt lgkmcnt(0)", "s_sub_u32 s68, s68, s67", "s_getreg_b32 s69, hwreg(HW_REG_XCC_ID)",
            "v_mov_b32 v4, s66", "v_mov_b32 v5, s94", "v_mov_b32 v6, s68", f"v_mov_b32 v7, {S_TMO}"]
    post += [f"v_mov_b32 v{8+i}, s{70+i}" for i in range(24)]
    post += [f"buffer_store_dwordx4 v[{4+4*i}:{7+4*i}], v0, s[40:43], 0 offen offset:{16*i}" for i in range(7)] + ["s_endpgm"]
    return pre + body + post

REF = "concat_heads__spectral_fnet__mha_block__prompt.s.ref"
NAME = "concat_heads__spectral_fnet__mha_block__prompt_kernel"
def build(opt, verbose=False):
    head = []
    for line in open(REF):
        if line.startswith("; @launch"): break
        head.append(line.rstrip("\n"))
    L = fused(opt)
    if opt.get("prof"): L = prof(L)
    out = head + ["; @launch grid=(256,1,1) block=(512,1,1) lds=163840", '.amdgcn_target "amdgcn-amd-amdhsa--gfx950"', ".text", khead(NAME)]
    rep = []
    out.append(fmt(pad(L, rep)))
    if verbose:
        print(len(L), "instr; nops:", sum(k for k, _ in rep))
        for k, s in rep: print("   ", k, s)
    out.append('.section .rodata,"a"')
    out.append(kdesc(NAME, 256, 96))
    return "\n".join(out) + "\n"

if __name__ == "__main__":
    import json
    opt = json.loads(sys.argv[2]) if len(sys.argv) > 2 else {}
    open(sys.argv[1], "w").write(build(opt, verbose=True))
```

```python
from fcommon import *

RET, ACC = 128, 64
QF = [8, 16, 24]
QO, QX = 32, 48
XF = 64
GA, GC, GI, QP = 128, 136, 140, 144

def lit(x): return f"0x{x & 0xffffffff:x}"

def w_addr(P, dst, half):
    P(f"v_lshrrev_b32 v{dst}, 5, v0")
    P("v_bfe_u32 v11, v0, 2, 2")
    P(f"v_lshl_add_u32 v{dst}, v{dst}, 3, v11")
    P(f"v_lshlrev_b32 v{dst}, 7, v{dst}")
    P("v_bfe_u32 v11, v0, 3, 1")
    P(f"v_xor_b32 v11, {half}, v11")
    P(f"v_lshl_add_u32 v{dst}, v11, 6, v{dst}")
    P("v_bfe_u32 v11, v0, 4, 1")
    P(f"v_lshl_add_u32 v{dst}, v11, 5, v{dst}")
    P("v_and_b32 v11, 3, v0")
    P(f"v_lshl_add_u32 v{dst}, v11, 3, v{dst}")

def x_addr(P, dst, tmp):
    P(f"v_and_b32 v{tmp}, 31, v0")
    P(f"v_lshrrev_b32 v{dst}, 5, v0")
    P(f"v_bfe_u32 v{tmp+1}, v0, 1, 3")
    P(f"v_xor_b32 v{dst}, v{dst}, v{tmp+1}")
    P(f"v_lshlrev_b32 v{dst}, 4, v{dst}")
    P(f"v_lshl_add_u32 v{dst}, v{tmp}, 7, v{dst}")
    P(f"s_lshl_b32 s3, {S_WL}, 12")
    P(f"v_add_u32 v{dst}, s3, v{dst}")
    for ks in range(1, 4): P(f"v_xor_b32 v{dst+ks}, {ks << 5}, v{dst}")

def g1_ids(P):
    P(f"s_lshr_b32 s54, {S_J}, 1")
    P(f"s_lshl_b32 s55, {S_XCD}, 1"); P(f"s_and_b32 s3, {S_J}, 1"); P("s_add_u32 s55, s55, s3")
    P("s_lshl_b32 s55, s55, 2"); P(f"s_add_u32 s55, s55, {S_WL}")

def qg(P, opt, role, vm, lg, hooks):
    barstep = opt.get("barC", 0) if role == "C" else opt.get("barL", 6)
    def reads(i):
        f = QF[i % 3]
        if i < 32:
            o = (i & 7) * 2048
            return [(f"ds_read_b64_tr_b16 {vr(f,2)}, v2 offset:{o}", f"F{i}a"), (f"ds_read_b64_tr_b16 {vr(f+2,2)}, v2 offset:{o+512}", f"F{i}a"),
                    (f"ds_read_b64_tr_b16 {vr(f+4,2)}, v3 offset:{o}", f"F{i}b"), (f"ds_read_b64_tr_b16 {vr(f+6,2)}, v3 offset:{o+512}", f"F{i}b")]
        k = i - 32
        o = (k >> 3) * 32768 + ((k >> 2) & 1) * 8192
        return [(f"ds_read_b128 {vr(f,4)}, v{4+(k&3)} offset:{o}", f"F{i}a"), (f"ds_read_b128 {vr(f+4,4)}, v{4+(k&3)} offset:{o+4096}", f"F{i}b")]
    for i in range(48):
        n = 16 + (i >> 3)
        if (i & 7) == barstep:
            if f"pre{n}" in hooks: hooks[f"pre{n}"]()
            P("s_barrier")
            if n < 21 and opt.get("tsq"): P(f"; TS {n+3}")
            if f"post{n}" in hooks: hooks[f"post{n}"]()
        if i + 2 < 32 and ((i + 2) & 7) == 0:
            P("v_add_u32 v2, 0x8000, v2"); P("v_add_u32 v3, 0x8000, v3")
        R = reads(i + 2) if i + 2 < 48 else []
        f = QF[i % 3]
        for half in range(2):
            lg.need(f"F{i}" + "ab"[half])
            if i < 32:
                a = (QO, QX)[half]
                P(f"{M32} {vr(a,16)}, {vr(f+4*half,4)}, {vr(RET+4*i,4)}, {vr(a,16) if i else 0}")
            else:
                k = i - 32
                if half == 0: vm.need(f"X{k}")
                a = GA + 4 * half
                c = vr(a, 4) if k else (vr(GI, 4) if role == "C" else "0")
                P(f"{M16} {vr(a,4)}, {vr(XF+4*k,4)}, {vr(f+4*half,4)}, {c}")
            h = len(R) // 2
            for r in R[half * h:(half + 1) * h]: lg.issue(*r)
        if i in hooks: hooks[i]()

def g1_addr(P, role):
    P("v_and_b32 v5, 15, v0")
    P("v_lshrrev_b32 v4, 4, v0")
    P("v_xor_b32 v4, v4, v5")
    P("v_lshlrev_b32 v4, 4, v4")
    P("v_lshl_add_u32 v4, v5, 8, v4")
    if role == "L": P("v_add_u32 v4, 0x4000, v4")
    for k in range(1, 4): P(f"v_xor_b32 v{4+k}, {k<<6}, v4")

def x_loads(P, vm, role, ks):
    for k in ks:
        if k % 4 == 0:
            P("s_lshl_b32 s56, s55, 14"); P(f"s_add_u32 s56, s56, {WS_XE + (MB if role == 'L' else 0) + 1024*k}")
        vm.issue(f"buffer_load_dwordx4 {vr(XF+4*k,4)}, v1, {RWS}, s56 offen offset:{1024*(k%4)} sc1", f"X{k}")

def q_xchg(P, lg):
    def wr():
        P(f"s_lshl_b32 s3, {S_W}, 12"); P(f"s_add_u32 s3, s3, {U[4]}")
        P("v_add_u32 v2, s3, v1")
        P("v_xor_b32 v3, 0x4000, v2")
        for g in range(4): lg.issue(f"ds_write_b128 v2, {vr(QX+4*g,4)} offset:{1024*g}", "QW")
    def rd():
        for g in range(4): lg.issue(f"ds_read_b128 {vr(QP+4*g,4)}, v3 offset:{1024*g}", "QP")
    return wr, rd

def phase1_C(P, opt):
    XO, XT, WA = 2, 6, 10
    SET = [dict(XO=32, XT=36, WK=40, WV=44), dict(XO=48, XT=52, WK=56, WV=60)]
    vm = VM(P); lg = LG(P)
    x_addr(P, XO, 10)
    for k in range(4): P(f"v_xor_b32 v{XT+k}, 0x1000, v{XO+k}")
    P(f"s_and_b32 s57, {S_W}, 1")
    w_addr(P, WA, "s57")
    P(f"v_add_u32 v{WA}, 0x4000, v{WA}")
    P("v_lshlrev_b32 v1, 4, v0")
    g1_ids(P)
    P("v_and_b32 v11, 15, v0"); P("v_lshlrev_b32 v11, 3, v11"); P("s_lshl_b32 s3, s55, 7"); P(f"s_add_u32 s3, s3, {FL1}"); P("v_add_u32 v11, s3, v11")
    P("v_mov_b32 v16, 0")
    P("s_waitcnt lgkmcnt(0)")
    srd(P, 36, P_WS, WS_SIZE); srd(P, 48, P_DBG, 256)
    P(f"s_or_b32 s3, s2, {S_W}"); P("s_cmp_lg_u32 s3, 0"); P("s_cbranch_scc1 C_NN")
    P("s_memrealtime s[58:59]"); P("s_waitcnt lgkmcnt(0)"); P("s_or_b32 s58, s58, 1")
    P("v_mov_b32 v12, s58"); P("v_mov_b32 v13, s59")
    P("buffer_store_dwordx2 v[12:13], v16, s[48:51], 0 offen sc1")
    P.label("C_NN")
    P("s_setprio 2")
    P("; TS 0")
    P("s_barrier")
    P("; TS 1")
    def xo(s, ks): return RET + 4 * (4 * (s - 8) + ks) if s >= 8 else SET[ks & 1]["XO"]
    def reads(s, ks):
        t = SET[ks & 1]; g = f"{s}_{ks}"
        return [(f"ds_read_b128 {vr(xo(s,ks),4)}, v{XO+ks}", "XO" + g),
                (f"ds_read_b64_tr_b16 {vr(t['WK'],2)}, v{WA} offset:{ks*2048}", "WK" + g),
                (f"ds_read_b64_tr_b16 {vr(t['WK']+2,2)}, v{WA} offset:{ks*2048+512}", "WK" + g),
                (f"ds_read_b128 {vr(t['XT'],4)}, v{XT+ks}", "XT" + g),
                (f"ds_read_b64_tr_b16 {vr(t['WV'],2)}, v{WA} offset:{8192+ks*2048}", "WV" + g),
                (f"ds_read_b64_tr_b16 {vr(t['WV']+2,2)}, v{WA} offset:{8192+ks*2048+512}", "WV" + g)]
    for r in reads(0, 0): lg.issue(*r)
    NLOAD = "buffer_load_dwordx2 v[12:13], v16, s[48:51], 0 offen sc1"
    FLOAD = f"buffer_load_dwordx2 v[14:15], v11, {RWS}, 0 offen sc1"
    for s in range(16):
        for ks in range(4):
            t = SET[ks & 1]; g = f"{s}_{ks}"
            last = ks == 3
            R = reads(s, ks + 1) if not last else (reads(s + 1, 0) if s < 15 else [])
            d = lit(32768 if s % 5 != 4 else -131072)
            for i in range(4):
                x, xt = (xo(s, ks), "XO") if i % 2 == 0 else (t["XT"], "XT")
                w = "WK" if i < 2 else "WV"
                lg.need(xt + g, w + g)
                A, B = (t[w], x) if i < 2 else (x, t[w])
                a = ACC + 16 * i
                P(f"{M32} {vr(a,16)}, {vr(A,4)}, {vr(B,4)}, {vr(a,16) if (s or ks) else 0}")
                if last and s < 15:
                    if i == 0:
                        for r in (XO, WA, XT): P(f"v_add_u32 v{r}, {d}, v{r}")
                    if i == 2:
                        for k in range(1, 4): P(f"v_add_u32 v{XO+k}, {d}, v{XO+k}"); P(f"v_add_u32 v{XT+k}, {d}, v{XT+k}")
                if i < 2:
                    for r in R[3 * i:3 * i + 3]: lg.issue(*r)
                if ks == 1 and i == 3:
                    P("s_barrier")
                    if s in (0, 4, 8, 12): P(f"; TS {2 + s // 4}")
                if s == 12 and ks == 2 and i == 2:
                    vm.issue(NLOAD, "N"); vm.issue(FLOAD, "F")
                if s == 15 and ks == 0 and i == 2:
                    vm.need("F")
                    spin(P, NLOAD, nonce_ok(P, 12))
                    spin(P, FLOAD, flags_ok(P, 14))
                if s == 15 and ks == 3 and i == 0:
                    P(f"s_lshl_b32 s3, s57, 6"); P(f"v_xor_b32 v2, s3, v{WA}"); P(f"v_add_u32 v2, {U[1]}, v2"); P("v_xor_b32 v3, 64, v2")
    P("; TS 6")
    for i in range(2):
        f = QF[i]; o = i * 2048
        lg.issue(f"ds_read_b64_tr_b16 {vr(f,2)}, v2 offset:{o}", f"F{i}a"); lg.issue(f"ds_read_b64_tr_b16 {vr(f+2,2)}, v2 offset:{o+512}", f"F{i}a")
        lg.issue(f"ds_read_b64_tr_b16 {vr(f+4,2)}, v3 offset:{o}", f"F{i}b"); lg.issue(f"ds_read_b64_tr_b16 {vr(f+6,2)}, v3 offset:{o+512}", f"F{i}b")
    P(f"s_lshl_b32 s58, {S_PRB}, 2"); P(f"s_add_u32 s58, s58, {S_W}"); P("s_lshl_b32 s58, s58, 12")
    P("s_lshl_b32 s59, s52, 1"); P("s_add_u32 s59, s59, s57")
    P("s_lshl_b32 s60, s53, 1"); P("s_add_u32 s60, s60, s57")
    P("s_lshl_b32 s61, s59, 18"); P("s_add_u32 s61, s61, s58"); P("s_xor_b32 s62, s61, 0x1000")
    P("s_lshl_b32 s63, s60, 18"); P("s_add_u32 s63, s63, s58"); P("s_xor_b32 s64, s63, 0x1000")
    P("v_and_b32 v4, 0x33, v0")
    P("v_bfe_u32 v5, v0, 2, 1"); P("v_lshl_or_b32 v4, v5, 3, v4")
    P("v_bfe_u32 v5, v0, 3, 1"); P("v_lshl_or_b32 v4, v5, 2, v4")
    P("v_lshlrev_b32 v4, 4, v4")
    for i in range(4):
        a = ACC + 16 * i
        for r in range(8): P(f"v_cvt_pk_bf16_f32 v{a+r}, v{a+2*r}, v{a+2*r+1}")
        va, off = (4, 0) if i < 2 else (1, 2048)
        vm.issue(f"buffer_store_dwordx4 {vr(a,4)}, v{va}, {RWS}, s{61+i} offen offset:{off} sc1", "KV")
        vm.issue(f"buffer_store_dwordx4 {vr(a+4,4)}, v{va}, {RWS}, s{61+i} offen offset:{off+1024} sc1", "KV")
    P("s_setprio 0")
    P("; TS 7")
    wr, rd = q_xchg(P, lg)
    def x512():
        P("v_lshrrev_b32 v4, 4, v0"); P("v_lshlrev_b32 v4, 4, v4"); P("s_lshl_b32 s3, s55, 6"); P(f"s_add_u32 s3, s3, {SM_X512}")
        vm.issue(f"buffer_load_dwordx4 {vr(GC,4)}, v4, {RWS}, s3 offen sc1", "X512")
    def ginit():
        g1_addr(P, "C")
        vm.need("X512")
        P(f"v_lshlrev_b32 v{QP}, 31, v0")
        for i in range(4): P(f"v_xor_b32 v{GI+i}, v{QP}, v{GC+i}")
    def kvflag():
        vm.need("KV")
        P("; TS 8")
        P("s_add_u32 s60, s60, 32"); P("s_lshl_b32 s59, s59, 8"); P("s_lshl_b32 s60, s60, 8")
        P(f"s_lshl_b32 s3, {S_PRB}, 1"); P(f"s_lshr_b32 s58, {S_W}, 1"); P("s_add_u32 s3, s3, s58"); P("s_lshl_b32 s3, s3, 3"); P(f"s_add_u32 s3, s3, {FL2}")
        P(f"v_mov_b32 v{QP}, s59"); P(f"v_mov_b32 v{QP+1}, s60"); P("v_cmp_eq_u32 vcc, 0, v0"); P(f"v_cndmask_b32 v{QP}, v{QP+1}, v{QP}, vcc")
        P(f"v_mov_b32 v{QP+2}, s32"); P(f"v_mov_b32 v{QP+3}, s33")
        vm.issue(f"buffer_store_dwordx2 {vr(QP+2,2)}, v{QP}, {RWS}, s3 offen sc1", "FK")
    H = {}
    for n in range(4): H[1 + 2 * n] = (lambda n=n: x_loads(P, vm, "C", range(4 * n, 4 * n + 4)))
    H[10] = x512
    H[opt.get("kvflag", 27)] = kvflag
    H[29] = ginit
    H["post20"] = wr
    H["pre21"] = lambda: lg.need("QW")
    H["post21"] = rd
    qg(P, opt, "C", vm, lg, H)
    P("s_cmp_lg_u32 s54, 0"); P("s_cbranch_scc1 C_NOC")
    for i in range(4): P(f"v_mov_b32 v{8+i}, 0xbf803f80")
    for k in range(16): P(f"{M16} {vr(GC,4)}, {vr(XF+4*k,4)}, v[8:11], {vr(GC,4)}")
    P("v_lshrrev_b32 v4, 4, v0"); P("v_lshlrev_b32 v4, 3, v4"); P("s_lshl_b32 s3, s55, 5"); P(f"s_add_u32 s3, s3, {SM_C}")
    P(f"v_cvt_pk_bf16_f32 v{GC}, v{GC}, v{GC+1}"); P(f"v_cvt_pk_bf16_f32 v{GC+1}, v{GC+2}, v{GC+3}")
    P(f"buffer_store_dwordx2 {vr(GC,2)}, v4, {RWS}, s3 offen sc1")
    P.label("C_NOC")
    lg.drain()
    P("s_branch F_ATT")

def phase1_L(P, opt):
    vm = VM(P); lg = LG(P)
    DX, DW, XA = 2, 6, 8
    P("v_lshrrev_b32 v1, 3, v0")
    P("v_and_b32 v6, 7, v0")
    P("v_lshrrev_b32 v7, 4, v0")
    P("v_xor_b32 v8, v6, v7")
    P("v_lshlrev_b32 v8, 4, v8")
    P("v_lshl_add_u32 v8, v1, 11, v8")
    P(f"s_lshl_b32 s56, {S_RB}, 18"); P(f"s_lshl_b32 s57, {S_WL}, 16"); P("s_add_u32 s56, s56, s57")
    P("v_add_u32 v2, s56, v8")
    P("v_xor_b32 v3, 64, v2")
    P(f"v_add_u32 v3, {16384-1024}, v3")
    P(f"v_add_u32 v4, {32768-2048}, v2")
    P(f"v_add_u32 v5, {32768-2048}, v3")
    P("v_and_b32 v7, 1, v7")
    P("v_lshlrev_b32 v7, 2, v7")
    P("v_xor_b32 v6, v6, v7")
    P("v_lshlrev_b32 v6, 4, v6")
    P(f"s_lshl_b32 s56, {S_WL}, 4")
    P("v_add_u32 v1, s56, v1")
    P("v_mul_u32_u24 v1, 0x1800, v1")
    P("v_add_u32 v6, v1, v6")
    P(f"v_add_u32 v7, {8*6144-1024}, v6")
    P("s_lshl_b32 s52, s52, 7"); P("s_add_u32 s52, s52, 2048")
    P("s_lshl_b32 s53, s53, 7"); P("s_add_u32 s53, s53, 4096")
    P(f"s_lshl_b32 s58, {S_WL}, 12")
    P(f"s_lshl_b32 s59, {S_WL}, 11")
    P(f"s_lshl_b32 s60, {S_CB}, 7")
    P("s_waitcnt lgkmcnt(0)")
    srd(P, 40, P_BX, 4 * MB); srd(P, 44, P_WQKV, 6 * MB)
    def D(n):
        u = U[n % 5]; t = f"D{n}"
        if n < 16:
            P(f"s_add_u32 m0, s58, {u}"); P(f"s_movk_i32 s3, {n*128}")
            for i in range(4): vm.issue(f"buffer_load_dwordx4 v{DX+i}, s[40:43], s3 offen offset:{1024*i} lds", t)
            subs = [(16384, "s52", n), (24576, "s53", n)]
        elif n < 20:
            q = n - 16
            subs = [(8192 * b, "s60", (b >> 1) * 8 + 2 * q + (b & 1)) for b in range(4)]
        else:
            P(f"s_lshl_b32 s3, {S_WL}, 13"); P(f"s_add_u32 m0, s3, {u}"); P(f"s_movk_i32 s3, {(n-20)*512}")
            for i in range(4): vm.issue(f"buffer_load_dwordx4 v{DA+i}, s[40:43], s3 offen offset:{1024*i} lds", t)
            P("s_add_u32 m0, m0, 4096"); P(f"s_mov_b32 s3, {(n-20)*512+32768}")
            for i in range(4): vm.issue(f"buffer_load_dwordx4 v{DA+i}, s[40:43], s3 offen offset:{1024*i} lds", t)
            subs = []
        for lo, sc, st in subs:
            P(f"s_add_u32 m0, s59, {u+lo}"); P(f"s_add_u32 s3, {sc}, {st*393216}")
            vm.issue(f"buffer_load_dwordx4 v{DW}, s[44:47], s3 offen lds", t)
            vm.issue(f"buffer_load_dwordx4 v{DW+1}, s[44:47], s3 offen offset:1024 lds", t)
    D(0); D(1)
    srd(P, 36, P_WS, WS_SIZE); srd(P, 48, P_AX, 4 * MB)
    F1, F2, R1, R2, E1, E2, GX, GW, NV = 32, 36, 40, 44, 48, 49, 52, 60, 50
    P(f"s_lshl_b32 s61, s2, 2"); P(f"s_add_u32 s61, s61, {S_WL}")
    P("s_lshr_b32 s3, s61, 4"); P("s_lshl_b32 s3, s3, 15")
    P("v_and_b32 v12, 15, v0"); P("v_lshlrev_b32 v12, 11, v12"); P("v_add_u32 v12, s3, v12")
    P(f"v_sub_u32 v13, {4*MB}, v12")
    P("s_and_b32 s3, s61, 15"); P("s_lshl_b32 s3, s3, 6")
    P("v_and_b32 v14, 48, v0"); P("v_add_u32 v14, s3, v14")
    P("v_sub_u32 v15, 2032, v14")
    P("v_add_u32 v16, 16, v15")
    P("v_cmp_eq_u32 vcc, 0, v14"); P(f"v_mov_b32 v17, {OOB}"); P("v_cndmask_b32 v16, v16, v17, vcc")
    P("v_add_u32 v18, v12, v14"); P("v_add_u32 v19, v13, v14"); P("v_add_u32 v20, v12, v15"); P("v_add_u32 v21, v13, v15")
    P("v_add_u32 v22, v12, v16"); P("v_add_u32 v23, v13, v16")
    for r, a in ((F1, 18), (F2, 19), (R1, 20), (R2, 21)): vm.issue(f"buffer_load_dwordx4 {vr(r,4)}, v{a}, s[48:51], 0 offen", "FO")
    vm.issue(f"buffer_load_ushort v{E1}, v22, s[48:51], 0 offen", "FO"); vm.issue(f"buffer_load_ushort v{E2}, v23, s[48:51], 0 offen", "FO")
    P("v_lshlrev_b32 v18, 5, v0"); P(f"s_mov_b32 s3, {2*MB}")
    vm.issue(f"buffer_load_dwordx4 {vr(GX,4)}, v18, s[48:51], s3 offen", "G"); vm.issue(f"buffer_load_dwordx4 {vr(GX+4,4)}, v18, s[48:51], s3 offen offset:16", "G")
    srd(P, 48, P_WDR, 513 * 2048)
    P("s_lshl_b32 s3, s61, 11"); P("v_add_u32 v19, s3, v18")
    vm.issue(f"buffer_load_dwordx4 {vr(GW,4)}, v19, s[48:51], 0 offen", "G"); vm.issue(f"buffer_load_dwordx4 {vr(GW+4,4)}, v19, s[48:51], 0 offen offset:16", "G")
    x_addr(P, XA, 18)
    P("v_lshlrev_b32 v1, 4, v0")
    g1_ids(P)
    srd(P, 48, P_DBG, 256)
    P("v_mov_b32 v24, 0")
    NLOAD = f"buffer_load_dwordx2 {vr(NV,2)}, v24, s[48:51], 0 offen sc1"
    FLOAD = f"buffer_load_dwordx2 v[26:27], v25, {RWS}, 0 offen sc1"
    def unp(dst, src, j):
        if j & 1: P(f"v_and_b32 v{dst}, 0xffff0000, v{src + (j >> 1)}")
        else:     P(f"v_lshlrev_b32 v{dst}, 16, v{src + (j >> 1)}")
    EE, OO = 72, 80
    def fold_a(js):
        vm.need("FO")
        for j in js:
            unp(68, F1, j); unp(69, F2, j)
            if j == 0: P(f"v_lshlrev_b32 v70, 16, v{E1}"); P(f"v_lshlrev_b32 v71, 16, v{E2}")
            else: unp(70, R1, 8 - j); unp(71, R2, 8 - j)
            P("v_add_f32 v68, v68, v71"); P("v_add_f32 v69, v69, v70")
            P(f"v_add_f32 v{EE+j}, v68, v69"); P(f"v_sub_f32 v{OO+j}, v68, v69")
    def fold_b():
        unp(70, R1, 0); unp(71, R2, 0); P("v_add_f32 v70, v70, v71")
        for r in range(4): P(f"v_cvt_pk_bf16_f32 v{88+r}, v{EE+2*r}, v{EE+2*r+1}")
        for r in range(4): P(f"v_cvt_pk_bf16_f32 v{92+r}, v{OO+2*r}, v{OO+2*r+1}")
        P("s_lshl_b32 s56, s61, 10"); P(f"s_add_u32 s57, s56, {WS_XE+MB}"); P(f"s_add_u32 s56, s56, {WS_XE}")
        vm.issue(f"buffer_store_dwordx4 v[88:91], v1, {RWS}, s56 offen sc1", "FS")
        vm.issue(f"buffer_store_dwordx4 v[92:95], v1, {RWS}, s57 offen sc1", "FS")
        P("v_lshrrev_b32 v12, 9, v12"); P(f"v_add_u32 v12, {SM_X512}, v12")
        P("v_cmp_eq_u32 vcc, 0x3f0, v14"); P("v_cndmask_b32 v12, v17, v12, vcc")
        vm.issue(f"buffer_store_dword v70, v12, {RWS}, 0 offen sc1", "FS")
    def gjob():
        vm.need("G")
        P("v_mov_b32 v68, 0")
        for r in range(8): P(f"v_dot2_f32_bf16 v68, v{GX+r}, v{GW+r}, v68")
        dpp_sum(P, 68)
        P("s_lshl_b32 s3, s61, 2"); P(f"s_add_u32 s3, s3, {SM_G}"); P("s_cmp_le_u32 s61, 512"); P(f"s_cselect_b32 s3, s3, {OOB}")
        P("v_mov_b32 v69, s3"); P("v_cmp_eq_u32 vcc, 63, v0"); P("v_cndmask_b32 v69, v17, v69, vcc")
        vm.issue(f"buffer_store_dword v68, v69, {RWS}, 0 offen sc1", "FS")
        vm.issue(NLOAD, "N")
    def f1flag():
        vm.need("N")
        spin(P, NLOAD, nonce_ok(P, NV))
        P("s_lshl_b32 s3, s61, 3"); P(f"s_add_u32 s3, s3, {FL1}")
        vm.issue(f"buffer_store_dwordx2 {vr(NV,2)}, v24, {RWS}, s3 offen sc1", "F1")
    def f1poll():
        P("v_and_b32 v25, 15, v0"); P("v_lshlrev_b32 v25, 3, v25"); P("s_lshl_b32 s3, s55, 7"); P(f"s_add_u32 s3, s3, {FL1}"); P("v_add_u32 v25, s3, v25")
        vm.issue(FLOAD, "F")
    def f1check():
        vm.need("F")
        spin(P, FLOAD, flags_ok(P, 26))
    DA = 28
    def wd_setup():
        P(f"s_cmp_lt_u32 {S_WL}, 2")
        P(f"s_cselect_b32 s40, s{P_WDR}, s{P_WDI}"); P(f"s_cselect_b32 s41, s{P_WDR+1}, s{P_WDI+1}"); P(f"s_mov_b32 s42, {2*MB}")
        P("s_lshl_b32 s56, s54, 16"); P(f"s_and_b32 s3, {S_WL}, 1"); P("s_lshl_b32 s3, s3, 8"); P("s_add_u32 s56, s56, s3")
        P("v_lshrrev_b32 v2, 4, v0"); P("v_and_b32 v3, 15, v0"); P("v_xor_b32 v3, v3, v2"); P("v_lshlrev_b32 v3, 4, v3")
        P("v_lshl_add_u32 v3, v2, 11, v3"); P(f"v_add_u32 v{DA}, s56, v3")
        for n in range(1, 4):
            P(f"v_xor_b32 v{DA+n}, {n<<6}, v{DA}"); P(f"v_add_u32 v{DA+n}, {(4*n<<11) - 1024*n}, v{DA+n}")
    def ret(s):
        for ks in range(4): lg.issue(f"ds_read_b128 {vr(RET+16*s+4*ks,4)}, v{XA+ks}", "R")
        d = lit(32768 if s % 5 != 4 else -131072)
        for ks in range(4): P(f"v_add_u32 v{XA+ks}, {d}, v{XA+ks}")
    jobs = {1: lambda: fold_a(range(0, 5)), 2: lambda: (fold_a(range(5, 8)), fold_b()), 3: gjob, 7: f1flag, 12: wd_setup, 14: f1check}
    pre = {11: f1poll}
    vm.need("D0")
    P("; TS 0")
    P("s_barrier")
    P("; TS 1")
    ret(0)
    D(2); D(3)
    for n in range(16):
        vm.need(f"D{n+1}")
        lg.drain()
        P("s_barrier")
        if n in (0, 4, 8, 12): P(f"; TS {2 + n // 4}")
        if n < 7: ret(n + 1)
        if n in pre: pre[n]()
        D(n + 4)
        if n in jobs: jobs[n]()
    P("; TS 6")
    DA2 = 144
    w_addr(P, 2, "1"); P(f"v_add_u32 v2, {U[1]}, v2"); P("v_xor_b32 v3, 64, v2")
    for n in range(4): P(f"v_mov_b32 v{4+n}, v{DA+n}")
    DA = 4
    for i in range(2):
        f = QF[i]; o = i * 2048
        lg.issue(f"ds_read_b64_tr_b16 {vr(f,2)}, v2 offset:{o}", f"F{i}a"); lg.issue(f"ds_read_b64_tr_b16 {vr(f+2,2)}, v2 offset:{o+512}", f"F{i}a")
        lg.issue(f"ds_read_b64_tr_b16 {vr(f+4,2)}, v3 offset:{o}", f"F{i}b"); lg.issue(f"ds_read_b64_tr_b16 {vr(f+6,2)}, v3 offset:{o+512}", f"F{i}b")
    wr, rd = q_xchg(P, lg)
    H = {}
    for n in range(16, 21): H[f"pre{n}"] = (lambda n=n: vm.need(f"D{n+1}"))
    H["post16"] = lambda: D(20)
    H["post17"] = lambda: D(21)
    for n in range(4): H[16 + 2 * n] = (lambda n=n: x_loads(P, vm, "L", range(4 * n, 4 * n + 4)))
    H[28] = lambda: g1_addr(P, "L")
    H["post20"] = wr
    H["pre21"] = lambda: lg.need("QW")
    H["post21"] = rd
    qg(P, opt, "L", vm, lg, H)
    lg.drain()

ONES, LS, Q, K, V, C, O, SA, SB = 8, 12, 16, 24, 32, 40, 56, 72, 88
FA, FV = 104, 106
WD = 108
TA_, TV = 112, 114

def g2_ids(P):
    P(f"s_lshr_b32 s54, {S_W}, 2"); P(f"s_bfe_u32 s55, {S_W}, 0x10001"); P(f"s_and_b32 s56, {S_W}, 1")
    P(f"s_lshl_b32 s57, {S_XCD}, 2"); P(f"s_and_b32 s3, {S_J}, 3"); P("s_add_u32 s57, s57, s3")
    P(f"s_lshr_b32 s58, {S_J}, 2"); P("s_lshl_b32 s58, s58, 1"); P("s_add_u32 s58, s58, s55")
    P("s_cmp_eq_u32 s54, 0")
    P(f"s_cselect_b32 s44, s{P_WSR}, s{P_WSI}"); P(f"s_cselect_b32 s45, s{P_WSR+1}, s{P_WSI+1}"); P(f"s_mov_b32 s46, {8*MB}"); P("s_mov_b32 s47, 0x00020000")
    P("s_lshl_b32 s59, s57, 17"); P("s_lshl_b32 s3, s55, 16"); P("s_add_u32 s59, s59, s3"); P("s_lshl_b32 s3, s56, 10"); P("s_add_u32 s59, s59, s3")
    P("v_lshrrev_b32 v6, 4, v0"); P("v_and_b32 v7, 15, v0"); P("v_xor_b32 v7, v7, v6"); P("v_lshlrev_b32 v7, 4, v7")
    P("v_lshl_add_u32 v7, v6, 12, v7"); P(f"v_add_u32 v{WD}, s59, v7")
    for n in range(1, 4):
        P(f"v_xor_b32 v{WD+n}, {n<<6}, v{WD}"); P(f"v_add_u32 v{WD+n}, {(4*n<<12) - 1024*n}, v{WD+n}")
    P("s_lshl_b32 s59, s54, 14"); P("s_lshl_b32 s3, s56, 13"); P("s_add_u32 s59, s59, s3"); P("s_lshl_b32 s3, s55, 12"); P("s_add_u32 s59, s59, s3")
    P("s_lshl_b32 s3, s54, 4"); P("s_add_u32 s3, s3, s58"); P("s_lshl_b32 s3, s3, 1"); P("s_add_u32 s3, s3, s56"); P("s_lshl_b32 s60, s3, 15"); P("s_lshl_b32 s3, s3, 8"); P(f"s_add_u32 s3, s3, {FL3}")
    P(f"s_add_u32 s60, s60, {WS_TE}")
    P(f"v_and_b32 v{TA_}, 31, v0"); P(f"v_lshlrev_b32 v{TA_}, 3, v{TA_}"); P(f"v_add_u32 v{TA_}, s3, v{TA_}")

WSU = [0, 1, 3, 4]
WOU = [2, 0, 1, 3]
def ws_dma(P, vm, r):
    P(f"s_add_u32 m0, s59, {U[WSU[r]]}"); P(f"s_movk_i32 s3, {r*256}")
    for n in range(4): vm.issue(f"buffer_load_dwordx4 v{WD+n}, s[44:47], s3 offen offset:{1024*n} lds", f"WS{r}")

def attention(P, opt):
    vm = VM(P)
    P.label("F_ATT")
    P("; TS 9")
    P(f"s_lshr_b32 s61, {S_W}, 2")
    P(f"s_and_b32 s3, {S_W}, 1"); P("s_lshl_b32 s3, s3, 4"); P(f"s_add_u32 s3, s3, {S_CB}"); P("s_lshl_b32 s3, s3, 1"); P("s_add_u32 s3, s3, s61")
    P("s_lshl_b32 s3, s3, 8"); P(f"s_add_u32 s3, s3, {FL2}")
    P(f"v_and_b32 v{FA}, 31, v0"); P(f"v_lshlrev_b32 v{FA}, 3, v{FA}"); P(f"v_add_u32 v{FA}, s3, v{FA}")
    KLOAD = f"buffer_load_dwordx2 {vr(FV,2)}, v{FA}, {RWS}, 0 offen sc1"
    vm.issue(KLOAD, "KF")
    for i in range(4): P(f"v_cvt_pk_bf16_f32 v{GI+i}, v{GA+2*i}, v{GA+2*i+1}")
    P(f"v_permlane16_swap_b32 v{GI}, v{GI+2}"); P(f"v_permlane16_swap_b32 v{GI+1}, v{GI+3}")
    P("s_lshl_b32 s62, s61, 4"); P("s_add_u32 s62, s62, s54"); P("s_lshl_b32 s62, s62, 6"); P("s_add_u32 s62, s62, s55")
    P("s_lshl_b32 s3, s62, 10"); P(f"s_add_u32 s3, s3, {WS_TE}")
    vm.issue(f"buffer_store_dwordx4 {vr(GI,4)}, v1, {RWS}, s3 offen sc1", "TS")
    P("s_lshl_b32 s62, s62, 3"); P(f"s_add_u32 s62, s62, {FL3}")
    P(f"s_mov_b32 s3, {f32hex(math.log2(math.e) / math.sqrt(32.0))}")
    for i in range(16): P(f"v_add_f32 v{QO+i}, v{QO+i}, v{QP+i}")
    for i in range(16): P(f"v_mul_f32 v{QO+i}, s3, v{QO+i}")
    for i in range(8): P(f"v_cvt_pk_bf16_f32 v{Q+i}, v{QO+2*i}, v{QO+2*i+1}")
    P(f"s_lshl_b32 s63, {S_CB}, 1"); P("s_add_u32 s63, s63, s61")
    P(f"s_lshl_b32 s64, {S_RB}, 2"); P(f"s_add_u32 s64, s64, {S_WL}")
    if opt.get("qdump"):
        P("s_lshl_b32 s3, s63, 6"); P("s_add_u32 s3, s3, s64"); P("s_lshl_b32 s3, s3, 11"); P(f"s_add_u32 s3, s3, {WS_QD}")
        vm.issue(f"buffer_store_dwordx4 {vr(Q,4)}, v1, {RWS}, s3 offen"); vm.issue(f"buffer_store_dwordx4 {vr(Q+4,4)}, v1, {RWS}, s3 offen offset:1024")
    P("s_lshl_b32 s64, s64, 5"); P("s_add_u32 s64, s64, s63")
    P(f"s_lshl_b32 s3, {S_CB}, 19")
    srd(P, 40, P_WS, 512 * 1024, "s3")
    P("s_lshl_b32 s65, s61, 18")
    P(f"s_lshl_b32 s3, {S_WL}, 11"); P("s_add_u32 s3, s3, s65"); P("v_add_u32 v4, s3, v1")
    P(f"s_lshl_b32 s52, {S_W}, 11"); P(f"s_add_u32 s52, s52, {U[2]}")
    P("s_lshl_b32 s3, s61, 13"); P(f"s_add_u32 s3, s3, {U[2]}"); P("v_add_u32 v2, s3, v1"); P("v_add_u32 v3, 0x8000, v2")
    P("v_mov_b32 v5, 0xdddddddd")
    P("v_and_b32 v6, 7, v0"); P("v_mov_b32 v7, 0x3f803f80")
    P("v_cmp_eq_u32 vcc, 0, v6"); P(f"v_cndmask_b32 v{ONES}, 0, v7, vcc"); P(f"v_cndmask_b32 v{ONES+1}, 0, v7, vcc")
    P("v_cmp_eq_u32 vcc, 4, v6"); P(f"v_cndmask_b32 v{ONES+2}, 0, v7, vcc"); P(f"v_cndmask_b32 v{ONES+3}, 0, v7, vcc")
    for i in range(8, 16): P(f"v_mov_b32 v{SB+i}, 0")
    for i in range(16): P(f"v_mov_b32 v{O+i}, 0")
    for i in range(4): P(f"v_mov_b32 v{LS+i}, 0")
    g2_ids(P)
    vm.need("KF")
    def kv_ok(bits):
        def f():
            P(f"v_cmp_eq_u64 vcc, {NON}, {vr(FV,2)}")
            P("s_mov_b32 s53, vcc_lo")
            P(f"s_andn2_b32 s3, {bits}, s53")
            P("s_cmp_eq_u32 s3, 0")
        return f
    spin(P, KLOAD, kv_ok("31"))
    P("; TS 10")
    def dma(tag=None):
        P("s_mov_b32 m0, s52")
        P("s_add_u32 s52, s52, 0x4000")
        vm.issue("buffer_load_dwordx4 v4, s[40:43], 0 offen sc1 lds", tag)
        vm.issue("buffer_load_dwordx4 v4, s[40:43], 0 offen offset:1024 sc1 lds", tag)
        P("v_add_u32 v4, 0x2000, v4")
    for h in range(4): dma(f"H{h}")
    vm.need("H0")
    P(f"v_mov_b32 v6, s32"); P("v_mov_b32 v7, s33"); P("v_mov_b32 v24, 0")
    vm.issue(f"buffer_store_dwordx2 v[6:7], v24, {RWS}, s62 offen sc1", "F3")
    P("s_barrier")
    P("; TS 11")
    dma("H4")
    lg = LG(P)
    lg.issue(f"ds_read_b128 {vr(K,4)}, v2", "K0"); lg.issue(f"ds_read_b128 {vr(K+4,4)}, v2 offset:1024", "K1")
    vm.issue(KLOAD, "KF")
    ws_dma(P, vm, 0); ws_dma(P, vm, 1)
    P(f"s_mov_b32 s62, {f32hex(float(opt.get('margin', 88)))}")
    lg.need("K0"); P(f"{M32} {vr(SA,16)}, {vr(K,4)}, {vr(Q,4)}, 0")
    lg.need("K1"); P(f"{M32} {vr(SA,16)}, {vr(K+4,4)}, {vr(Q+4,4)}, {vr(SA,16)}")
    lg.issue(f"ds_read_b128 {vr(V+4,4)}, v2 offset:3072", "V1")
    lg.issue(f"ds_read_b128 {vr(K,4)}, v2 offset:4096", "K0")
    lg.issue(f"ds_read_b128 {vr(K+4,4)}, v2 offset:5120", "K1")
    lg.issue(f"ds_read_b128 {vr(V,4)}, v2 offset:2048", "V0")
    P(f"v_max3_f32 v6, v{SA}, v{SA+1}, v{SA+2}")
    for i in range(3, 15, 2): P(f"v_max3_f32 v6, v6, v{SA+i}, v{SA+i+1}")
    P(f"v_max_f32 v6, v6, v{SA+15}")
    P("v_mov_b32 v7, v6"); P("v_permlane32_swap_b32 v6, v7"); P("v_max_f32 v6, v6, v7")
    P("v_add_f32 v6, s62, v6")
    for i in range(16): P(f"v_sub_f32 v{C+i}, 0, v6")
    for i in range(16): P(f"v_sub_f32 v{SA+i}, v{SA+i}, v6")
    P("s_mov_b32 s61, 5")
    P("s_mov_b32 s63, 1")
    q0 = list(lg.q)
    order = opt.get("order", "ee P eee L ee M eee N ee p eee l e").replace(" ", "")
    P.label("AT_LOOP")
    ool = []
    for u in range(4):
        S, T = (SA, SB) if u % 2 == 0 else (SB, SA)
        def at(t, off):
            o = ((t >> 1) & 1) * 16384 + (t & 1) * 4096 + off
            return f"v{2 if t < 4 else 3} offset:{o}"
        e = 0
        for ch in order:
            if ch == "e":
                P(f"v_exp_f32 v{S+e}, v{S+e}"); e += 1
            elif ch == "P":
                lg.need("V1")
                P(f"v_smfmac_f32_32x32x32_bf16 {vr(O,16)}, {vr(V+4,4)}, {vr(T+8,8)}, v5")
                lg.issue(f"ds_read_b128 {vr(V+4,4)}, {at(u,3072)}", "V1")
            elif ch == "L":
                P(f"v_smfmac_f32_16x16x64_bf16 {vr(LS,4)}, {vr(ONES,4)}, {vr(T+8,8)}, v5")
                if u % 2 == 0:
                    P("s_cmp_gt_u32 s61, 31")
                    P(f"s_cbranch_scc1 AT_TAIL{u}")
                    P("s_cmp_lg_u32 s53, -1")
                    P(f"s_cbranch_scc1 AT_POLL{u}")
                    P.label(f"AT_BACK{u}")
                    P("s_waitcnt vmcnt(6)")
                    P("s_barrier")
                    P("s_mov_b32 m0, s52")
                    if u == 0:
                        P("s_add_u32 s52, s52, 0x4000"); P(f"s_cmp_ge_u32 s52, {U[4]+32768}"); P("s_cselect_b32 s3, 0x18000, 0"); P("s_sub_u32 s52, s52, s3")
                    else: P("s_add_u32 s52, s52, 0x4000")
                    P("buffer_load_dwordx4 v4, s[40:43], 0 offen sc1 lds")
                    P("buffer_load_dwordx4 v4, s[40:43], 0 offen offset:1024 sc1 lds")
                    P("v_add_u32 v4, 0x2000, v4")
                    P.label(f"AT_CONT{u}")
                    P("s_add_u32 s61, s61, 1")
            elif ch == "M":
                lg.need("K0")
                P(f"{M32} {vr(T,16)}, {vr(K,4)}, {vr(Q,4)}, {vr(C,16)}")
                lg.issue(f"ds_read_b128 {vr(K,4)}, {at(u+2,0)}", "K0")
            elif ch == "N":
                lg.need("K1")
                P(f"{M32} {vr(T,16)}, {vr(K+4,4)}, {vr(Q+4,4)}, {vr(T,16)}")
                lg.issue(f"ds_read_b128 {vr(K+4,4)}, {at(u+2,1024)}", "K1")
            elif ch == "p":
                lg.need("V0")
                P(f"v_smfmac_f32_32x32x32_bf16 {vr(O,16)}, {vr(V,4)}, {vr(S,8)}, v5")
                lg.issue(f"ds_read_b128 {vr(V,4)}, {at(u+1,2048)}", "V0")
                if u == 3:
                    P("s_cmp_eq_u32 s63, 2"); P("s_cselect_b32 s3, -2, 1"); P("s_lshl_b32 s3, s3, 15"); P("s_add_u32 s63, s63, 1"); P("s_cmp_eq_u32 s63, 3"); P("s_cselect_b32 s63, 0, s63")
                    P("v_mov_b32 v2, v3")
                    P("v_add_u32 v3, s3, v3")
            elif ch == "l":
                P(f"v_smfmac_f32_16x16x64_bf16 {vr(LS,4)}, {vr(ONES,4)}, {vr(S,8)}, v5")
        assert e == 16
    assert lg.q == q0, (lg.q, q0)
    P("s_cmp_lg_u32 s61, 37")
    P("s_cbranch_scc1 AT_LOOP")
    P("s_branch AT_DONE")
    for u in (0, 2):
        P.label(f"AT_TAIL{u}")
        P("s_waitcnt vmcnt(0)")
        P("s_barrier")
        P(f"s_branch AT_CONT{u}")
        P.label(f"AT_POLL{u}")
        P("s_lshl_b32 s62, 1, s61")
        spin(P, KLOAD, kv_ok("s62"))
        P(KLOAD)
        P(f"s_branch AT_BACK{u}")
    P.label("AT_DONE")
    lg.need("V1")
    P(f"v_smfmac_f32_32x32x32_bf16 {vr(O,16)}, {vr(V+4,4)}, {vr(SB+8,8)}, v5")
    P(f"v_smfmac_f32_16x16x64_bf16 {vr(LS,4)}, {vr(ONES,4)}, {vr(SB+8,8)}, v5")
    lg.drain()
    P("; TS 12")
    vm = VM(P)
    TLOAD = f"buffer_load_dwordx2 {vr(TV,2)}, v{TA_}, {RWS}, 0 offen sc1"
    vm.issue(TLOAD, "TF")
    P(f"v_add_f32 v6, |v{O}|, |v{O+1}|"); P(f"v_add_f32 v7, |v{O+2}|, |v{O+3}|")
    for i in range(4, 16, 2):
        P(f"v_add_f32 v6, v6, |v{O+i}|"); P(f"v_add_f32 v7, v7, |v{O+i+1}|")
    P("v_add_f32 v6, v6, v7")
    P(f"s_mov_b32 s3, {f32hex(2.0**-104)}"); P(f"s_mov_b32 s61, {f32hex(2.0**120)}")
    P("v_cmp_lt_f32 s[52:53], s3, v6"); P("v_cmp_gt_f32 s[62:63], s61, v6"); P(f"v_cmp_gt_f32 vcc, s61, v{LS}")
    P("s_and_b64 s[52:53], s[52:53], s[62:63]"); P("s_and_b64 s[52:53], s[52:53], vcc")
    if opt.get("force_slow"): P("s_mov_b64 s[52:53], 0")
    P("s_cmp_eq_u64 s[52:53], -1")
    P("s_cbranch_scc1 AT_FIN")
    P("v_mov_b32 v6, 0xff800000"); P("s_mov_b32 s3, s65"); P("s_add_u32 s61, s65, 0x40000")
    P.label("AT_MP")
    P(f"buffer_load_dwordx4 {vr(K,4)}, v1, s[40:43], s3 offen sc1"); P(f"buffer_load_dwordx4 {vr(K+4,4)}, v1, s[40:43], s3 offen offset:1024 sc1")
    P("s_waitcnt vmcnt(0)")
    P(f"{M32} {vr(SA,16)}, {vr(K,4)}, {vr(Q,4)}, 0"); P(f"{M32} {vr(SA,16)}, {vr(K+4,4)}, {vr(Q+4,4)}, {vr(SA,16)}")
    for i in range(8): P(f"v_max3_f32 v6, v6, v{SA+2*i}, v{SA+2*i+1}")
    P("s_add_u32 s3, s3, 4096"); P("s_cmp_lg_u32 s3, s61"); P("s_cbranch_scc1 AT_MP")
    P("v_mov_b32 v7, v6"); P("v_permlane32_swap_b32 v6, v7"); P("v_max_f32 v6, v6, v7")
    for i in range(16): P(f"v_sub_f32 v{C+i}, 0, v6")
    for i in range(16): P(f"v_mov_b32 v{O+i}, 0")
    for i in range(4): P(f"v_mov_b32 v{LS+i}, 0")
    P("s_mov_b32 s3, s65")
    P.label("AT_SL")
    for i, r in enumerate((K, K + 4, V, V + 4)): P(f"buffer_load_dwordx4 {vr(r,4)}, v1, s[40:43], s3 offen offset:{1024*i} sc1")
    P("s_waitcnt vmcnt(0)")
    P(f"{M32} {vr(SA,16)}, {vr(K,4)}, {vr(Q,4)}, {vr(C,16)}"); P(f"{M32} {vr(SA,16)}, {vr(K+4,4)}, {vr(Q+4,4)}, {vr(SA,16)}")
    for i in range(16): P(f"v_exp_f32 v{SA+i}, v{SA+i}")
    P(f"v_smfmac_f32_32x32x32_bf16 {vr(O,16)}, {vr(V,4)}, {vr(SA,8)}, v5"); P(f"v_smfmac_f32_16x16x64_bf16 {vr(LS,4)}, {vr(ONES,4)}, {vr(SA,8)}, v5")
    P(f"v_smfmac_f32_32x32x32_bf16 {vr(O,16)}, {vr(V+4,4)}, {vr(SA+8,8)}, v5"); P(f"v_smfmac_f32_16x16x64_bf16 {vr(LS,4)}, {vr(ONES,4)}, {vr(SA+8,8)}, v5")
    P("s_nop 15")
    P("s_add_u32 s3, s3, 4096"); P("s_cmp_lg_u32 s3, s61"); P("s_cbranch_scc1 AT_SL")
    P.label("AT_FIN")
    P(f"v_rcp_f32 v6, v{LS}")
    P("s_lshl_b32 s3, s64, 11"); P(f"s_add_u32 s3, s3, {WS_OF}")
    for i in range(16): P(f"v_mul_f32 v{O+i}, v6, v{O+i}")
    for i in range(8): P(f"v_cvt_pk_bf16_f32 v{SA+i}, v{O+2*i}, v{O+2*i+1}")
    vm.issue(f"buffer_store_dwordx4 {vr(SA,4)}, v1, {RWS}, s3 offen sc1", "OS")
    vm.issue(f"buffer_store_dwordx4 {vr(SA+4,4)}, v1, {RWS}, s3 offen offset:1024 sc1", "OS")
    P("s_lshl_b32 s64, s64, 3"); P(f"s_add_u32 s64, s64, {FL4}")
    return vm, TLOAD

def tail(P, opt, vm, TLOAD):
    T = 128
    AC, AF, PA, RW, DO = 16, 32, 44, 52, 56
    CJ = 64
    P("s_barrier")
    P("; TS 13")
    ws_dma(P, vm, 2); ws_dma(P, vm, 3)
    vm.need("TF")
    spin(P, TLOAD, flags_ok(P, TV))
    for i in range(32):
        if i % 4 == 0 and i: P("s_add_u32 s60, s60, 4096")
        vm.issue(f"buffer_load_dwordx4 {vr(T+4*i,4)}, v1, {RWS}, s60 offen offset:{1024*(i%4)} sc1", f"T{i}")
        if i == 7:
            P("s_or_b32 s3, s54, s56"); P("s_lshl_b32 s3, s3, 30"); P("s_lshl_b32 s61, s58, 7"); P("s_add_u32 s3, s3, s61"); P(f"s_add_u32 s3, s3, {SM_G}")
            P("v_and_b32 v2, 31, v0"); P("v_lshlrev_b32 v2, 2, v2"); P("v_add_u32 v2, s3, v2")
            vm.issue(f"buffer_load_dword v{RW}, v2, {RWS}, 0 offen sc1", "GE")
            vm.need("OS")
            P(f"v_mov_b32 v6, s32"); P("v_mov_b32 v7, s33"); P("v_mov_b32 v8, 0")
            vm.issue(f"buffer_store_dwordx2 v[6:7], v8, {RWS}, s64 offen sc1", "F4")
            P("; TS 14")
    P(f"s_and_b32 s61, {S_XCD}, 1"); P("s_lshl_b32 s61, s61, 3"); P(f"s_lshr_b32 s3, {S_J}, 3"); P("s_lshl_b32 s3, s3, 1"); P("s_add_u32 s61, s61, s3")
    P(f"s_bfe_u32 s3, {S_XCD}, 0x10001"); P("s_add_u32 s61, s61, s3")
    P(f"s_lshr_b32 s62, {S_XCD}, 2"); P("s_lshl_b32 s62, s62, 3"); P(f"s_and_b32 s3, {S_J}, 7"); P("s_add_u32 s62, s62, s3")
    srd(P, 40, P_WO, 2 * MB); srd(P, 48, P_OUT, 8 * MB)
    P("v_lshrrev_b32 v2, 3, v0"); P("v_and_b32 v3, 7, v0"); P("v_bfe_u32 v4, v0, 4, 1"); P("v_lshlrev_b32 v4, 2, v4"); P("v_xor_b32 v3, v3, v4")
    P("v_lshlrev_b32 v3, 4, v3"); P("v_lshl_add_u32 v3, v2, 11, v3")
    P("s_lshl_b32 s3, s54, 20"); P(f"s_lshl_b32 s63, {S_WL}, 16"); P("s_add_u32 s3, s3, s63"); P("s_lshl_b32 s63, s62, 7"); P("s_add_u32 s3, s3, s63")
    P(f"v_add_u32 v{DO}, s3, v3")
    for n in range(1, 4): P(f"v_add_u32 v{DO+n}, {n*(16384-1024)}, v{DO}")
    P(f"s_lshl_b32 s63, {S_W}, 12")
    def wo_dma(o):
        P(f"s_add_u32 m0, s63, {U[WOU[o]]}"); P(f"s_mov_b32 s3, {o*0x40000}")
        for n in range(4): vm.issue(f"buffer_load_dwordx4 v{DO+n}, s[40:43], s3 offen offset:{1024*n} lds", f"WO{o}")
    wo_dma(0)
    P(f"s_lshl_b32 s64, s2, 2"); P(f"s_add_u32 s64, s64, {S_W}")
    P("s_cmp_eq_u32 s64, 4"); P("s_movk_i32 s3, 1024"); P("s_cselect_b32 s3, s3, 0x10000")
    P(f"s_cmp_lt_u32 {S_W}, 4"); P("s_cselect_b32 s64, s64, s3")
    srd(P, 44, P_WSR, 8 * MB)
    P("s_lshl_b32 s3, s64, 12"); P("v_lshlrev_b32 v2, 5, v0"); P("v_add_u32 v3, s3, v2")
    vm.issue(f"buffer_load_dwordx4 {vr(CJ,4)}, v3, s[44:47], 0 offen", "CW"); vm.issue(f"buffer_load_dwordx4 {vr(CJ+4,4)}, v3, s[44:47], 0 offen offset:16", "CW")
    P(f"v_lshlrev_b32 v{TA_}, 3, v0"); P(f"v_add_u32 v{TA_}, {FL3}, v{TA_}")
    vm.issue(TLOAD, "CF")
    P("s_lshl_b32 s65, s61, 2"); P(f"s_add_u32 s65, s65, {S_WL}")
    P("s_lshl_b32 s3, s65, 1"); P("s_add_u32 s3, s3, s54"); P("s_lshl_b32 s60, s3, 15"); P(f"s_add_u32 s60, s60, {WS_OF}"); P("s_lshl_b32 s3, s3, 7"); P(f"s_add_u32 s3, s3, {FL4}")
    P(f"v_and_b32 v{FA}, 15, v0"); P(f"v_lshlrev_b32 v{FA}, 3, v{FA}"); P(f"v_add_u32 v{FA}, s3, v{FA}")
    OLOAD = f"buffer_load_dwordx2 {vr(FV,2)}, v{FA}, {RWS}, 0 offen sc1"
    P("s_lshl_b32 s52, s54, 1"); P("s_add_u32 s52, s52, s56")
    P("s_lshl_b32 s3, s52, 3"); P("v_xor_b32 v2, s3, v0")
    P("v_and_b32 v3, 31, v2"); P("v_lshrrev_b32 v4, 5, v2"); P("v_and_b32 v2, 15, v2"); P("v_xor_b32 v4, v4, v2"); P("v_lshlrev_b32 v4, 4, v4")
    P(f"v_lshl_add_u32 v{PA}, v3, 8, v4"); P("s_lshl_b32 s3, s52, 13"); P(f"v_add_u32 v{PA}, s3, v{PA}")
    for k in range(1, 8): P(f"v_xor_b32 v{PA+k}, {k<<5}, v{PA}")
    P("s_or_b32 s53, s57, s54")
    P("s_mov_b32 s59, 0xbf803f80")
    vm.need("GE")
    for i in range(16):
        if i & 1: P(f"v_sub_f32 v{AC+i}, 0, v{RW}")
        else:     P(f"v_mov_b32 v{AC+i}, v{RW}")
    P("v_cmp_gt_u32 vcc, 32, v0"); P(f"v_cndmask_b32 v{RW}, 0, v{RW}, vcc")
    lg = LG(P)
    def rd(i):
        r, k = i >> 3, i & 7
        lg.issue(f"ds_read_b128 {vr(AF+4*(i%3),4)}, v{PA+k} offset:{32768*(r&1)}", f"A{i}")
        if r == 1: P(f"v_add_u32 v{PA+k}, {U[3]}, v{PA+k}")
    rd(0); rd(1)
    for i in range(32):
        r, k = i >> 3, i & 7
        if k == 2 and r >= 1:
            P("s_barrier")
            wo_dma(r)
        if i + 2 < 32: rd(i + 2)
        lg.need(f"A{i}"); vm.need(f"T{i}")
        P(f"{M32} {vr(AC,16)}, {vr(AF+4*(i%3),4)}, {vr(T+4*i,4)}, {vr(AC,16)}")
        if k == 7:
            P("s_cmp_lg_u32 s53, 0"); P(f"s_cbranch_scc1 G2_NR{r}")
            for j in range(32): P(f"v_dot2_f32_bf16 v{RW}, v{T+32*r+j}, s59, v{RW}")
            P.label(f"G2_NR{r}")
    P("; TS 15")
    vm.issue(OLOAD, "OF")
    vm.need("CF")
    spin(P, TLOAD, flags_ok(P, TV))
    P("v_lshlrev_b32 v2, 5, v0"); P(f"s_mov_b32 s3, {SM_C}")
    vm.issue(f"buffer_load_dwordx4 {vr(CJ+8,4)}, v2, {RWS}, s3 offen sc1", "CC"); vm.issue(f"buffer_load_dwordx4 {vr(CJ+12,4)}, v2, {RWS}, s3 offen offset:16 sc1", "CC")
    P(f"v_mov_b32 v2, {SM_G+2048}")
    vm.issue(f"buffer_load_dword v{CJ+16}, v2, {RWS}, 0 offen sc1", "CC")
    P("s_barrier")
    for q in range(1, 4):
        P(f"s_xor_b32 s3, {S_W}, {(q & 1) | ((q >> 1) << 2)}"); P("s_mul_i32 s3, s3, 3072"); P(f"s_add_u32 s3, s3, {U[4] + (q-1)*1024}")
        P(f"v_add_u32 v{1+q}, s3, v1")
        lg.issue(f"ds_write_b128 v{1+q}, {vr(AC+4*q,4)}", "XW")
    P(f"s_lshl_b32 s3, {S_W}, 8"); P(f"s_add_u32 s3, s3, {U[4]+24576}"); P("v_lshlrev_b32 v5, 2, v0"); P("v_add_u32 v5, s3, v5")
    lg.issue(f"ds_write_b32 v5, v{RW}", "XW")
    P(f"s_mul_i32 s3, {S_W}, 3072"); P(f"s_add_u32 s3, s3, {U[4]}"); P("v_add_u32 v2, s3, v1")
    lg.drain()
    P("s_barrier")
    for q in range(3): lg.issue(f"ds_read_b128 {vr(AC+4+4*q,4)}, v2 offset:{1024*q}", "XR")
    vm.need("OF")
    spin(P, OLOAD, flags_ok(P, FV))
    P("; TS 16")
    for i in range(32):
        if i % 4 == 0 and i: P("s_add_u32 s60, s60, 4096")
        vm.issue(f"buffer_load_dwordx4 {vr(T+4*i,4)}, v1, {RWS}, s60 offen offset:{1024*(i%4)} sc1", f"O{i}")
    P("v_and_b32 v3, 31, v0"); P("s_lshl_b32 s3, s58, 5"); P("v_add_u32 v3, s3, v3")
    P("v_lshlrev_b32 v4, 1, v3"); P("v_sub_u32 v5, 2048, v4"); P(f"v_mov_b32 v6, {OOB}"); P("v_cmp_eq_u32 vcc, 0, v3"); P("v_cndmask_b32 v5, v5, v6, vcc")
    P("v_lshrrev_b32 v6, 5, v0"); P("v_lshlrev_b32 v6, 14, v6")
    P("s_lshl_b32 s3, s57, 17"); P("s_lshl_b32 s59, s52, 15"); P("s_add_u32 s3, s3, s59"); P("v_add_u32 v6, s3, v6")
    P(f"v_sub_u32 v7, {8*MB}, v6")
    P("v_add_u32 v8, v6, v4"); P("v_add_u32 v9, v7, v5"); P("v_add_u32 v10, v7, v4"); P("v_add_u32 v11, v6, v5")
    P("s_lshl_b32 s59, s54, 31")
    lg.need("XR")
    for r in range(4):
        P(f"v_add_f32 v{AC+r}, v{AC+r}, v{AC+4+r}")
        P(f"v_add_f32 v{AC+8+r}, v{AC+8+r}, v{AC+12+r}")
        P(f"v_sub_f32 v12, v{AC+r}, v{AC+8+r}")
        P(f"v_add_f32 v13, v{AC+r}, v{AC+8+r}")
        P("v_xor_b32 v12, s59, v12")
        P(f"v_cvt_pk_bf16_f32 v{AF+r}, v12, v13")
        if r:
            a = 84 + 4 * r
            P(f"v_add_u32 v{a}, {4096*r}, v8"); P(f"v_subrev_u32 v{a+1}, {4096*r}, v9"); P(f"v_subrev_u32 v{a+2}, {4096*r}, v10"); P(f"v_add_u32 v{a+3}, {4096*r}, v11")
        else: a = 8
        vm.issue(f"buffer_store_short v{AF+r}, v{a}, s[48:51], 0 offen"); vm.issue(f"buffer_store_short v{AF+r}, v{a+1}, s[48:51], 0 offen")
        vm.issue(f"buffer_store_short_d16_hi v{AF+r}, v{a+2}, s[48:51], 0 offen"); vm.issue(f"buffer_store_short_d16_hi v{AF+r}, v{a+3}, s[48:51], 0 offen")
    P("s_or_b32 s53, s53, s56"); P("s_cmp_lg_u32 s53, 0"); P("s_cbranch_scc1 G2_END")
    P("v_and_b32 v3, 31, v0"); P("v_lshlrev_b32 v3, 2, v3"); P(f"s_lshl_b32 s3, {S_W}, 8"); P(f"s_add_u32 s3, s3, {U[4]+24576}"); P("v_add_u32 v3, s3, v3")
    for i in range(4): P(f"ds_read_b32 v{12+i}, v3 offset:{128*i}")
    P(f"v_add_u32 v8, {4*MB}, v4"); P(f"v_add_u32 v9, {4*MB}, v5")
    P("s_waitcnt lgkmcnt(0)")
    P("v_add_f32 v12, v12, v13"); P("v_add_f32 v14, v14, v15"); P("v_add_f32 v12, v12, v14"); P("v_cvt_pk_bf16_f32 v12, v12, v12")
    P("buffer_store_short v12, v8, s[48:51], 0 offen"); P("buffer_store_short v12, v9, s[48:51], 0 offen")
    P.label("G2_END")
    vm.need("CC", "CW")
    P("s_lshl_b32 s3, s64, 31"); P(f"v_xor_b32 v{CJ+16}, s3, v{CJ+16}")
    P("v_mov_b32 v2, 0")
    for r in range(8): P(f"v_dot2_f32_bf16 v2, v{CJ+r}, v{CJ+8+r}, v2")
    dpp_sum(P, 2)
    P(f"v_add_f32 v2, v2, v{CJ+16}"); P("v_cvt_pk_bf16_f32 v2, v2, v2")
    P("s_lshl_b32 s3, s64, 12"); P("s_add_u32 s59, s3, 1024"); P(f"s_sub_u32 s3, {8*MB+1024}, s3")
    P("v_mov_b32 v3, s59"); P("v_mov_b32 v4, s3"); P(f"v_mov_b32 v5, {OOB}"); P("v_cmp_eq_u32 vcc, 63, v0"); P("v_cndmask_b32 v3, v5, v3, vcc"); P("v_cndmask_b32 v4, v5, v4, vcc")
    vm.issue("buffer_store_short v2, v3, s[48:51], 0 offen"); vm.issue("buffer_store_short v2, v4, s[48:51], 0 offen")
    A0, A1 = 32, 48
    P("v_lshrrev_b32 v2, 5, v0"); P("v_bfe_u32 v3, v0, 2, 2"); P("v_lshl_add_u32 v2, v2, 2, v3"); P("v_lshlrev_b32 v2, 7, v2")
    P("v_bfe_u32 v3, v0, 3, 1"); P("v_xor_b32 v3, s54, v3"); P("v_lshl_add_u32 v2, v3, 6, v2")
    P("v_bfe_u32 v3, v0, 4, 1"); P("v_lshl_add_u32 v2, v3, 5, v2")
    P("v_and_b32 v3, 3, v0"); P("v_lshl_add_u32 v2, v3, 3, v2")
    P("s_lshl_b32 s3, s54, 14"); P("v_add_u32 v2, s3, v2"); P("v_xor_b32 v3, 64, v2")
    P("v_add_u32 v4, 0x10000, v2"); P("v_add_u32 v5, 0x10000, v3")
    vm.need("WO3")
    P("s_barrier")
    P("; TS 17")
    def ord_(i):
        o, k = i >> 3, i & 7
        f = QF[i % 3]; u = WOU[o]
        b = 2 + 2 * (u >> 1); off = (u & 1) * 32768 + k * 2048
        return [(f"ds_read_b64_tr_b16 {vr(f,2)}, v{b} offset:{off}", f"F{i}a"), (f"ds_read_b64_tr_b16 {vr(f+2,2)}, v{b} offset:{off+1024}", f"F{i}a"),
                (f"ds_read_b64_tr_b16 {vr(f+4,2)}, v{b+1} offset:{off}", f"F{i}b"), (f"ds_read_b64_tr_b16 {vr(f+6,2)}, v{b+1} offset:{off+1024}", f"F{i}b")]
    for r in ord_(0) + ord_(1): lg.issue(*r)
    for i in range(32):
        R = ord_(i + 2) if i + 2 < 32 else []
        f = QF[i % 3]
        for half in range(2):
            lg.need(f"F{i}" + "ab"[half])
            if half == 0: vm.need(f"O{i}")
            a = (A0, A1)[half]
            P(f"{M32} {vr(a,16)}, {vr(f+4*half,4)}, {vr(T+4*i,4)}, {vr(a,16) if i else 0}")
            for r in R[2 * half:2 * half + 2]: lg.issue(*r)
    P("; TS 18")
    P(f"s_lshl_b32 s3, {S_W}, 12"); P(f"s_add_u32 s3, s3, {U[4]}"); P("v_add_u32 v2, s3, v1"); P("v_xor_b32 v3, 0x4000, v2")
    for g in range(4): lg.issue(f"ds_write_b128 v2, {vr(A1+4*g,4)} offset:{1024*g}", "XW")
    P("v_and_b32 v4, 31, v0"); P("v_lshrrev_b32 v5, 5, v0"); P("v_lshlrev_b32 v5, 4, v5"); P("v_lshl_add_u32 v4, v4, 12, v5")
    P("s_lshl_b32 s3, s65, 17"); P("s_lshl_b32 s59, s62, 7"); P("s_add_u32 s3, s3, s59"); P("s_lshl_b32 s59, s54, 6"); P("s_add_u32 s3, s3, s59"); P("s_add_u32 s3, s3, 2048")
    lg.drain()
    P("s_barrier")
    for g in range(4): lg.issue(f"ds_read_b128 {vr(A1+4*g,4)}, v3 offset:{1024*g}", f"XR{g}")
    for g in range(4):
        lg.need(f"XR{g}")
        for i in range(4): P(f"v_add_f32 v{A0+4*g+i}, v{A0+4*g+i}, v{A1+4*g+i}")
        P(f"v_cvt_pk_bf16_f32 v{8+2*g}, v{A0+4*g}, v{A0+4*g+1}"); P(f"v_cvt_pk_bf16_f32 v{9+2*g}, v{A0+4*g+2}, v{A0+4*g+3}")
        if g & 1:
            t = 8 + 4 * (g >> 1)
            P(f"v_permlane32_swap_b32 v{t}, v{t+2}"); P(f"v_permlane32_swap_b32 v{t+1}, v{t+3}")
            P(f"buffer_store_dwordx4 {vr(t,4)}, v4, s[48:51], s3 offen offset:{32*(g>>1)}")

def fused(opt):
    P = Prog()
    sk, sv = opt.get("skew", (5, 10))
    P("s_cmp_ge_u32 s2, 256"); P("s_cbranch_scc1 F_END")
    P("s_load_dwordx16 s[4:19], s[0:1], 0")
    P("s_load_dwordx4 s[20:23], s[0:1], 64")
    P("s_load_dwordx2 s[24:25], s[0:1], 80")
    P("v_lshrrev_b32 v1, 6, v0"); P("v_and_b32 v0, 63, v0"); P(f"v_readfirstlane_b32 {S_W}, v1")
    P(f"s_and_b32 {S_XCD}, s2, 7"); P(f"s_lshr_b32 {S_J}, s2, 3")
    P(f"s_and_b32 s3, {S_XCD}, 1"); P(f"s_lshr_b32 s52, {S_J}, 2")
    P(f"s_lshl_b32 {S_RB}, s3, 3"); P(f"s_add_u32 {S_RB}, {S_RB}, s52")
    P(f"s_lshl_b32 {S_PRB}, s52, 1"); P(f"s_add_u32 {S_PRB}, {S_PRB}, s3")
    P(f"s_lshr_b32 {S_CB}, {S_XCD}, 1"); P(f"s_lshl_b32 {S_CB}, {S_CB}, 2"); P(f"s_and_b32 s3, {S_J}, 3"); P(f"s_add_u32 {S_CB}, {S_CB}, s3")
    P(f"s_add_u32 s52, {S_CB}, {sk}"); P("s_and_b32 s52, s52, 15")
    P(f"s_add_u32 s53, {S_CB}, {sv}"); P("s_and_b32 s53, s53, 15")
    P(f"s_and_b32 {S_WL}, {S_W}, 3")
    P(f"s_movk_i32 {S_TMO}, {opt.get('tmo', 20000)}")
    P(f"s_cmp_ge_u32 {S_W}, 4"); P("s_cbranch_scc1 F_L")
    phase1_C(P, opt)
    P.label("F_L")
    phase1_L(P, opt)
    vm, TLOAD = attention(P, opt)
    tail(P, opt, vm, TLOAD)
    P.label("F_END")
    P("s_endpgm")
    return P.L

def prof(L):
    pre = ["s_memrealtime s[66:67]", "s_memtime s[68:69]", "s_waitcnt lgkmcnt(0)", "s_mov_b32 s67, s68"]
    pre += [f"s_mov_b32 s{70+i}, 0" for i in range(24)]
    body = []
    for x in L:
        if x == "s_endpgm": continue
        if x == "F_END:": body.append("s_branch F_PROF"); body.append(x); body.append("s_endpgm"); continue
        if x.startswith("; TS "):
            n = int(x.split()[2])
            body += ["s_memtime s[68:69]", "s_waitcnt lgkmcnt(0)", f"s_sub_u32 s{70+n}, s68, s67"]
        else: body.append(x)
    post = ["F_PROF:", "s_waitcnt vmcnt(0) lgkmcnt(0)", "s_memrealtime s[94:95]", "s_memtime s[68:69]", "s_mov_b64 exec, 1",
            f"s_add_u32 s40, s24, {24*MB}", "s_addc_u32 s41, s25, 0", f"s_mov_b32 s42, {MB}", "s_mov_b32 s43, 0x00020000",
            "s_lshl_b32 s3, s2, 3", f"s_add_u32 s3, s3, {S_W}", "s_lshl_b32 s3, s3, 7", "v_mov_b32 v0, s3",
            "s_waitcnt lgkmcnt(0)", "s_sub_u32 s68, s68, s67", "s_getreg_b32 s69, hwreg(HW_REG_XCC_ID)",
            "v_mov_b32 v4, s66", "v_mov_b32 v5, s94", "v_mov_b32 v6, s68", f"v_mov_b32 v7, {S_TMO}"]
    post += [f"v_mov_b32 v{8+i}, s{70+i}" for i in range(24)]
    post += [f"buffer_store_dwordx4 v[{4+4*i}:{7+4*i}], v0, s[40:43], 0 offen offset:{16*i}" for i in range(7)]
    post += ["s_mov_b32 s44, s22", "s_mov_b32 s45, s23", "s_mov_b32 s46, 256", "s_mov_b32 s47, 0x00020000",
             "s_sub_u32 s3, s94, s32", "v_mov_b32 v40, s3", "s_sub_u32 s3, s32, s66", "s_add_u32 s3, s3, 100000", "v_mov_b32 v41, s3", "v_mov_b32 v0, 0",
             "s_lshl_b32 s3, s2, 3", f"s_add_u32 s3, s3, {S_W}", "s_cmp_lg_u32 s3, 800", "s_cbranch_scc1 F_PE"]
    for i, t in enumerate((1, 3, 6, 7, 20, 9, 11, 12, 13, 15, 17)): post += [f"v_mov_b32 v{44+i}, s{70+t}"]
    post += ["v_mov_b32 v55, s68", "buffer_store_dwordx2 v[40:41], v0, s[44:47], 0 offen offset:8"]
    post += [f"buffer_store_dwordx4 v[{44+4*i}:{47+4*i}], v0, s[44:47], 0 offen offset:{16+16*i}" for i in range(3)]
    post += ["F_PE:", "s_endpgm"]
    return pre + body + post

REF = "concat_heads__spectral_fnet__mha_block__prompt.s.ref"
NAME = "concat_heads__spectral_fnet__mha_block__prompt_kernel"
def build(opt, verbose=False):
    head = []
    for line in open(REF):
        if line.startswith("; @launch"): break
        head.append(line.rstrip("\n"))
    L = fused(opt)
    if opt.get("prof"): L = prof(L)
    out = head + ["; @launch grid=(256,1,1) block=(512,1,1) lds=163840", '.amdgcn_target "amdgcn-amd-amdhsa--gfx950"', ".text", khead(NAME)]
    rep = []
    out.append(fmt(pad(L, rep)))
    if verbose:
        print(len(L), "instr; nops:", sum(k for k, _ in rep))
        for k, s in rep: print("   ", k, s)
    out.append('.section .rodata,"a"')
    out.append(kdesc(NAME, 256, 96))
    return "\n".join(out) + "\n"

if __name__ == "__main__":
    import json
    opt = json.loads(sys.argv[2]) if len(sys.argv) > 2 else {}
    open(sys.argv[1], "w").write(build(opt, verbose=True))
```

```python
from fcommon import *

RET, ACC = 128, 64
QF = [8, 16, 24]
QO, QX = 32, 48
XF = 64
GA, GC, GI, QP = 128, 136, 140, 144

def lit(x): return f"0x{x & 0xffffffff:x}"

def w_addr(P, dst, half):
    P(f"v_lshrrev_b32 v{dst}, 5, v0")
    P("v_bfe_u32 v11, v0, 2, 2")
    P(f"v_lshl_add_u32 v{dst}, v{dst}, 3, v11")
    P(f"v_lshlrev_b32 v{dst}, 7, v{dst}")
    P("v_bfe_u32 v11, v0, 3, 1")
    P(f"v_xor_b32 v11, {half}, v11")
    P(f"v_lshl_add_u32 v{dst}, v11, 6, v{dst}")
    P("v_bfe_u32 v11, v0, 4, 1")
    P(f"v_lshl_add_u32 v{dst}, v11, 5, v{dst}")
    P("v_and_b32 v11, 3, v0")
    P(f"v_lshl_add_u32 v{dst}, v11, 3, v{dst}")

def x_addr(P, dst, tmp):
    P(f"v_and_b32 v{tmp}, 31, v0")
    P(f"v_lshrrev_b32 v{dst}, 5, v0")
    P(f"v_bfe_u32 v{tmp+1}, v0, 1, 3")
    P(f"v_xor_b32 v{dst}, v{dst}, v{tmp+1}")
    P(f"v_lshlrev_b32 v{dst}, 4, v{dst}")
    P(f"v_lshl_add_u32 v{dst}, v{tmp}, 7, v{dst}")
    P(f"s_lshl_b32 s3, {S_WL}, 12")
    P(f"v_add_u32 v{dst}, s3, v{dst}")
    for ks in range(1, 4): P(f"v_xor_b32 v{dst+ks}, {ks << 5}, v{dst}")

def g1_ids(P):
    P(f"s_lshr_b32 s54, {S_J}, 1")
    P(f"s_lshl_b32 s55, {S_XCD}, 1"); P(f"s_and_b32 s3, {S_J}, 1"); P("s_add_u32 s55, s55, s3")
    P("s_lshl_b32 s55, s55, 2"); P(f"s_add_u32 s55, s55, {S_WL}")

def qg(P, opt, role, vm, lg, hooks):
    barstep = opt.get("barC", 0) if role == "C" else opt.get("barL", 6)
    def reads(i):
        f = QF[i % 3]
        if i < 32:
            o = (i & 7) * 2048
            return [(f"ds_read_b64_tr_b16 {vr(f,2)}, v2 offset:{o}", f"F{i}a"), (f"ds_read_b64_tr_b16 {vr(f+2,2)}, v2 offset:{o+512}", f"F{i}a"),
                    (f"ds_read_b64_tr_b16 {vr(f+4,2)}, v3 offset:{o}", f"F{i}b"), (f"ds_read_b64_tr_b16 {vr(f+6,2)}, v3 offset:{o+512}", f"F{i}b")]
        k = i - 32
        o = (k >> 3) * 32768 + ((k >> 2) & 1) * 8192
        return [(f"ds_read_b128 {vr(f,4)}, v{4+(k&3)} offset:{o}", f"F{i}a"), (f"ds_read_b128 {vr(f+4,4)}, v{4+(k&3)} offset:{o+4096}", f"F{i}b")]
    for i in range(48):
        n = 16 + (i >> 3)
        if (i & 7) == barstep:
            if f"pre{n}" in hooks: hooks[f"pre{n}"]()
            P("s_barrier")
            if n < 21 and opt.get("tsq"): P(f"; TS {n+3}")
            if f"post{n}" in hooks: hooks[f"post{n}"]()
        if i + 2 < 32 and ((i + 2) & 7) == 0:
            P("v_add_u32 v2, 0x8000, v2"); P("v_add_u32 v3, 0x8000, v3")
        R = reads(i + 2) if i + 2 < 48 else []
        f = QF[i % 3]
        for half in range(2):
            lg.need(f"F{i}" + "ab"[half])
            if i < 32:
                a = (QO, QX)[half]
                P(f"{M32} {vr(a,16)}, {vr(f+4*half,4)}, {vr(RET+4*i,4)}, {vr(a,16) if i else 0}")
            else:
                k = i - 32
                if half == 0: vm.need(f"X{k}")
                a = GA + 4 * half
                c = vr(a, 4) if k else (vr(GI, 4) if role == "C" else "0")
                P(f"{M16} {vr(a,4)}, {vr(XF+4*k,4)}, {vr(f+4*half,4)}, {c}")
            h = len(R) // 2
            for r in R[half * h:(half + 1) * h]: lg.issue(*r)
        if i in hooks: hooks[i]()

def g1_addr(P, role):
    P("v_and_b32 v5, 15, v0")
    P("v_lshrrev_b32 v4, 4, v0")
    P("v_xor_b32 v4, v4, v5")
    P("v_lshlrev_b32 v4, 4, v4")
    P("v_lshl_add_u32 v4, v5, 8, v4")
    if role == "L": P("v_add_u32 v4, 0x4000, v4")
    for k in range(1, 4): P(f"v_xor_b32 v{4+k}, {k<<6}, v4")

def x_loads(P, vm, role, ks):
    for k in ks:
        if k % 4 == 0:
            P("s_lshl_b32 s56, s55, 14"); P(f"s_add_u32 s56, s56, {WS_XE + (MB if role == 'L' else 0) + 1024*k}")
        vm.issue(f"buffer_load_dwordx4 {vr(XF+4*k,4)}, v1, {RWS}, s56 offen offset:{1024*(k%4)} sc1", f"X{k}")

def q_xchg(P, lg):
    def wr():
        P(f"s_lshl_b32 s3, {S_W}, 12"); P(f"s_add_u32 s3, s3, {U[4]}")
        P("v_add_u32 v2, s3, v1")
        P("v_xor_b32 v3, 0x4000, v2")
        for g in range(4): lg.issue(f"ds_write_b128 v2, {vr(QX+4*g,4)} offset:{1024*g}", "QW")
    def rd():
        for g in range(4): lg.issue(f"ds_read_b128 {vr(QP+4*g,4)}, v3 offset:{1024*g}", "QP")
    return wr, rd

def phase1_C(P, opt):
    XO, XT, WA = 2, 6, 10
    SET = [dict(XO=32, XT=36, WK=40, WV=44), dict(XO=48, XT=52, WK=56, WV=60)]
    vm = VM(P); lg = LG(P)
    x_addr(P, XO, 10)
    for k in range(4): P(f"v_xor_b32 v{XT+k}, 0x1000, v{XO+k}")
    P(f"s_and_b32 s57, {S_W}, 1")
    w_addr(P, WA, "s57")
    P(f"v_add_u32 v{WA}, 0x4000, v{WA}")
    P("v_lshlrev_b32 v1, 4, v0")
    g1_ids(P)
    P("v_and_b32 v11, 15, v0"); P("v_lshlrev_b32 v11, 3, v11"); P("s_lshl_b32 s3, s55, 7"); P(f"s_add_u32 s3, s3, {FL1}"); P("v_add_u32 v11, s3, v11")
    P("v_mov_b32 v16, 0")
    TL = opt.get("tl", 2)
    if TL:
        P(f"s_lshl_b32 s3, {S_RB}, 2"); P(f"s_and_b32 s58, {S_J}, 3"); P("s_add_u32 s3, s3, s58"); P("s_lshl_b32 s3, s3, 2"); P(f"s_add_u32 s3, s3, {S_W}"); P("s_lshl_b32 s3, s3, 14")
        P("v_and_b32 v17, 7, v0"); P("v_lshlrev_b32 v17, 11, v17"); P("v_lshrrev_b32 v18, 3, v0"); P("v_lshl_add_u32 v20, v18, 7, v17"); P("v_add_u32 v17, s3, v20")
        P(f"v_mov_b32 v21, {OOB}"); P("v_cmp_gt_u32 vcc, 16, v0"); P("v_cndmask_b32 v17, v21, v17, vcc")
        P(f"s_lshr_b32 s3, {S_J}, 2"); P("s_lshl_b32 s3, s3, 2"); P(f"s_add_u32 s3, s3, {S_W}"); P("s_lshl_b32 s3, s3, 1")
        P("v_and_b32 v18, 1, v0"); P("v_add_u32 v22, s3, v18")
        P("v_lshrrev_b32 v19, 1, v0"); P("v_lshl_add_u32 v19, v19, 6, v22"); P("v_mul_u32_u24 v19, 0x1800, v19"); P(f"s_lshl_b32 s3, {S_CB}, 7"); P("v_add_u32 v19, s3, v19")
        P("v_bfe_u32 v18, v0, 1, 1"); P("v_lshl_add_u32 v18, v18, 6, v22"); P("v_mul_u32_u24 v18, 0x1800, v18")
        P("s_lshl_b32 s3, s52, 7"); P("s_add_u32 s3, s3, 2048"); P("s_lshl_b32 s58, s53, 7"); P("s_add_u32 s58, s58, 4096")
        P("v_mov_b32 v22, s3"); P("v_mov_b32 v23, s58"); P("v_cmp_gt_u32 vcc, 4, v0"); P("v_cndmask_b32 v22, v23, v22, vcc"); P("v_add_u32 v18, v18, v22")
        P("v_cmp_gt_u32 vcc, 8, v0"); P("v_cndmask_b32 v18, v21, v18, vcc")
        P(f"s_lshl_b32 s3, s54, 2"); P(f"s_add_u32 s3, s3, {S_W}"); P("s_lshl_b32 s3, s3, 14"); P("v_add_u32 v20, s3, v20")
    P("s_waitcnt lgkmcnt(0)")
    def touch(p):
        if p > 7: return
        vm.issue(f"buffer_load_dword v24, v17, s[40:43], 0 offen offset:{256*p}")
        P(f"s_mov_b32 s3, {p*786432}")
        vm.issue("buffer_load_dword v24, v18, s[44:47], s3 offen")
    if TL:
        srd(P, 40, P_BX, 4 * MB); srd(P, 44, P_WQKV, 6 * MB)
        for p_ in range(1, TL + 1): touch(p_)
    srd(P, 36, P_WS, WS_SIZE); srd(P, 48, P_DBG, 256)
    P(f"s_or_b32 s3, s2, {S_W}"); P("s_cmp_lg_u32 s3, 0"); P("s_cbranch_scc1 C_NN")
    P("s_memrealtime s[58:59]"); P("s_waitcnt lgkmcnt(0)"); P("s_or_b32 s58, s58, 1")
    P("v_mov_b32 v12, s58"); P("v_mov_b32 v13, s59")
    P("buffer_store_dwordx2 v[12:13], v16, s[48:51], 0 offen sc1")
    P.label("C_NN")
    P("s_setprio 2")
    P("; TS 0")
    P("s_barrier")
    P("; TS 1")
    def xo(s, ks): return RET + 4 * (4 * (s - 8) + ks) if s >= 8 else SET[ks & 1]["XO"]
    def reads(s, ks):
        t = SET[ks & 1]; g = f"{s}_{ks}"
        return [(f"ds_read_b128 {vr(xo(s,ks),4)}, v{XO+ks}", "XO" + g),
                (f"ds_read_b64_tr_b16 {vr(t['WK'],2)}, v{WA} offset:{ks*2048}", "WK" + g),
                (f"ds_read_b64_tr_b16 {vr(t['WK']+2,2)}, v{WA} offset:{ks*2048+512}", "WK" + g),
                (f"ds_read_b128 {vr(t['XT'],4)}, v{XT+ks}", "XT" + g),
                (f"ds_read_b64_tr_b16 {vr(t['WV'],2)}, v{WA} offset:{8192+ks*2048}", "WV" + g),
                (f"ds_read_b64_tr_b16 {vr(t['WV']+2,2)}, v{WA} offset:{8192+ks*2048+512}", "WV" + g)]
    for r in reads(0, 0): lg.issue(*r)
    NLOAD = "buffer_load_dwordx2 v[12:13], v16, s[48:51], 0 offen sc1"
    FLOAD = f"buffer_load_dwordx2 v[14:15], v11, {RWS}, 0 offen sc1"
    for s in range(16):
        for ks in range(4):
            t = SET[ks & 1]; g = f"{s}_{ks}"
            last = ks == 3
            R = reads(s, ks + 1) if not last else (reads(s + 1, 0) if s < 15 else [])
            d = lit(32768 if s % 5 != 4 else -131072)
            for i in range(4):
                x, xt = (xo(s, ks), "XO") if i % 2 == 0 else (t["XT"], "XT")
                w = "WK" if i < 2 else "WV"
                lg.need(xt + g, w + g)
                A, B = (t[w], x) if i < 2 else (x, t[w])
                a = ACC + 16 * i
                P(f"{M32} {vr(a,16)}, {vr(A,4)}, {vr(B,4)}, {vr(a,16) if (s or ks) else 0}")
                if last and s < 15:
                    if i == 0:
                        for r in (XO, WA, XT): P(f"v_add_u32 v{r}, {d}, v{r}")
                    if i == 2:
                        for k in range(1, 4): P(f"v_add_u32 v{XO+k}, {d}, v{XO+k}"); P(f"v_add_u32 v{XT+k}, {d}, v{XT+k}")
                if i < 2:
                    for r in R[3 * i:3 * i + 3]: lg.issue(*r)
                if ks == 1 and i == 3:
                    P("s_barrier")
                    if s in (0, 4, 8, 12): P(f"; TS {2 + s // 4}")
                if TL and ks == 2 and i == 0:
                    if s % 2 == 0: touch(TL + 1 + s // 2)
                    if s == opt.get("tq", 7): vm.issue("buffer_load_dword v24, v19, s[44:47], 0 offen")
                    if s == opt.get("td", 11):
                        P(f"s_and_b32 s3, {S_J}, 1"); P("s_cmp_eq_u32 s3, 0")
                        P(f"s_cselect_b32 s40, s{P_WDR}, s{P_WDI}"); P(f"s_cselect_b32 s41, s{P_WDR+1}, s{P_WDI+1}"); P(f"s_mov_b32 s42, {2*MB}")
                        vm.issue("buffer_load_dword v24, v20, s[40:43], 0 offen")
                if s == 12 and ks == 2 and i == 2:
                    vm.issue(NLOAD, "N"); vm.issue(FLOAD, "F")
                if s == 15 and ks == 0 and i == 2:
                    vm.need("F")
                    spin(P, NLOAD, nonce_ok(P, 12))
                    spin(P, FLOAD, flags_ok(P, 14))
                if s == 15 and ks == 3 and i == 0:
                    P(f"s_lshl_b32 s3, s57, 6"); P(f"v_xor_b32 v2, s3, v{WA}"); P(f"v_add_u32 v2, {U[1]}, v2"); P("v_xor_b32 v3, 64, v2")
    P("; TS 6")
    for i in range(2):
        f = QF[i]; o = i * 2048
        lg.issue(f"ds_read_b64_tr_b16 {vr(f,2)}, v2 offset:{o}", f"F{i}a"); lg.issue(f"ds_read_b64_tr_b16 {vr(f+2,2)}, v2 offset:{o+512}", f"F{i}a")
        lg.issue(f"ds_read_b64_tr_b16 {vr(f+4,2)}, v3 offset:{o}", f"F{i}b"); lg.issue(f"ds_read_b64_tr_b16 {vr(f+6,2)}, v3 offset:{o+512}", f"F{i}b")
    P(f"s_lshl_b32 s58, {S_PRB}, 2"); P(f"s_add_u32 s58, s58, {S_W}"); P("s_lshl_b32 s58, s58, 12")
    P("s_lshl_b32 s59, s52, 1"); P("s_add_u32 s59, s59, s57")
    P("s_lshl_b32 s60, s53, 1"); P("s_add_u32 s60, s60, s57")
    P("s_lshl_b32 s61, s59, 18"); P("s_add_u32 s61, s61, s58"); P("s_xor_b32 s62, s61, 0x1000")
    P("s_lshl_b32 s63, s60, 18"); P("s_add_u32 s63, s63, s58"); P("s_xor_b32 s64, s63, 0x1000")
    P("v_and_b32 v4, 0x33, v0")
    P("v_bfe_u32 v5, v0, 2, 1"); P("v_lshl_or_b32 v4, v5, 3, v4")
    P("v_bfe_u32 v5, v0, 3, 1"); P("v_lshl_or_b32 v4, v5, 2, v4")
    P("v_lshlrev_b32 v4, 4, v4")
    for i in range(4):
        a = ACC + 16 * i
        for r in range(8): P(f"v_cvt_pk_bf16_f32 v{a+r}, v{a+2*r}, v{a+2*r+1}")
        va, off = (4, 0) if i < 2 else (1, 2048)
        vm.issue(f"buffer_store_dwordx4 {vr(a,4)}, v{va}, {RWS}, s{61+i} offen offset:{off} sc1", "KV")
        vm.issue(f"buffer_store_dwordx4 {vr(a+4,4)}, v{va}, {RWS}, s{61+i} offen offset:{off+1024} sc1", "KV")
    P("s_setprio 0")
    P("; TS 7")
    wr, rd = q_xchg(P, lg)
    def x512():
        P("v_lshrrev_b32 v4, 4, v0"); P("v_lshlrev_b32 v4, 4, v4"); P("s_lshl_b32 s3, s55, 6"); P(f"s_add_u32 s3, s3, {SM_X512}")
        vm.issue(f"buffer_load_dwordx4 {vr(GC,4)}, v4, {RWS}, s3 offen sc1", "X512")
    def ginit():
        g1_addr(P, "C")
        vm.need("X512")
        P(f"v_lshlrev_b32 v{QP}, 31, v0")
        for i in range(4): P(f"v_xor_b32 v{GI+i}, v{QP}, v{GC+i}")
    def kvflag():
        vm.need("KV")
        P("; TS 8")
        P("s_add_u32 s60, s60, 32"); P("s_lshl_b32 s59, s59, 8"); P("s_lshl_b32 s60, s60, 8")
        P(f"s_lshl_b32 s3, {S_PRB}, 1"); P(f"s_lshr_b32 s58, {S_W}, 1"); P("s_add_u32 s3, s3, s58"); P("s_lshl_b32 s3, s3, 3"); P(f"s_add_u32 s3, s3, {FL2}")
        P(f"v_mov_b32 v{QP}, s59"); P(f"v_mov_b32 v{QP+1}, s60"); P("v_cmp_eq_u32 vcc, 0, v0"); P(f"v_cndmask_b32 v{QP}, v{QP+1}, v{QP}, vcc")
        P(f"v_mov_b32 v{QP+2}, s32"); P(f"v_mov_b32 v{QP+3}, s33")
        vm.issue(f"buffer_store_dwordx2 {vr(QP+2,2)}, v{QP}, {RWS}, s3 offen sc1", "FK")
    H = {}
    for n in range(4): H[1 + 2 * n] = (lambda n=n: x_loads(P, vm, "C", range(4 * n, 4 * n + 4)))
    H[10] = x512
    H[opt.get("kvflag", 27)] = kvflag
    H[29] = ginit
    H["post20"] = wr
    H["pre21"] = lambda: lg.need("QW")
    H["post21"] = rd
    qg(P, opt, "C", vm, lg, H)
    P("s_cmp_lg_u32 s54, 0"); P("s_cbranch_scc1 C_NOC")
    for i in range(4): P(f"v_mov_b32 v{8+i}, 0xbf803f80")
    for k in range(16): P(f"{M16} {vr(GC,4)}, {vr(XF+4*k,4)}, v[8:11], {vr(GC,4)}")
    P("v_lshrrev_b32 v4, 4, v0"); P("v_lshlrev_b32 v4, 3, v4"); P("s_lshl_b32 s3, s55, 5"); P(f"s_add_u32 s3, s3, {SM_C}")
    P(f"v_cvt_pk_bf16_f32 v{GC}, v{GC}, v{GC+1}"); P(f"v_cvt_pk_bf16_f32 v{GC+1}, v{GC+2}, v{GC+3}")
    P(f"buffer_store_dwordx2 {vr(GC,2)}, v4, {RWS}, s3 offen sc1")
    P.label("C_NOC")
    lg.drain()
    P("s_branch F_ATT")

def phase1_L(P, opt):
    vm = VM(P); lg = LG(P)
    DX, DW, XA = 2, 6, 8
    P("v_lshrrev_b32 v1, 3, v0")
    P("v_and_b32 v6, 7, v0")
    P("v_lshrrev_b32 v7, 4, v0")
    P("v_xor_b32 v8, v6, v7")
    P("v_lshlrev_b32 v8, 4, v8")
    P("v_lshl_add_u32 v8, v1, 11, v8")
    P(f"s_lshl_b32 s56, {S_RB}, 18"); P(f"s_lshl_b32 s57, {S_WL}, 16"); P("s_add_u32 s56, s56, s57")
    P("v_add_u32 v2, s56, v8")
    P("v_xor_b32 v3, 64, v2")
    P(f"v_add_u32 v3, {16384-1024}, v3")
    P(f"v_add_u32 v4, {32768-2048}, v2")
    P(f"v_add_u32 v5, {32768-2048}, v3")
    P("v_and_b32 v7, 1, v7")
    P("v_lshlrev_b32 v7, 2, v7")
    P("v_xor_b32 v6, v6, v7")
    P("v_lshlrev_b32 v6, 4, v6")
    P(f"s_lshl_b32 s56, {S_WL}, 4")
    P("v_add_u32 v1, s56, v1")
    P("v_mul_u32_u24 v1, 0x1800, v1")
    P("v_add_u32 v6, v1, v6")
    P(f"v_add_u32 v7, {8*6144-1024}, v6")
    P("s_lshl_b32 s52, s52, 7"); P("s_add_u32 s52, s52, 2048")
    P("s_lshl_b32 s53, s53, 7"); P("s_add_u32 s53, s53, 4096")
    P(f"s_lshl_b32 s58, {S_WL}, 12")
    P(f"s_lshl_b32 s59, {S_WL}, 11")
    P(f"s_lshl_b32 s60, {S_CB}, 7")
    P("s_waitcnt lgkmcnt(0)")
    srd(P, 40, P_BX, 4 * MB); srd(P, 44, P_WQKV, 6 * MB)
    def D(n):
        u = U[n % 5]; t = f"D{n}"
        if n < 16:
            P(f"s_add_u32 m0, s58, {u}"); P(f"s_movk_i32 s3, {n*128}")
            for i in range(4): vm.issue(f"buffer_load_dwordx4 v{DX+i}, s[40:43], s3 offen offset:{1024*i} lds", t)
            subs = [(16384, "s52", n), (24576, "s53", n)]
        elif n < 20:
            q = n - 16
            subs = [(8192 * b, "s60", (b >> 1) * 8 + 2 * q + (b & 1)) for b in range(4)]
        else:
            P(f"s_lshl_b32 s3, {S_WL}, 13"); P(f"s_add_u32 m0, s3, {u}"); P(f"s_movk_i32 s3, {(n-20)*512}")
            for i in range(4): vm.issue(f"buffer_load_dwordx4 v{DA+i}, s[40:43], s3 offen offset:{1024*i} lds", t)
            P("s_add_u32 m0, m0, 4096"); P(f"s_mov_b32 s3, {(n-20)*512+32768}")
            for i in range(4): vm.issue(f"buffer_load_dwordx4 v{DA+i}, s[40:43], s3 offen offset:{1024*i} lds", t)
            subs = []
        for lo, sc, st in subs:
            P(f"s_add_u32 m0, s59, {u+lo}"); P(f"s_add_u32 s3, {sc}, {st*393216}")
            vm.issue(f"buffer_load_dwordx4 v{DW}, s[44:47], s3 offen lds", t)
            vm.issue(f"buffer_load_dwordx4 v{DW+1}, s[44:47], s3 offen offset:1024 lds", t)
    D(0); D(1)
    srd(P, 36, P_WS, WS_SIZE); srd(P, 48, P_AX, 4 * MB)
    F1, F2, R1, R2, E1, E2, GX, GW, NV = 32, 36, 40, 44, 48, 49, 52, 60, 50
    P(f"s_lshl_b32 s61, s2, 2"); P(f"s_add_u32 s61, s61, {S_WL}")
    P("s_lshr_b32 s3, s61, 4"); P("s_lshl_b32 s3, s3, 15")
    P("v_and_b32 v12, 15, v0"); P("v_lshlrev_b32 v12, 11, v12"); P("v_add_u32 v12, s3, v12")
    P(f"v_sub_u32 v13, {4*MB}, v12")
    P("s_and_b32 s3, s61, 15"); P("s_lshl_b32 s3, s3, 6")
    P("v_and_b32 v14, 48, v0"); P("v_add_u32 v14, s3, v14")
    P("v_sub_u32 v15, 2032, v14")
    P("v_add_u32 v16, 16, v15")
    P("v_cmp_eq_u32 vcc, 0, v14"); P(f"v_mov_b32 v17, {OOB}"); P("v_cndmask_b32 v16, v16, v17, vcc")
    P("v_add_u32 v18, v12, v14"); P("v_add_u32 v19, v13, v14"); P("v_add_u32 v20, v12, v15"); P("v_add_u32 v21, v13, v15")
    P("v_add_u32 v22, v12, v16"); P("v_add_u32 v23, v13, v16")
    for r, a in ((F1, 18), (F2, 19), (R1, 20), (R2, 21)): vm.issue(f"buffer_load_dwordx4 {vr(r,4)}, v{a}, s[48:51], 0 offen", "FO")
    vm.issue(f"buffer_load_ushort v{E1}, v22, s[48:51], 0 offen", "FO"); vm.issue(f"buffer_load_ushort v{E2}, v23, s[48:51], 0 offen", "FO")
    P("v_lshlrev_b32 v18, 5, v0"); P(f"s_mov_b32 s3, {2*MB}")
    vm.issue(f"buffer_load_dwordx4 {vr(GX,4)}, v18, s[48:51], s3 offen", "G"); vm.issue(f"buffer_load_dwordx4 {vr(GX+4,4)}, v18, s[48:51], s3 offen offset:16", "G")
    srd(P, 48, P_WDR, 513 * 2048)
    P("s_lshl_b32 s3, s61, 11"); P("v_add_u32 v19, s3, v18")
    vm.issue(f"buffer_load_dwordx4 {vr(GW,4)}, v19, s[48:51], 0 offen", "G"); vm.issue(f"buffer_load_dwordx4 {vr(GW+4,4)}, v19, s[48:51], 0 offen offset:16", "G")
    x_addr(P, XA, 18)
    P("v_lshlrev_b32 v1, 4, v0")
    g1_ids(P)
    srd(P, 48, P_DBG, 256)
    P("v_mov_b32 v24, 0")
    NLOAD = f"buffer_load_dwordx2 {vr(NV,2)}, v24, s[48:51], 0 offen sc1"
    FLOAD = f"buffer_load_dwordx2 v[26:27], v25, {RWS}, 0 offen sc1"
    def unp(dst, src, j):
        if j & 1: P(f"v_and_b32 v{dst}, 0xffff0000, v{src + (j >> 1)}")
        else:     P(f"v_lshlrev_b32 v{dst}, 16, v{src + (j >> 1)}")
    EE, OO = 72, 80
    def fold_a(js):
        vm.need("FO")
        for j in js:
            unp(68, F1, j); unp(69, F2, j)
            if j == 0: P(f"v_lshlrev_b32 v70, 16, v{E1}"); P(f"v_lshlrev_b32 v71, 16, v{E2}")
            else: unp(70, R1, 8 - j); unp(71, R2, 8 - j)
            P("v_add_f32 v68, v68, v71"); P("v_add_f32 v69, v69, v70")
            P(f"v_add_f32 v{EE+j}, v68, v69"); P(f"v_sub_f32 v{OO+j}, v68, v69")
    def fold_b():
        unp(70, R1, 0); unp(71, R2, 0); P("v_add_f32 v70, v70, v71")
        for r in range(4): P(f"v_cvt_pk_bf16_f32 v{88+r}, v{EE+2*r}, v{EE+2*r+1}")
        for r in range(4): P(f"v_cvt_pk_bf16_f32 v{92+r}, v{OO+2*r}, v{OO+2*r+1}")
        P("s_lshl_b32 s56, s61, 10"); P(f"s_add_u32 s57, s56, {WS_XE+MB}"); P(f"s_add_u32 s56, s56, {WS_XE}")
        vm.issue(f"buffer_store_dwordx4 v[88:91], v1, {RWS}, s56 offen sc1", "FS")
        vm.issue(f"buffer_store_dwordx4 v[92:95], v1, {RWS}, s57 offen sc1", "FS")
        P("v_lshrrev_b32 v12, 9, v12"); P(f"v_add_u32 v12, {SM_X512}, v12")
        P("v_cmp_eq_u32 vcc, 0x3f0, v14"); P("v_cndmask_b32 v12, v17, v12, vcc")
        vm.issue(f"buffer_store_dword v70, v12, {RWS}, 0 offen sc1", "FS")
    def gjob():
        vm.need("G")
        P("v_mov_b32 v68, 0")
        for r in range(8): P(f"v_dot2_f32_bf16 v68, v{GX+r}, v{GW+r}, v68")
        dpp_sum(P, 68)
        P("s_lshl_b32 s3, s61, 2"); P(f"s_add_u32 s3, s3, {SM_G}"); P("s_cmp_le_u32 s61, 512"); P(f"s_cselect_b32 s3, s3, {OOB}")
        P("v_mov_b32 v69, s3"); P("v_cmp_eq_u32 vcc, 63, v0"); P("v_cndmask_b32 v69, v17, v69, vcc")
        vm.issue(f"buffer_store_dword v68, v69, {RWS}, 0 offen sc1", "FS")
        vm.issue(NLOAD, "N")
    def f1flag():
        vm.need("N")
        spin(P, NLOAD, nonce_ok(P, NV))
        P("s_lshl_b32 s3, s61, 3"); P(f"s_add_u32 s3, s3, {FL1}")
        vm.issue(f"buffer_store_dwordx2 {vr(NV,2)}, v24, {RWS}, s3 offen sc1", "F1")
    def f1poll():
        P("v_and_b32 v25, 15, v0"); P("v_lshlrev_b32 v25, 3, v25"); P("s_lshl_b32 s3, s55, 7"); P(f"s_add_u32 s3, s3, {FL1}"); P("v_add_u32 v25, s3, v25")
        vm.issue(FLOAD, "F")
    def f1check():
        vm.need("F")
        spin(P, FLOAD, flags_ok(P, 26))
    DA = 28
    def wd_setup():
        P(f"s_cmp_lt_u32 {S_WL}, 2")
        P(f"s_cselect_b32 s40, s{P_WDR}, s{P_WDI}"); P(f"s_cselect_b32 s41, s{P_WDR+1}, s{P_WDI+1}"); P(f"s_mov_b32 s42, {2*MB}")
        P("s_lshl_b32 s56, s54, 16"); P(f"s_and_b32 s3, {S_WL}, 1"); P("s_lshl_b32 s3, s3, 8"); P("s_add_u32 s56, s56, s3")
        P("v_lshrrev_b32 v2, 4, v0"); P("v_and_b32 v3, 15, v0"); P("v_xor_b32 v3, v3, v2"); P("v_lshlrev_b32 v3, 4, v3")
        P("v_lshl_add_u32 v3, v2, 11, v3"); P(f"v_add_u32 v{DA}, s56, v3")
        for n in range(1, 4):
            P(f"v_xor_b32 v{DA+n}, {n<<6}, v{DA}"); P(f"v_add_u32 v{DA+n}, {(4*n<<11) - 1024*n}, v{DA+n}")
    def ret(s):
        for ks in range(4): lg.issue(f"ds_read_b128 {vr(RET+16*s+4*ks,4)}, v{XA+ks}", "R")
        d = lit(32768 if s % 5 != 4 else -131072)
        for ks in range(4): P(f"v_add_u32 v{XA+ks}, {d}, v{XA+ks}")
    jobs = {1: lambda: fold_a(range(0, 5)), 2: lambda: (fold_a(range(5, 8)), fold_b()), 3: gjob, 7: f1flag, 12: wd_setup, 14: f1check}
    pre = {11: f1poll}
    vm.need("D0")
    P("; TS 0")
    P("s_barrier")
    P("; TS 1")
    ret(0)
    D(2); D(3)
    for n in range(16):
        vm.need(f"D{n+1}")
        lg.drain()
        P("s_barrier")
        if n in (0, 4, 8, 12): P(f"; TS {2 + n // 4}")
        if n < 7: ret(n + 1)
        if n in pre: pre[n]()
        D(n + 4)
        if n in jobs: jobs[n]()
    P("; TS 6")
    DA2 = 144
    w_addr(P, 2, "1"); P(f"v_add_u32 v2, {U[1]}, v2"); P("v_xor_b32 v3, 64, v2")
    for n in range(4): P(f"v_mov_b32 v{4+n}, v{DA+n}")
    DA = 4
    for i in range(2):
        f = QF[i]; o = i * 2048
        lg.issue(f"ds_read_b64_tr_b16 {vr(f,2)}, v2 offset:{o}", f"F{i}a"); lg.issue(f"ds_read_b64_tr_b16 {vr(f+2,2)}, v2 offset:{o+512}", f"F{i}a")
        lg.issue(f"ds_read_b64_tr_b16 {vr(f+4,2)}, v3 offset:{o}", f"F{i}b"); lg.issue(f"ds_read_b64_tr_b16 {vr(f+6,2)}, v3 offset:{o+512}", f"F{i}b")
    wr, rd = q_xchg(P, lg)
    H = {}
    for n in range(16, 21): H[f"pre{n}"] = (lambda n=n: vm.need(f"D{n+1}"))
    H["post16"] = lambda: D(20)
    H["post17"] = lambda: D(21)
    for n in range(4): H[16 + 2 * n] = (lambda n=n: x_loads(P, vm, "L", range(4 * n, 4 * n + 4)))
    H[28] = lambda: g1_addr(P, "L")
    H["post20"] = wr
    H["pre21"] = lambda: lg.need("QW")
    H["post21"] = rd
    qg(P, opt, "L", vm, lg, H)
    lg.drain()

ONES, LS, Q, K, V, C, O, SA, SB = 8, 12, 16, 24, 32, 40, 56, 72, 88
FA, FV = 104, 106
WD = 108
TA_, TV = 112, 114

def g2_ids(P):
    P(f"s_lshr_b32 s54, {S_W}, 2"); P(f"s_bfe_u32 s55, {S_W}, 0x10001"); P(f"s_and_b32 s56, {S_W}, 1")
    P(f"s_lshl_b32 s57, {S_XCD}, 2"); P(f"s_and_b32 s3, {S_J}, 3"); P("s_add_u32 s57, s57, s3")
    P(f"s_lshr_b32 s58, {S_J}, 2"); P("s_lshl_b32 s58, s58, 1"); P("s_add_u32 s58, s58, s55")
    P("s_cmp_eq_u32 s54, 0")
    P(f"s_cselect_b32 s44, s{P_WSR}, s{P_WSI}"); P(f"s_cselect_b32 s45, s{P_WSR+1}, s{P_WSI+1}"); P(f"s_mov_b32 s46, {8*MB}"); P("s_mov_b32 s47, 0x00020000")
    P("s_lshl_b32 s59, s57, 17"); P("s_lshl_b32 s3, s55, 16"); P("s_add_u32 s59, s59, s3"); P("s_lshl_b32 s3, s56, 10"); P("s_add_u32 s59, s59, s3")
    P("v_lshrrev_b32 v6, 4, v0"); P("v_and_b32 v7, 15, v0"); P("v_xor_b32 v7, v7, v6"); P("v_lshlrev_b32 v7, 4, v7")
    P("v_lshl_add_u32 v7, v6, 12, v7"); P(f"v_add_u32 v{WD}, s59, v7")
    for n in range(1, 4):
        P(f"v_xor_b32 v{WD+n}, {n<<6}, v{WD}"); P(f"v_add_u32 v{WD+n}, {(4*n<<12) - 1024*n}, v{WD+n}")
    P("s_lshl_b32 s59, s54, 14"); P("s_lshl_b32 s3, s56, 13"); P("s_add_u32 s59, s59, s3"); P("s_lshl_b32 s3, s55, 12"); P("s_add_u32 s59, s59, s3")
    P("s_lshl_b32 s3, s54, 4"); P("s_add_u32 s3, s3, s58"); P("s_lshl_b32 s3, s3, 1"); P("s_add_u32 s3, s3, s56"); P("s_lshl_b32 s60, s3, 15"); P("s_lshl_b32 s3, s3, 8"); P(f"s_add_u32 s3, s3, {FL3}")
    P(f"s_add_u32 s60, s60, {WS_TE}")
    P(f"v_and_b32 v{TA_}, 31, v0"); P(f"v_lshlrev_b32 v{TA_}, 3, v{TA_}"); P(f"v_add_u32 v{TA_}, s3, v{TA_}")

WSU = [0, 1, 3, 4]
WOU = [2, 0, 1, 3]
def ws_dma(P, vm, r):
    P(f"s_add_u32 m0, s59, {U[WSU[r]]}"); P(f"s_movk_i32 s3, {r*256}")
    for n in range(4): vm.issue(f"buffer_load_dwordx4 v{WD+n}, s[44:47], s3 offen offset:{1024*n} lds", f"WS{r}")

def attention(P, opt):
    vm = VM(P)
    P.label("F_ATT")
    P("; TS 9")
    P(f"s_lshr_b32 s61, {S_W}, 2")
    P(f"s_and_b32 s3, {S_W}, 1"); P("s_lshl_b32 s3, s3, 4"); P(f"s_add_u32 s3, s3, {S_CB}"); P("s_lshl_b32 s3, s3, 1"); P("s_add_u32 s3, s3, s61")
    P("s_lshl_b32 s3, s3, 8"); P(f"s_add_u32 s3, s3, {FL2}")
    P(f"v_and_b32 v{FA}, 31, v0"); P(f"v_lshlrev_b32 v{FA}, 3, v{FA}"); P(f"v_add_u32 v{FA}, s3, v{FA}")
    KLOAD = f"buffer_load_dwordx2 {vr(FV,2)}, v{FA}, {RWS}, 0 offen sc1"
    vm.issue(KLOAD, "KF")
    for i in range(4): P(f"v_cvt_pk_bf16_f32 v{GI+i}, v{GA+2*i}, v{GA+2*i+1}")
    P(f"v_permlane16_swap_b32 v{GI}, v{GI+2}"); P(f"v_permlane16_swap_b32 v{GI+1}, v{GI+3}")
    P("s_lshl_b32 s62, s61, 4"); P("s_add_u32 s62, s62, s54"); P("s_lshl_b32 s62, s62, 6"); P("s_add_u32 s62, s62, s55")
    P("s_lshl_b32 s3, s62, 10"); P(f"s_add_u32 s3, s3, {WS_TE}")
    vm.issue(f"buffer_store_dwordx4 {vr(GI,4)}, v1, {RWS}, s3 offen sc1", "TS")
    P("s_lshl_b32 s62, s62, 3"); P(f"s_add_u32 s62, s62, {FL3}")
    P(f"s_mov_b32 s3, {f32hex(math.log2(math.e) / math.sqrt(32.0))}")
    for i in range(16): P(f"v_add_f32 v{QO+i}, v{QO+i}, v{QP+i}")
    for i in range(16): P(f"v_mul_f32 v{QO+i}, s3, v{QO+i}")
    for i in range(8): P(f"v_cvt_pk_bf16_f32 v{Q+i}, v{QO+2*i}, v{QO+2*i+1}")
    P(f"s_lshl_b32 s63, {S_CB}, 1"); P("s_add_u32 s63, s63, s61")
    P(f"s_lshl_b32 s64, {S_RB}, 2"); P(f"s_add_u32 s64, s64, {S_WL}")
    if opt.get("qdump"):
        P("s_lshl_b32 s3, s63, 6"); P("s_add_u32 s3, s3, s64"); P("s_lshl_b32 s3, s3, 11"); P(f"s_add_u32 s3, s3, {WS_QD}")
        vm.issue(f"buffer_store_dwordx4 {vr(Q,4)}, v1, {RWS}, s3 offen"); vm.issue(f"buffer_store_dwordx4 {vr(Q+4,4)}, v1, {RWS}, s3 offen offset:1024")
    P("s_lshl_b32 s64, s64, 5"); P("s_add_u32 s64, s64, s63")
    P(f"s_lshl_b32 s3, {S_CB}, 19")
    srd(P, 40, P_WS, 512 * 1024, "s3")
    P("s_lshl_b32 s65, s61, 18")
    P(f"s_lshl_b32 s3, {S_WL}, 11"); P("s_add_u32 s3, s3, s65"); P("v_add_u32 v4, s3, v1")
    P(f"s_lshl_b32 s52, {S_W}, 11"); P(f"s_add_u32 s52, s52, {U[2]}")
    P("s_lshl_b32 s3, s61, 13"); P(f"s_add_u32 s3, s3, {U[2]}"); P("v_add_u32 v2, s3, v1"); P("v_add_u32 v3, 0x8000, v2")
    P("v_mov_b32 v5, 0xdddddddd")
    P("v_and_b32 v6, 7, v0"); P("v_mov_b32 v7, 0x3f803f80")
    P("v_cmp_eq_u32 vcc, 0, v6"); P(f"v_cndmask_b32 v{ONES}, 0, v7, vcc"); P(f"v_cndmask_b32 v{ONES+1}, 0, v7, vcc")
    P("v_cmp_eq_u32 vcc, 4, v6"); P(f"v_cndmask_b32 v{ONES+2}, 0, v7, vcc"); P(f"v_cndmask_b32 v{ONES+3}, 0, v7, vcc")
    for i in range(8, 16): P(f"v_mov_b32 v{SB+i}, 0")
    for i in range(16): P(f"v_mov_b32 v{O+i}, 0")
    for i in range(4): P(f"v_mov_b32 v{LS+i}, 0")
    g2_ids(P)
    vm.need("KF")
    def kv_ok(bits):
        def f():
            P(f"v_cmp_eq_u64 vcc, {NON}, {vr(FV,2)}")
            P("s_mov_b32 s53, vcc_lo")
            P(f"s_andn2_b32 s3, {bits}, s53")
            P("s_cmp_eq_u32 s3, 0")
        return f
    spin(P, KLOAD, kv_ok("31"))
    P("; TS 10")
    def dma(tag=None):
        P("s_mov_b32 m0, s52")
        P("s_add_u32 s52, s52, 0x4000")
        vm.issue("buffer_load_dwordx4 v4, s[40:43], 0 offen sc1 lds", tag)
        vm.issue("buffer_load_dwordx4 v4, s[40:43], 0 offen offset:1024 sc1 lds", tag)
        P("v_add_u32 v4, 0x2000, v4")
    for h in range(4): dma(f"H{h}")
    vm.need("H0")
    P(f"v_mov_b32 v6, s32"); P("v_mov_b32 v7, s33"); P("v_mov_b32 v24, 0")
    vm.issue(f"buffer_store_dwordx2 v[6:7], v24, {RWS}, s62 offen sc1", "F3")
    P("s_barrier")
    P("; TS 11")
    dma("H4")
    lg = LG(P)
    lg.issue(f"ds_read_b128 {vr(K,4)}, v2", "K0"); lg.issue(f"ds_read_b128 {vr(K+4,4)}, v2 offset:1024", "K1")
    vm.issue(KLOAD, "KF")
    ws_dma(P, vm, 0); ws_dma(P, vm, 1)
    P(f"s_mov_b32 s62, {f32hex(float(opt.get('margin', 88)))}")
    lg.need("K0"); P(f"{M32} {vr(SA,16)}, {vr(K,4)}, {vr(Q,4)}, 0")
    lg.need("K1"); P(f"{M32} {vr(SA,16)}, {vr(K+4,4)}, {vr(Q+4,4)}, {vr(SA,16)}")
    lg.issue(f"ds_read_b128 {vr(V+4,4)}, v2 offset:3072", "V1")
    lg.issue(f"ds_read_b128 {vr(K,4)}, v2 offset:4096", "K0")
    lg.issue(f"ds_read_b128 {vr(K+4,4)}, v2 offset:5120", "K1")
    lg.issue(f"ds_read_b128 {vr(V,4)}, v2 offset:2048", "V0")
    P(f"v_max3_f32 v6, v{SA}, v{SA+1}, v{SA+2}")
    for i in range(3, 15, 2): P(f"v_max3_f32 v6, v6, v{SA+i}, v{SA+i+1}")
    P(f"v_max_f32 v6, v6, v{SA+15}")
    P("v_mov_b32 v7, v6"); P("v_permlane32_swap_b32 v6, v7"); P("v_max_f32 v6, v6, v7")
    P("v_add_f32 v6, s62, v6")
    for i in range(16): P(f"v_sub_f32 v{C+i}, 0, v6")
    for i in range(16): P(f"v_sub_f32 v{SA+i}, v{SA+i}, v6")
    P("s_mov_b32 s61, 5")
    P("s_mov_b32 s63, 1")
    q0 = list(lg.q)
    order = opt.get("order", "ee P eee L ee M eee N ee p eee l e").replace(" ", "")
    P.label("AT_LOOP")
    ool = []
    for u in range(4):
        S, T = (SA, SB) if u % 2 == 0 else (SB, SA)
        def at(t, off):
            o = ((t >> 1) & 1) * 16384 + (t & 1) * 4096 + off
            return f"v{2 if t < 4 else 3} offset:{o}"
        e = 0
        for ch in order:
            if ch == "e":
                P(f"v_exp_f32 v{S+e}, v{S+e}"); e += 1
            elif ch == "P":
                lg.need("V1")
                P(f"v_smfmac_f32_32x32x32_bf16 {vr(O,16)}, {vr(V+4,4)}, {vr(T+8,8)}, v5")
                lg.issue(f"ds_read_b128 {vr(V+4,4)}, {at(u,3072)}", "V1")
            elif ch == "L":
                P(f"v_smfmac_f32_16x16x64_bf16 {vr(LS,4)}, {vr(ONES,4)}, {vr(T+8,8)}, v5")
                if u % 2 == 0:
                    P("s_cmp_gt_u32 s61, 31")
                    P(f"s_cbranch_scc1 AT_TAIL{u}")
                    P("s_cmp_lg_u32 s53, -1")
                    P(f"s_cbranch_scc1 AT_POLL{u}")
                    P.label(f"AT_BACK{u}")
                    if not opt.get("nowait"): P("s_waitcnt vmcnt(6)")
                    if not opt.get("nobar"): P("s_barrier")
                    P("s_mov_b32 m0, s52")
                    if u == 0:
                        P("s_add_u32 s52, s52, 0x4000"); P(f"s_cmp_ge_u32 s52, {U[4]+32768}"); P("s_cselect_b32 s3, 0x18000, 0"); P("s_sub_u32 s52, s52, s3")
                    else: P("s_add_u32 s52, s52, 0x4000")
                    if not opt.get("nodma"):
                        P("buffer_load_dwordx4 v4, s[40:43], 0 offen sc1 lds")
                        P("buffer_load_dwordx4 v4, s[40:43], 0 offen offset:1024 sc1 lds")
                    P("v_add_u32 v4, 0x2000, v4")
                    P.label(f"AT_CONT{u}")
                    P("s_add_u32 s61, s61, 1")
            elif ch == "M":
                lg.need("K0")
                P(f"{M32} {vr(T,16)}, {vr(K,4)}, {vr(Q,4)}, {vr(C,16)}")
                lg.issue(f"ds_read_b128 {vr(K,4)}, {at(u+2,0)}", "K0")
            elif ch == "N":
                lg.need("K1")
                P(f"{M32} {vr(T,16)}, {vr(K+4,4)}, {vr(Q+4,4)}, {vr(T,16)}")
                lg.issue(f"ds_read_b128 {vr(K+4,4)}, {at(u+2,1024)}", "K1")
            elif ch == "p":
                lg.need("V0")
                P(f"v_smfmac_f32_32x32x32_bf16 {vr(O,16)}, {vr(V,4)}, {vr(S,8)}, v5")
                lg.issue(f"ds_read_b128 {vr(V,4)}, {at(u+1,2048)}", "V0")
                if u == 3:
                    P("s_cmp_eq_u32 s63, 2"); P("s_cselect_b32 s3, -2, 1"); P("s_lshl_b32 s3, s3, 15"); P("s_add_u32 s63, s63, 1"); P("s_cmp_eq_u32 s63, 3"); P("s_cselect_b32 s63, 0, s63")
                    P("v_mov_b32 v2, v3")
                    P("v_add_u32 v3, s3, v3")
            elif ch == "l":
                P(f"v_smfmac_f32_16x16x64_bf16 {vr(LS,4)}, {vr(ONES,4)}, {vr(S,8)}, v5")
        assert e == 16
    assert lg.q == q0, (lg.q, q0)
    P("s_cmp_lg_u32 s61, 37")
    P("s_cbranch_scc1 AT_LOOP")
    P("s_branch AT_DONE")
    for u in (0, 2):
        P.label(f"AT_TAIL{u}")
        P("s_waitcnt vmcnt(0)")
        P("s_barrier")
        P(f"s_branch AT_CONT{u}")
        P.label(f"AT_POLL{u}")
        P("s_lshl_b32 s62, 1, s61")
        spin(P, KLOAD, kv_ok("s62"))
        P(KLOAD)
        P(f"s_branch AT_BACK{u}")
    P.label("AT_DONE")
    lg.need("V1")
    P(f"v_smfmac_f32_32x32x32_bf16 {vr(O,16)}, {vr(V+4,4)}, {vr(SB+8,8)}, v5")
    P(f"v_smfmac_f32_16x16x64_bf16 {vr(LS,4)}, {vr(ONES,4)}, {vr(SB+8,8)}, v5")
    lg.drain()
    P("; TS 12")
    vm = VM(P)
    TLOAD = f"buffer_load_dwordx2 {vr(TV,2)}, v{TA_}, {RWS}, 0 offen sc1"
    vm.issue(TLOAD, "TF")
    P(f"v_add_f32 v6, |v{O}|, |v{O+1}|"); P(f"v_add_f32 v7, |v{O+2}|, |v{O+3}|")
    for i in range(4, 16, 2):
        P(f"v_add_f32 v6, v6, |v{O+i}|"); P(f"v_add_f32 v7, v7, |v{O+i+1}|")
    P("v_add_f32 v6, v6, v7")
    P(f"s_mov_b32 s3, {f32hex(2.0**-104)}"); P(f"s_mov_b32 s61, {f32hex(2.0**120)}")
    P("v_cmp_lt_f32 s[52:53], s3, v6"); P("v_cmp_gt_f32 s[62:63], s61, v6"); P(f"v_cmp_gt_f32 vcc, s61, v{LS}")
    P("s_and_b64 s[52:53], s[52:53], s[62:63]"); P("s_and_b64 s[52:53], s[52:53], vcc")
    if opt.get("force_slow"): P("s_mov_b64 s[52:53], 0")
    P("s_cmp_eq_u64 s[52:53], -1")
    P("s_cbranch_scc1 AT_FIN")
    P("v_mov_b32 v6, 0xff800000"); P("s_mov_b32 s3, s65"); P("s_add_u32 s61, s65, 0x40000")
    P.label("AT_MP")
    P(f"buffer_load_dwordx4 {vr(K,4)}, v1, s[40:43], s3 offen sc1"); P(f"buffer_load_dwordx4 {vr(K+4,4)}, v1, s[40:43], s3 offen offset:1024 sc1")
    P("s_waitcnt vmcnt(0)")
    P(f"{M32} {vr(SA,16)}, {vr(K,4)}, {vr(Q,4)}, 0"); P(f"{M32} {vr(SA,16)}, {vr(K+4,4)}, {vr(Q+4,4)}, {vr(SA,16)}")
    for i in range(8): P(f"v_max3_f32 v6, v6, v{SA+2*i}, v{SA+2*i+1}")
    P("s_add_u32 s3, s3, 4096"); P("s_cmp_lg_u32 s3, s61"); P("s_cbranch_scc1 AT_MP")
    P("v_mov_b32 v7, v6"); P("v_permlane32_swap_b32 v6, v7"); P("v_max_f32 v6, v6, v7")
    for i in range(16): P(f"v_sub_f32 v{C+i}, 0, v6")
    for i in range(16): P(f"v_mov_b32 v{O+i}, 0")
    for i in range(4): P(f"v_mov_b32 v{LS+i}, 0")
    P("s_mov_b32 s3, s65")
    P.label("AT_SL")
    for i, r in enumerate((K, K + 4, V, V + 4)): P(f"buffer_load_dwordx4 {vr(r,4)}, v1, s[40:43], s3 offen offset:{1024*i} sc1")
    P("s_waitcnt vmcnt(0)")
    P(f"{M32} {vr(SA,16)}, {vr(K,4)}, {vr(Q,4)}, {vr(C,16)}"); P(f"{M32} {vr(SA,16)}, {vr(K+4,4)}, {vr(Q+4,4)}, {vr(SA,16)}")
    for i in range(16): P(f"v_exp_f32 v{SA+i}, v{SA+i}")
    P(f"v_smfmac_f32_32x32x32_bf16 {vr(O,16)}, {vr(V,4)}, {vr(SA,8)}, v5"); P(f"v_smfmac_f32_16x16x64_bf16 {vr(LS,4)}, {vr(ONES,4)}, {vr(SA,8)}, v5")
    P(f"v_smfmac_f32_32x32x32_bf16 {vr(O,16)}, {vr(V+4,4)}, {vr(SA+8,8)}, v5"); P(f"v_smfmac_f32_16x16x64_bf16 {vr(LS,4)}, {vr(ONES,4)}, {vr(SA+8,8)}, v5")
    P("s_nop 15")
    P("s_add_u32 s3, s3, 4096"); P("s_cmp_lg_u32 s3, s61"); P("s_cbranch_scc1 AT_SL")
    P.label("AT_FIN")
    P(f"v_rcp_f32 v6, v{LS}")
    P("s_lshl_b32 s3, s64, 11"); P(f"s_add_u32 s3, s3, {WS_OF}")
    for i in range(16): P(f"v_mul_f32 v{O+i}, v6, v{O+i}")
    for i in range(8): P(f"v_cvt_pk_bf16_f32 v{SA+i}, v{O+2*i}, v{O+2*i+1}")
    vm.issue(f"buffer_store_dwordx4 {vr(SA,4)}, v1, {RWS}, s3 offen sc1", "OS")
    vm.issue(f"buffer_store_dwordx4 {vr(SA+4,4)}, v1, {RWS}, s3 offen offset:1024 sc1", "OS")
    P("s_lshl_b32 s64, s64, 3"); P(f"s_add_u32 s64, s64, {FL4}")
    return vm, TLOAD

def tail(P, opt, vm, TLOAD):
    T = 128
    AC, AF, PA, RW, DO = 16, 32, 44, 52, 56
    CJ = 64
    P("s_barrier")
    P("; TS 13")
    ws_dma(P, vm, 2); ws_dma(P, vm, 3)
    vm.need("TF")
    spin(P, TLOAD, flags_ok(P, TV))
    for i in range(32):
        if i % 4 == 0 and i: P("s_add_u32 s60, s60, 4096")
        vm.issue(f"buffer_load_dwordx4 {vr(T+4*i,4)}, v1, {RWS}, s60 offen offset:{1024*(i%4)} sc1", f"T{i}")
        if i == 7:
            P("s_or_b32 s3, s54, s56"); P("s_lshl_b32 s3, s3, 30"); P("s_lshl_b32 s61, s58, 7"); P("s_add_u32 s3, s3, s61"); P(f"s_add_u32 s3, s3, {SM_G}")
            P("v_and_b32 v2, 31, v0"); P("v_lshlrev_b32 v2, 2, v2"); P("v_add_u32 v2, s3, v2")
            vm.issue(f"buffer_load_dword v{RW}, v2, {RWS}, 0 offen sc1", "GE")
            vm.need("OS")
            P(f"v_mov_b32 v6, s32"); P("v_mov_b32 v7, s33"); P("v_mov_b32 v8, 0")
            vm.issue(f"buffer_store_dwordx2 v[6:7], v8, {RWS}, s64 offen sc1", "F4")
            P("; TS 14")
    P(f"s_and_b32 s61, {S_XCD}, 1"); P("s_lshl_b32 s61, s61, 3"); P(f"s_lshr_b32 s3, {S_J}, 3"); P("s_lshl_b32 s3, s3, 1"); P("s_add_u32 s61, s61, s3")
    P(f"s_bfe_u32 s3, {S_XCD}, 0x10001"); P("s_add_u32 s61, s61, s3")
    P(f"s_lshr_b32 s62, {S_XCD}, 2"); P("s_lshl_b32 s62, s62, 3"); P(f"s_and_b32 s3, {S_J}, 7"); P("s_add_u32 s62, s62, s3")
    srd(P, 40, P_WO, 2 * MB); srd(P, 48, P_OUT, 8 * MB)
    P("v_lshrrev_b32 v2, 3, v0"); P("v_and_b32 v3, 7, v0"); P("v_bfe_u32 v4, v0, 4, 1"); P("v_lshlrev_b32 v4, 2, v4"); P("v_xor_b32 v3, v3, v4")
    P("v_lshlrev_b32 v3, 4, v3"); P("v_lshl_add_u32 v3, v2, 11, v3")
    P("s_lshl_b32 s3, s54, 20"); P(f"s_lshl_b32 s63, {S_WL}, 16"); P("s_add_u32 s3, s3, s63"); P("s_lshl_b32 s63, s62, 7"); P("s_add_u32 s3, s3, s63")
    P(f"v_add_u32 v{DO}, s3, v3")
    for n in range(1, 4): P(f"v_add_u32 v{DO+n}, {n*(16384-1024)}, v{DO}")
    P(f"s_lshl_b32 s63, {S_W}, 12")
    def wo_dma(o):
        P(f"s_add_u32 m0, s63, {U[WOU[o]]}"); P(f"s_mov_b32 s3, {o*0x40000}")
        for n in range(4): vm.issue(f"buffer_load_dwordx4 v{DO+n}, s[40:43], s3 offen offset:{1024*n} lds", f"WO{o}")
    wo_dma(0)
    P(f"s_lshl_b32 s64, s2, 2"); P(f"s_add_u32 s64, s64, {S_W}")
    P("s_cmp_eq_u32 s64, 4"); P("s_movk_i32 s3, 1024"); P("s_cselect_b32 s3, s3, 0x10000")
    P(f"s_cmp_lt_u32 {S_W}, 4"); P("s_cselect_b32 s64, s64, s3")
    srd(P, 44, P_WSR, 8 * MB)
    P("s_lshl_b32 s3, s64, 12"); P("v_lshlrev_b32 v2, 5, v0"); P("v_add_u32 v3, s3, v2")
    vm.issue(f"buffer_load_dwordx4 {vr(CJ,4)}, v3, s[44:47], 0 offen", "CW"); vm.issue(f"buffer_load_dwordx4 {vr(CJ+4,4)}, v3, s[44:47], 0 offen offset:16", "CW")
    P(f"v_lshlrev_b32 v{TA_}, 3, v0"); P(f"v_add_u32 v{TA_}, {FL3}, v{TA_}")
    vm.issue(TLOAD, "CF")
    P("s_lshl_b32 s65, s61, 2"); P(f"s_add_u32 s65, s65, {S_WL}")
    P("s_lshl_b32 s3, s65, 1"); P("s_add_u32 s3, s3, s54"); P("s_lshl_b32 s60, s3, 15"); P(f"s_add_u32 s60, s60, {WS_OF}"); P("s_lshl_b32 s3, s3, 7"); P(f"s_add_u32 s3, s3, {FL4}")
    P(f"v_and_b32 v{FA}, 15, v0"); P(f"v_lshlrev_b32 v{FA}, 3, v{FA}"); P(f"v_add_u32 v{FA}, s3, v{FA}")
    OLOAD = f"buffer_load_dwordx2 {vr(FV,2)}, v{FA}, {RWS}, 0 offen sc1"
    P("s_lshl_b32 s52, s54, 1"); P("s_add_u32 s52, s52, s56")
    P("s_lshl_b32 s3, s52, 3"); P("v_xor_b32 v2, s3, v0")
    P("v_and_b32 v3, 31, v2"); P("v_lshrrev_b32 v4, 5, v2"); P("v_and_b32 v2, 15, v2"); P("v_xor_b32 v4, v4, v2"); P("v_lshlrev_b32 v4, 4, v4")
    P(f"v_lshl_add_u32 v{PA}, v3, 8, v4"); P("s_lshl_b32 s3, s52, 13"); P(f"v_add_u32 v{PA}, s3, v{PA}")
    for k in range(1, 8): P(f"v_xor_b32 v{PA+k}, {k<<5}, v{PA}")
    P("s_or_b32 s53, s57, s54")
    P("s_mov_b32 s59, 0xbf803f80")
    vm.need("GE")
    for i in range(16):
        if i & 1: P(f"v_sub_f32 v{AC+i}, 0, v{RW}")
        else:     P(f"v_mov_b32 v{AC+i}, v{RW}")
    P("v_cmp_gt_u32 vcc, 32, v0"); P(f"v_cndmask_b32 v{RW}, 0, v{RW}, vcc")
    lg = LG(P)
    def rd(i):
        r, k = i >> 3, i & 7
        lg.issue(f"ds_read_b128 {vr(AF+4*(i%3),4)}, v{PA+k} offset:{32768*(r&1)}", f"A{i}")
        if r == 1: P(f"v_add_u32 v{PA+k}, {U[3]}, v{PA+k}")
    rd(0); rd(1)
    for i in range(32):
        r, k = i >> 3, i & 7
        if k == 2 and r >= 1:
            P("s_barrier")
            wo_dma(r)
        if i + 2 < 32: rd(i + 2)
        lg.need(f"A{i}"); vm.need(f"T{i}")
        P(f"{M32} {vr(AC,16)}, {vr(AF+4*(i%3),4)}, {vr(T+4*i,4)}, {vr(AC,16)}")
        if k == 7:
            P("s_cmp_lg_u32 s53, 0"); P(f"s_cbranch_scc1 G2_NR{r}")
            for j in range(32): P(f"v_dot2_f32_bf16 v{RW}, v{T+32*r+j}, s59, v{RW}")
            P.label(f"G2_NR{r}")
    P("; TS 15")
    vm.issue(OLOAD, "OF")
    vm.need("CF")
    spin(P, TLOAD, flags_ok(P, TV))
    P("v_lshlrev_b32 v2, 5, v0"); P(f"s_mov_b32 s3, {SM_C}")
    vm.issue(f"buffer_load_dwordx4 {vr(CJ+8,4)}, v2, {RWS}, s3 offen sc1", "CC"); vm.issue(f"buffer_load_dwordx4 {vr(CJ+12,4)}, v2, {RWS}, s3 offen offset:16 sc1", "CC")
    P(f"v_mov_b32 v2, {SM_G+2048}")
    vm.issue(f"buffer_load_dword v{CJ+16}, v2, {RWS}, 0 offen sc1", "CC")
    P("s_barrier")
    for q in range(1, 4):
        P(f"s_xor_b32 s3, {S_W}, {(q & 1) | ((q >> 1) << 2)}"); P("s_mul_i32 s3, s3, 3072"); P(f"s_add_u32 s3, s3, {U[4] + (q-1)*1024}")
        P(f"v_add_u32 v{1+q}, s3, v1")
        lg.issue(f"ds_write_b128 v{1+q}, {vr(AC+4*q,4)}", "XW")
    P(f"s_lshl_b32 s3, {S_W}, 8"); P(f"s_add_u32 s3, s3, {U[4]+24576}"); P("v_lshlrev_b32 v5, 2, v0"); P("v_add_u32 v5, s3, v5")
    lg.issue(f"ds_write_b32 v5, v{RW}", "XW")
    P(f"s_mul_i32 s3, {S_W}, 3072"); P(f"s_add_u32 s3, s3, {U[4]}"); P("v_add_u32 v2, s3, v1")
    lg.drain()
    P("s_barrier")
    for q in range(3): lg.issue(f"ds_read_b128 {vr(AC+4+4*q,4)}, v2 offset:{1024*q}", "XR")
    vm.need("OF")
    spin(P, OLOAD, flags_ok(P, FV))
    P("; TS 16")
    for i in range(32):
        if i % 4 == 0 and i: P("s_add_u32 s60, s60, 4096")
        vm.issue(f"buffer_load_dwordx4 {vr(T+4*i,4)}, v1, {RWS}, s60 offen offset:{1024*(i%4)} sc1", f"O{i}")
    P("v_and_b32 v3, 31, v0"); P("s_lshl_b32 s3, s58, 5"); P("v_add_u32 v3, s3, v3")
    P("v_lshlrev_b32 v4, 1, v3"); P("v_sub_u32 v5, 2048, v4"); P(f"v_mov_b32 v6, {OOB}"); P("v_cmp_eq_u32 vcc, 0, v3"); P("v_cndmask_b32 v5, v5, v6, vcc")
    P("v_lshrrev_b32 v6, 5, v0"); P("v_lshlrev_b32 v6, 14, v6")
    P("s_lshl_b32 s3, s57, 17"); P("s_lshl_b32 s59, s52, 15"); P("s_add_u32 s3, s3, s59"); P("v_add_u32 v6, s3, v6")
    P(f"v_sub_u32 v7, {8*MB}, v6")
    P("v_add_u32 v8, v6, v4"); P("v_add_u32 v9, v7, v5"); P("v_add_u32 v10, v7, v4"); P("v_add_u32 v11, v6, v5")
    P("s_lshl_b32 s59, s54, 31")
    lg.need("XR")
    for r in range(4):
        P(f"v_add_f32 v{AC+r}, v{AC+r}, v{AC+4+r}")
        P(f"v_add_f32 v{AC+8+r}, v{AC+8+r}, v{AC+12+r}")
        P(f"v_sub_f32 v12, v{AC+r}, v{AC+8+r}")
        P(f"v_add_f32 v13, v{AC+r}, v{AC+8+r}")
        P("v_xor_b32 v12, s59, v12")
        P(f"v_cvt_pk_bf16_f32 v{AF+r}, v12, v13")
        if r:
            a = 84 + 4 * r
            P(f"v_add_u32 v{a}, {4096*r}, v8"); P(f"v_subrev_u32 v{a+1}, {4096*r}, v9"); P(f"v_subrev_u32 v{a+2}, {4096*r}, v10"); P(f"v_add_u32 v{a+3}, {4096*r}, v11")
        else: a = 8
        vm.issue(f"buffer_store_short v{AF+r}, v{a}, s[48:51], 0 offen"); vm.issue(f"buffer_store_short v{AF+r}, v{a+1}, s[48:51], 0 offen")
        vm.issue(f"buffer_store_short_d16_hi v{AF+r}, v{a+2}, s[48:51], 0 offen"); vm.issue(f"buffer_store_short_d16_hi v{AF+r}, v{a+3}, s[48:51], 0 offen")
    P("s_or_b32 s53, s53, s56"); P("s_cmp_lg_u32 s53, 0"); P("s_cbranch_scc1 G2_END")
    P("v_and_b32 v3, 31, v0"); P("v_lshlrev_b32 v3, 2, v3"); P(f"s_lshl_b32 s3, {S_W}, 8"); P(f"s_add_u32 s3, s3, {U[4]+24576}"); P("v_add_u32 v3, s3, v3")
    for i in range(4): P(f"ds_read_b32 v{12+i}, v3 offset:{128*i}")
    P(f"v_add_u32 v8, {4*MB}, v4"); P(f"v_add_u32 v9, {4*MB}, v5")
    P("s_waitcnt lgkmcnt(0)")
    P("v_add_f32 v12, v12, v13"); P("v_add_f32 v14, v14, v15"); P("v_add_f32 v12, v12, v14"); P("v_cvt_pk_bf16_f32 v12, v12, v12")
    P("buffer_store_short v12, v8, s[48:51], 0 offen"); P("buffer_store_short v12, v9, s[48:51], 0 offen")
    P.label("G2_END")
    vm.need("CC", "CW")
    P("s_lshl_b32 s3, s64, 31"); P(f"v_xor_b32 v{CJ+16}, s3, v{CJ+16}")
    P("v_mov_b32 v2, 0")
    for r in range(8): P(f"v_dot2_f32_bf16 v2, v{CJ+r}, v{CJ+8+r}, v2")
    dpp_sum(P, 2)
    P(f"v_add_f32 v2, v2, v{CJ+16}"); P("v_cvt_pk_bf16_f32 v2, v2, v2")
    P("s_lshl_b32 s3, s64, 12"); P("s_add_u32 s59, s3, 1024"); P(f"s_sub_u32 s3, {8*MB+1024}, s3")
    P("v_mov_b32 v3, s59"); P("v_mov_b32 v4, s3"); P(f"v_mov_b32 v5, {OOB}"); P("v_cmp_eq_u32 vcc, 63, v0"); P("v_cndmask_b32 v3, v5, v3, vcc"); P("v_cndmask_b32 v4, v5, v4, vcc")
    vm.issue("buffer_store_short v2, v3, s[48:51], 0 offen"); vm.issue("buffer_store_short v2, v4, s[48:51], 0 offen")
    A0, A1 = 32, 48
    P("v_lshrrev_b32 v2, 5, v0"); P("v_bfe_u32 v3, v0, 2, 2"); P("v_lshl_add_u32 v2, v2, 2, v3"); P("v_lshlrev_b32 v2, 7, v2")
    P("v_bfe_u32 v3, v0, 3, 1"); P("v_xor_b32 v3, s54, v3"); P("v_lshl_add_u32 v2, v3, 6, v2")
    P("v_bfe_u32 v3, v0, 4, 1"); P("v_lshl_add_u32 v2, v3, 5, v2")
    P("v_and_b32 v3, 3, v0"); P("v_lshl_add_u32 v2, v3, 3, v2")
    P("s_lshl_b32 s3, s54, 14"); P("v_add_u32 v2, s3, v2"); P("v_xor_b32 v3, 64, v2")
    P("v_add_u32 v4, 0x10000, v2"); P("v_add_u32 v5, 0x10000, v3")
    vm.need("WO3")
    P("s_barrier")
    P("; TS 17")
    def ord_(i):
        o, k = i >> 3, i & 7
        f = QF[i % 3]; u = WOU[o]
        b = 2 + 2 * (u >> 1); off = (u & 1) * 32768 + k * 2048
        return [(f"ds_read_b64_tr_b16 {vr(f,2)}, v{b} offset:{off}", f"F{i}a"), (f"ds_read_b64_tr_b16 {vr(f+2,2)}, v{b} offset:{off+1024}", f"F{i}a"),
                (f"ds_read_b64_tr_b16 {vr(f+4,2)}, v{b+1} offset:{off}", f"F{i}b"), (f"ds_read_b64_tr_b16 {vr(f+6,2)}, v{b+1} offset:{off+1024}", f"F{i}b")]
    for r in ord_(0) + ord_(1): lg.issue(*r)
    for i in range(32):
        R = ord_(i + 2) if i + 2 < 32 else []
        f = QF[i % 3]
        for half in range(2):
            lg.need(f"F{i}" + "ab"[half])
            if half == 0: vm.need(f"O{i}")
            a = (A0, A1)[half]
            P(f"{M32} {vr(a,16)}, {vr(f+4*half,4)}, {vr(T+4*i,4)}, {vr(a,16) if i else 0}")
            for r in R[2 * half:2 * half + 2]: lg.issue(*r)
    P("; TS 18")
    P(f"s_lshl_b32 s3, {S_W}, 12"); P(f"s_add_u32 s3, s3, {U[4]}"); P("v_add_u32 v2, s3, v1"); P("v_xor_b32 v3, 0x4000, v2")
    for g in range(4): lg.issue(f"ds_write_b128 v2, {vr(A1+4*g,4)} offset:{1024*g}", "XW")
    P("v_and_b32 v4, 31, v0"); P("v_lshrrev_b32 v5, 5, v0"); P("v_lshlrev_b32 v5, 4, v5"); P("v_lshl_add_u32 v4, v4, 12, v5")
    P("s_lshl_b32 s3, s65, 17"); P("s_lshl_b32 s59, s62, 7"); P("s_add_u32 s3, s3, s59"); P("s_lshl_b32 s59, s54, 6"); P("s_add_u32 s3, s3, s59"); P("s_add_u32 s3, s3, 2048")
    lg.drain()
    P("s_barrier")
    for g in range(4): lg.issue(f"ds_read_b128 {vr(A1+4*g,4)}, v3 offset:{1024*g}", f"XR{g}")
    for g in range(4):
        lg.need(f"XR{g}")
        for i in range(4): P(f"v_add_f32 v{A0+4*g+i}, v{A0+4*g+i}, v{A1+4*g+i}")
        P(f"v_cvt_pk_bf16_f32 v{8+2*g}, v{A0+4*g}, v{A0+4*g+1}"); P(f"v_cvt_pk_bf16_f32 v{9+2*g}, v{A0+4*g+2}, v{A0+4*g+3}")
        if g & 1:
            t = 8 + 4 * (g >> 1)
            P(f"v_permlane32_swap_b32 v{t}, v{t+2}"); P(f"v_permlane32_swap_b32 v{t+1}, v{t+3}")
            P(f"buffer_store_dwordx4 {vr(t,4)}, v4, s[48:51], s3 offen offset:{32*(g>>1)}")

def fused(opt):
    P = Prog()
    sk, sv = opt.get("skew", (5, 10))
    P("s_cmp_ge_u32 s2, 256"); P("s_cbranch_scc1 F_END")
    P("s_load_dwordx16 s[4:19], s[0:1], 0")
    P("s_load_dwordx4 s[20:23], s[0:1], 64")
    P("s_load_dwordx2 s[24:25], s[0:1], 80")
    if opt.get("cpf", 1):
        P("s_getpc_b64 s[40:41]"); P("s_mov_b32 s42, CODE_BYTES"); P("s_mov_b32 s43, 0x00020000")
        P("s_lshl_b32 s3, s2, 4"); P("s_and_b32 s3, s3, 128")
        P("v_lshlrev_b32 v1, 8, v0")
        P("buffer_load_dword v24, v1, s[40:43], s3 offen")
    P("v_lshrrev_b32 v1, 6, v0"); P("v_and_b32 v0, 63, v0"); P(f"v_readfirstlane_b32 {S_W}, v1")
    P(f"s_and_b32 {S_XCD}, s2, 7"); P(f"s_lshr_b32 {S_J}, s2, 3")
    P(f"s_and_b32 s3, {S_XCD}, 1"); P(f"s_lshr_b32 s52, {S_J}, 2")
    P(f"s_lshl_b32 {S_RB}, s3, 3"); P(f"s_add_u32 {S_RB}, {S_RB}, s52")
    P(f"s_lshl_b32 {S_PRB}, s52, 1"); P(f"s_add_u32 {S_PRB}, {S_PRB}, s3")
    P(f"s_lshr_b32 {S_CB}, {S_XCD}, 1"); P(f"s_lshl_b32 {S_CB}, {S_CB}, 2"); P(f"s_and_b32 s3, {S_J}, 3"); P(f"s_add_u32 {S_CB}, {S_CB}, s3")
    P(f"s_add_u32 s52, {S_CB}, {sk}"); P("s_and_b32 s52, s52, 15")
    P(f"s_add_u32 s53, {S_CB}, {sv}"); P("s_and_b32 s53, s53, 15")
    P(f"s_and_b32 {S_WL}, {S_W}, 3")
    P(f"s_movk_i32 {S_TMO}, {opt.get('tmo', 20000)}")
    P(f"s_cmp_ge_u32 {S_W}, 4"); P("s_cbranch_scc1 F_L")
    phase1_C(P, opt)
    P.label("F_L")
    phase1_L(P, opt)
    vm, TLOAD = attention(P, opt)
    tail(P, opt, vm, TLOAD)
    P.label("F_END")
    P("s_endpgm")
    return P.L

def prof(L):
    pre = ["s_memrealtime s[66:67]", "s_memtime s[68:69]", "s_waitcnt lgkmcnt(0)", "s_mov_b32 s67, s68"]
    pre += [f"s_mov_b32 s{70+i}, 0" for i in range(24)]
    body = []
    for x in L:
        if x == "s_endpgm": continue
        if x == "F_END:": body.append("s_branch F_PROF"); body.append(x); body.append("s_endpgm"); continue
        if x.startswith("; TS "):
            n = int(x.split()[2])
            body += ["s_memtime s[68:69]", "s_waitcnt lgkmcnt(0)", f"s_sub_u32 s{70+n}, s68, s67"]
        else: body.append(x)
    post = ["F_PROF:", "s_waitcnt vmcnt(0) lgkmcnt(0)", "s_memrealtime s[94:95]", "s_memtime s[68:69]", "s_mov_b64 exec, 1",
            f"s_add_u32 s40, s24, {24*MB}", "s_addc_u32 s41, s25, 0", f"s_mov_b32 s42, {MB}", "s_mov_b32 s43, 0x00020000",
            "s_lshl_b32 s3, s2, 3", f"s_add_u32 s3, s3, {S_W}", "s_lshl_b32 s3, s3, 7", "v_mov_b32 v0, s3",
            "s_waitcnt lgkmcnt(0)", "s_sub_u32 s68, s68, s67", "s_getreg_b32 s69, hwreg(HW_REG_XCC_ID)",
            "v_mov_b32 v4, s66", "v_mov_b32 v5, s94", "v_mov_b32 v6, s68", f"v_mov_b32 v7, {S_TMO}"]
    post += [f"v_mov_b32 v{8+i}, s{70+i}" for i in range(24)]
    post += [f"buffer_store_dwordx4 v[{4+4*i}:{7+4*i}], v0, s[40:43], 0 offen offset:{16*i}" for i in range(7)]
    post += ["s_mov_b32 s44, s22", "s_mov_b32 s45, s23", "s_mov_b32 s46, 256", "s_mov_b32 s47, 0x00020000",
             "s_sub_u32 s3, s94, s32", "v_mov_b32 v40, s3", "s_sub_u32 s3, s32, s66", "s_add_u32 s3, s3, 100000", "v_mov_b32 v41, s3", "v_mov_b32 v0, 0",
             "s_lshl_b32 s3, s2, 3", f"s_add_u32 s3, s3, {S_W}", "s_cmp_lg_u32 s3, 800", "s_cbranch_scc1 F_PE"]
    for i, t in enumerate((1, 3, 6, 7, 20, 9, 11, 12, 13, 15, 17)): post += [f"v_mov_b32 v{44+i}, s{70+t}"]
    post += ["v_mov_b32 v55, s68", "buffer_store_dwordx2 v[40:41], v0, s[44:47], 0 offen offset:8"]
    post += [f"buffer_store_dwordx4 v[{44+4*i}:{47+4*i}], v0, s[44:47], 0 offen offset:{16+16*i}" for i in range(3)]
    post += ["F_PE:", "s_endpgm"]
    return pre + body + post

REF = "concat_heads__spectral_fnet__mha_block__prompt.s.ref"
NAME = "concat_heads__spectral_fnet__mha_block__prompt_kernel"
def build(opt, verbose=False):
    head = []
    for line in open(REF):
        if line.startswith("; @launch"): break
        head.append(line.rstrip("\n"))
    L = fused(opt)
    if opt.get("prof"): L = prof(L)
    out = head + ["; @launch grid=(256,1,1) block=(512,1,1) lds=163840", '.amdgcn_target "amdgcn-amd-amdhsa--gfx950"', ".text", khead(NAME)]
    rep = []
    out.append(fmt(pad(L, rep)))
    out.append("F_CODE_END:")
    out.append(f".set CODE_BYTES, F_CODE_END - {NAME} - 512")
    if verbose:
        print(len(L), "instr; nops:", sum(k for k, _ in rep))
        for k, s in rep: print("   ", k, s)
    out.append('.section .rodata,"a"')
    out.append(kdesc(NAME, 256, 96))
    return "\n".join(out) + "\n"

if __name__ == "__main__":
    import json
    opt = json.loads(sys.argv[2]) if len(sys.argv) > 2 else {}
    open(sys.argv[1], "w").write(build(opt, verbose=True))
```

```python
from fcommon import *
import fused as F1M
from fused import lit, w_addr, x_addr, g1_ids, prof, REF, NAME

RET, ACC = 128, 64
QF = [8, 16, 24]
QO, QX, QP = 32, 48, 64
FA, FV, WD, GAD, FOA, XSA, L32, GWA, F1A = 104, 106, 108, 112, 116, 122, 123, 124, 125
S_LO = "s63"
LINK = "s[96:97]"
KLOAD = f"buffer_load_dwordx2 {vr(FV,2)}, v{FA}, {RWS}, 0 offen sc1"

def qg(P, opt, role, vm, lg, hooks):
    barstep = opt.get("barC", 0) if role == "C" else opt.get("barL", 6)
    def reads(i):
        f = QF[i % 3]; o = (i & 7) * 2048
        return [(f"ds_read_b64_tr_b16 {vr(f,2)}, v2 offset:{o}", f"F{i}a"), (f"ds_read_b64_tr_b16 {vr(f+2,2)}, v2 offset:{o+512}", f"F{i}a"),
                (f"ds_read_b64_tr_b16 {vr(f+4,2)}, v3 offset:{o}", f"F{i}b"), (f"ds_read_b64_tr_b16 {vr(f+6,2)}, v3 offset:{o+512}", f"F{i}b")]
    for i in range(32):
        n = 16 + (i >> 3)
        if (i & 7) == barstep:
            if f"pre{n}" in hooks: hooks[f"pre{n}"]()
            P("s_barrier")
            if opt.get("tsq"): P(f"; TS {n+3}")
        if i + 2 < 32 and ((i + 2) & 7) == 0:
            P("v_add_u32 v2, 0x8000, v2"); P("v_add_u32 v3, 0x8000, v3")
        R = reads(i + 2) if i + 2 < 32 else []
        f = QF[i % 3]
        for half in ((0, 1) if i < 31 else (1, 0)):
            lg.need(f"F{i}" + "ab"[half])
            a = (QO, QX)[half]
            P(f"{M32} {vr(a,16)}, {vr(f+4*half,4)}, {vr(RET+4*i,4)}, {vr(a,16) if i else 0}")
            for r in R[half * 2:half * 2 + 2]: lg.issue(*r)
        for h in hooks.get(i, []): h()

def setup_hooks(P, opt):
    def h_ids():
        g1_ids(P)
        P(f"s_lshl_b32 s61, s2, 2"); P(f"s_add_u32 s61, s61, {S_WL}")
        P(f"s_cmp_lt_u32 {S_W}, 4"); P(f"s_cselect_b32 {S_LO}, {OOB}, 0")
        P(f"s_lshr_b32 s62, {S_W}, 2")
        P(f"s_lshl_b32 s64, {S_RB}, 2"); P(f"s_add_u32 s64, s64, {S_WL}"); P("s_lshl_b32 s64, s64, 4"); P(f"s_add_u32 s64, s64, {S_CB}"); P("s_lshl_b32 s64, s64, 1"); P("s_add_u32 s64, s64, s62")
        P("s_lshl_b32 s65, s62, 18")
    def h_kv():
        P(f"s_and_b32 s3, {S_W}, 1"); P("s_lshl_b32 s3, s3, 4"); P(f"s_add_u32 s3, s3, {S_CB}"); P("s_lshl_b32 s3, s3, 1"); P("s_add_u32 s3, s3, s62")
        P("s_lshl_b32 s3, s3, 8"); P(f"s_add_u32 s3, s3, {FL2}")
        P(f"v_and_b32 v{FA}, 31, v0"); P(f"v_lshlrev_b32 v{FA}, 3, v{FA}"); P(f"v_add_u32 v{FA}, s3, v{FA}")
        P(f"s_lshl_b32 s3, {S_CB}, 19")
        srd(P, 40, P_WS, 512 * 1024, "s3")
        P(f"s_lshl_b32 s3, {S_WL}, 11"); P("s_add_u32 s3, s3, s65"); P("v_add_u32 v4, s3, v1")
        P(f"s_lshl_b32 s52, {S_W}, 11")
    def h_fold1():
        P("s_lshr_b32 s3, s61, 4"); P("s_lshl_b32 s3, s3, 15")
        P("v_and_b32 v5, 15, v0"); P("v_lshlrev_b32 v5, 11, v5"); P("v_add_u32 v5, s3, v5")
        P(f"v_sub_u32 v6, {4*MB}, v5")
        P("s_and_b32 s3, s61, 15"); P("s_lshl_b32 s3, s3, 6")
        P("v_and_b32 v7, 48, v0"); P("v_add_u32 v7, s3, v7")
    def h_fold2():
        P(f"v_add_u32 v{FOA}, v5, v7"); P(f"v_add_u32 v{FOA+1}, v6, v7")
        P(f"v_lshrrev_b32 v{XSA}, 9, v5"); P(f"v_add_u32 v{XSA}, {SM_X512}, v{XSA}")
        P(f"v_mov_b32 v{L32}, {OOB}"); P("v_cmp_eq_u32 vcc, 0x3f0, v7"); P(f"v_cndmask_b32 v{XSA}, v{L32}, v{XSA}, vcc")
    def h_fold3():
        P("v_cmp_eq_u32 vcc, 0, v7")
        P("v_sub_u32 v7, 2032, v7")
        P(f"v_add_u32 v{FOA+2}, v5, v7"); P(f"v_add_u32 v{FOA+3}, v6, v7")
        P("v_add_u32 v7, 16, v7"); P(f"v_cndmask_b32 v7, v7, v{L32}, vcc")
        P(f"v_add_u32 v{FOA+4}, v5, v7"); P(f"v_add_u32 v{FOA+5}, v6, v7")
    def h_misc():
        P(f"v_lshlrev_b32 v{L32}, 5, v0"); P("s_lshl_b32 s3, s61, 11"); P(f"v_add_u32 v{GWA}, s3, v{L32}")
        P(f"v_and_b32 v{F1A}, 15, v0"); P(f"v_lshlrev_b32 v{F1A}, 3, v{F1A}"); P("s_lshl_b32 s3, s55, 7"); P(f"s_add_u32 s3, s3, {FL1}"); P(f"v_add_u32 v{F1A}, s3, v{F1A}")
    def h_wd1():
        P("s_lshl_b32 s56, s54, 16"); P(f"s_and_b32 s3, {S_WL}, 1"); P("s_lshl_b32 s3, s3, 8"); P("s_add_u32 s56, s56, s3"); P("s_lshl_b32 s3, s62, 15"); P("s_add_u32 s56, s56, s3")
        P("v_lshrrev_b32 v5, 4, v0"); P("v_and_b32 v6, 15, v0"); P("v_xor_b32 v7, v6, v5"); P("v_lshlrev_b32 v7, 4, v7")
        P(f"v_lshl_add_u32 v{GAD}, v6, 8, v7")
        P("v_lshl_add_u32 v7, v5, 11, v7"); P(f"v_add_u32 v{WD}, s56, v7")
    def h_wd2():
        for n in range(1, 4):
            P(f"v_xor_b32 v{WD+n}, {n<<6}, v{WD}"); P(f"v_add_u32 v{WD+n}, {(4*n<<11) - 1024*n}, v{WD+n}")
        P(f"s_lshl_b32 s57, {S_WL}, 13"); P("s_lshl_b32 s3, s62, 12"); P("s_add_u32 s57, s57, s3")
    def h_g1a():
        P("s_lshl_b32 s3, s62, 14"); P(f"s_add_u32 s3, s3, {U[3]}"); P(f"v_add_u32 v{GAD}, s3, v{GAD}")
        for k in range(1, 4): P(f"v_xor_b32 v{GAD+k}, {k<<6}, v{GAD}")
        P(f"s_cmp_lt_u32 {S_WL}, 2")
        P(f"s_cselect_b32 s44, s{P_WDR}, s{P_WDI}"); P(f"s_cselect_b32 s45, s{P_WDR+1}, s{P_WDI+1}"); P(f"s_mov_b32 s46, {2*MB}"); P("s_mov_b32 s47, 0x00020000")
        srd(P, 48, P_AX, 4 * MB)
    return [h_ids, h_kv, h_fold1, h_fold2, h_fold3, h_misc, h_wd1, h_wd2, h_g1a]

def phase1_C(P, opt):
    XO, XT, WA = 2, 6, 10
    SET = [dict(XO=32, XT=36, WK=40, WV=44), dict(XO=48, XT=52, WK=56, WV=60)]
    vm = VM(P); lg = LG(P)
    TL = opt.get("tl", 2)
    P(f"s_lshl_b32 s3, {S_RB}, 2"); P(f"s_and_b32 s58, {S_J}, 3"); P("s_add_u32 s3, s3, s58"); P("s_lshl_b32 s3, s3, 2"); P(f"s_add_u32 s3, s3, {S_W}"); P("s_lshl_b32 s3, s3, 14")
    P("v_and_b32 v17, 7, v0"); P("v_lshlrev_b32 v17, 11, v17"); P("v_lshrrev_b32 v18, 3, v0"); P("v_lshl_add_u32 v17, v18, 7, v17"); P("v_add_u32 v17, s3, v17")
    P(f"v_mov_b32 v21, {OOB}"); P("v_cmp_gt_u32 vcc, 16, v0"); P("v_cndmask_b32 v17, v21, v17, vcc")
    P(f"s_lshr_b32 s3, {S_J}, 2"); P("s_lshl_b32 s3, s3, 2"); P(f"s_add_u32 s3, s3, {S_W}"); P("s_lshl_b32 s3, s3, 1")
    P("v_and_b32 v18, 1, v0"); P("v_add_u32 v22, s3, v18")
    P("v_bfe_u32 v18, v0, 1, 1"); P("v_lshl_add_u32 v18, v18, 6, v22"); P("v_mul_u32_u24 v18, 0x1800, v18")
    P("s_lshl_b32 s3, s52, 7"); P("s_add_u32 s3, s3, 2048"); P("s_lshl_b32 s58, s53, 7"); P("s_add_u32 s58, s58, 4096")
    P("v_mov_b32 v20, s3"); P("v_mov_b32 v23, s58"); P("v_cmp_gt_u32 vcc, 4, v0"); P("v_cndmask_b32 v20, v23, v20, vcc"); P("v_add_u32 v18, v18, v20")
    P("v_cmp_gt_u32 vcc, 8, v0"); P("v_cndmask_b32 v18, v21, v18, vcc")
    P("s_waitcnt lgkmcnt(0)")
    def touch(p):
        if p > 7: return
        vm.issue(f"buffer_load_dword v24, v17, s[40:43], 0 offen offset:{256*p}")
        P(f"s_mov_b32 s3, {p*786432}")
        vm.issue("buffer_load_dword v24, v18, s[44:47], s3 offen")
    srd(P, 40, P_BX, 4 * MB); srd(P, 44, P_WQKV, 6 * MB)
    for p_ in range(opt.get("t0", 1), TL + 1): touch(p_)
    P("v_lshrrev_b32 v19, 1, v0"); P("v_lshl_add_u32 v19, v19, 6, v22"); P("v_mul_u32_u24 v19, 0x1800, v19"); P(f"s_lshl_b32 s3, {S_CB}, 7"); P("v_add_u32 v19, s3, v19")
    x_addr(P, XO, 10)
    for k in range(4): P(f"v_xor_b32 v{XT+k}, 0x1000, v{XO+k}")
    P(f"s_and_b32 s57, {S_W}, 1")
    w_addr(P, WA, "s57")
    P(f"v_add_u32 v{WA}, 0x4000, v{WA}")
    P("v_lshlrev_b32 v1, 4, v0")
    P("v_mov_b32 v16, 0")
    srd(P, 36, P_WS, WS_SIZE); srd(P, 48, P_DBG, 256)
    P(f"s_or_b32 s3, s2, {S_W}"); P("s_cmp_lg_u32 s3, 0"); P("s_cbranch_scc1 C_NN")
    P("s_memrealtime s[58:59]"); P("s_waitcnt lgkmcnt(0)"); P("s_or_b32 s58, s58, 1")
    P("v_mov_b32 v12, s58"); P("v_mov_b32 v13, s59")
    P("buffer_store_dwordx2 v[12:13], v16, s[48:51], 0 offen sc1")
    P.label("C_NN")
    P("s_setprio 2")
    P("; TS 0")
    P("s_barrier")
    P("; TS 1")
    def xo(s, ks): return RET + 4 * (4 * (s - 8) + ks) if s >= 8 else SET[ks & 1]["XO"]
    def reads(s, ks):
        t = SET[ks & 1]; g = f"{s}_{ks}"
        return [(f"ds_read_b128 {vr(xo(s,ks),4)}, v{XO+ks}", "XO" + g),
                (f"ds_read_b64_tr_b16 {vr(t['WK'],2)}, v{WA} offset:{ks*2048}", "WK" + g),
                (f"ds_read_b64_tr_b16 {vr(t['WK']+2,2)}, v{WA} offset:{ks*2048+512}", "WK" + g),
                (f"ds_read_b128 {vr(t['XT'],4)}, v{XT+ks}", "XT" + g),
                (f"ds_read_b64_tr_b16 {vr(t['WV'],2)}, v{WA} offset:{8192+ks*2048}", "WV" + g),
                (f"ds_read_b64_tr_b16 {vr(t['WV']+2,2)}, v{WA} offset:{8192+ks*2048+512}", "WV" + g)]
    for r in reads(0, 0): lg.issue(*r)
    NLOAD = "buffer_load_dwordx2 v[12:13], v16, s[48:51], 0 offen sc1"
    for s in range(16):
        for ks in range(4):
            t = SET[ks & 1]; g = f"{s}_{ks}"
            last = ks == 3
            R = reads(s, ks + 1) if not last else (reads(s + 1, 0) if s < 15 else [])
            d = lit(32768 if s % 5 != 4 else -131072)
            for i in range(4):
                x, xt = (xo(s, ks), "XO") if i % 2 == 0 else (t["XT"], "XT")
                w = "WK" if i < 2 else "WV"
                lg.need(xt + g, w + g)
                A, B = (t[w], x) if i < 2 else (x, t[w])
                a = ACC + 16 * i
                P(f"{M32} {vr(a,16)}, {vr(A,4)}, {vr(B,4)}, {vr(a,16) if (s or ks) else 0}")
                if last and s < 15:
                    if i == 0:
                        for r in (XO, WA, XT): P(f"v_add_u32 v{r}, {d}, v{r}")
                    if i == 2:
                        for k in range(1, 4): P(f"v_add_u32 v{XO+k}, {d}, v{XO+k}"); P(f"v_add_u32 v{XT+k}, {d}, v{XT+k}")
                if i < 2:
                    for r in R[3 * i:3 * i + 3]: lg.issue(*r)
                if ks == 1 and i == 3:
                    P("s_barrier")
                    if s in (0, 4, 8, 12): P(f"; TS {2 + s // 4}")
                if ks == 2 and i == 0:
                    if s % 2 == 0: touch(TL + 1 + s // 2)
                    if s == opt.get("tq", 7): vm.issue("buffer_load_dword v24, v19, s[44:47], 0 offen")
                if s == 12 and ks == 2 and i == 2: vm.issue(NLOAD, "N")
                if s == 15 and ks == 0 and i == 2:
                    vm.need("N")
                    spin(P, NLOAD, nonce_ok(P, 12))
                    P(f"s_lshl_b32 s58, {S_PRB}, 2"); P(f"s_add_u32 s58, s58, {S_W}"); P("s_lshl_b32 s58, s58, 12")
                    P("s_lshl_b32 s59, s52, 1"); P("s_add_u32 s59, s59, s57")
                    P("s_lshl_b32 s60, s53, 1"); P("s_add_u32 s60, s60, s57")
                    P("s_lshl_b32 s61, s59, 18"); P("s_add_u32 s61, s61, s58"); P("s_xor_b32 s62, s61, 0x1000")
                    P("s_lshl_b32 s63, s60, 18"); P("s_add_u32 s63, s63, s58"); P("s_xor_b32 s64, s63, 0x1000")
                if s == 15 and ks == 1 and i == 2:
                    P("v_and_b32 v30, 0x33, v0")
                    P("v_bfe_u32 v31, v0, 2, 1"); P("v_lshl_or_b32 v30, v31, 3, v30")
                    P("v_bfe_u32 v31, v0, 3, 1"); P("v_lshl_or_b32 v30, v31, 2, v30")
                    P("v_lshlrev_b32 v30, 4, v30")
                if s == 15 and ks == 3 and i == 0:
                    P(f"s_lshl_b32 s3, s57, 6"); P(f"v_xor_b32 v2, s3, v{WA}"); P(f"v_add_u32 v2, {U[1]}, v2"); P("v_xor_b32 v3, 64, v2")
    P("; TS 6")
    for i in range(4):
        a = ACC + 16 * i
        for r in range(8): P(f"v_cvt_pk_bf16_f32 v{a+r}, v{a+2*r}, v{a+2*r+1}")
        va, off = (30, 0) if i < 2 else (1, 2048)
        vm.issue(f"buffer_store_dwordx4 {vr(a,4)}, v{va}, {RWS}, s{61+i} offen offset:{off} sc1", "KV")
        vm.issue(f"buffer_store_dwordx4 {vr(a+4,4)}, v{va}, {RWS}, s{61+i} offen offset:{off+1024} sc1", "KV")
        if i >= 2:
            f = QF[i - 2]; o = (i - 2) * 2048; q = i - 2
            lg.issue(f"ds_read_b64_tr_b16 {vr(f,2)}, v2 offset:{o}", f"F{q}a"); lg.issue(f"ds_read_b64_tr_b16 {vr(f+2,2)}, v2 offset:{o+512}", f"F{q}a")
            lg.issue(f"ds_read_b64_tr_b16 {vr(f+4,2)}, v3 offset:{o}", f"F{q}b"); lg.issue(f"ds_read_b64_tr_b16 {vr(f+6,2)}, v3 offset:{o+512}", f"F{q}b")
    P("s_setprio 0")
    P("; TS 7")
    def kvflag0():
        P("s_add_u32 s60, s60, 32"); P("s_lshl_b32 s59, s59, 8"); P("s_lshl_b32 s60, s60, 8")
        P(f"s_lshl_b32 s3, {S_PRB}, 1"); P(f"s_lshr_b32 s58, {S_W}, 1"); P("s_add_u32 s58, s3, s58"); P("s_lshl_b32 s58, s58, 3"); P(f"s_add_u32 s58, s58, {FL2}")
        P(f"v_mov_b32 v72, s59"); P(f"v_mov_b32 v73, s60"); P("v_cmp_eq_u32 vcc, 0, v0"); P(f"v_cndmask_b32 v72, v73, v72, vcc")
        P(f"v_mov_b32 v74, s32"); P(f"v_mov_b32 v75, s33")
    def kvflag():
        vm.need("KV")
        P("; TS 8")
        vm.issue(f"buffer_store_dwordx2 v[74:75], v72, {RWS}, s58 offen sc1", "FK")
    H = {0: [kvflag0]}
    for n, h in enumerate(setup_hooks(P, opt)): H.setdefault(1 + n, []).append(h)
    H.setdefault(opt.get("kvflag", 12), []).append(kvflag)
    H.setdefault(opt.get("kpC", 23), []).append(lambda: vm.issue(KLOAD, "KF"))
    qg(P, opt, "C", vm, lg, H)
    P("s_branch F_ATT")

def phase1_L(P, opt):
    vm = VM(P); lg = LG(P)
    DX, DW, XA = 2, 6, 8
    P("v_lshrrev_b32 v1, 3, v0")
    P("v_and_b32 v6, 7, v0")
    P("v_lshrrev_b32 v7, 4, v0")
    P("v_xor_b32 v8, v6, v7")
    P("v_lshlrev_b32 v8, 4, v8")
    P("v_lshl_add_u32 v8, v1, 11, v8")
    P(f"s_lshl_b32 s56, {S_RB}, 18"); P(f"s_lshl_b32 s57, {S_WL}, 16"); P("s_add_u32 s56, s56, s57")
    P("v_add_u32 v2, s56, v8")
    P("v_xor_b32 v3, 64, v2")
    P(f"v_add_u32 v3, {16384-1024}, v3")
    P(f"v_add_u32 v4, {32768-2048}, v2")
    P(f"v_add_u32 v5, {32768-2048}, v3")
    P("v_and_b32 v7, 1, v7")
    P("v_lshlrev_b32 v7, 2, v7")
    P("v_xor_b32 v6, v6, v7")
    P("v_lshlrev_b32 v6, 4, v6")
    P(f"s_lshl_b32 s56, {S_WL}, 4")
    P("v_add_u32 v1, s56, v1")
    P("v_mul_u32_u24 v1, 0x1800, v1")
    P("v_add_u32 v6, v1, v6")
    P(f"v_add_u32 v7, {8*6144-1024}, v6")
    P("s_lshl_b32 s52, s52, 7"); P("s_add_u32 s52, s52, 2048")
    P("s_lshl_b32 s53, s53, 7"); P("s_add_u32 s53, s53, 4096")
    P(f"s_lshl_b32 s58, {S_WL}, 12")
    P(f"s_lshl_b32 s59, {S_WL}, 11")
    P(f"s_lshl_b32 s60, {S_CB}, 7")
    P("s_waitcnt lgkmcnt(0)")
    srd(P, 40, P_BX, 4 * MB); srd(P, 44, P_WQKV, 6 * MB)
    def D(n):
        u = U[n % 5]; t = f"D{n}"
        if n < 16:
            P(f"s_add_u32 m0, s58, {u}"); P(f"s_movk_i32 s3, {n*128}")
            for i in range(4): vm.issue(f"buffer_load_dwordx4 v{DX+i}, s[40:43], s3 offen offset:{1024*i} lds", t)
            subs = [(16384, "s52", n), (24576, "s53", n)]
        else:
            q = n - 16
            subs = [(8192 * b, "s60", (b >> 1) * 8 + 2 * q + (b & 1)) for b in range(4)]
        for lo, sc, st in subs:
            P(f"s_add_u32 m0, s59, {u+lo}"); P(f"s_add_u32 s3, {sc}, {st*393216}")
            vm.issue(f"buffer_load_dwordx4 v{DW}, s[44:47], s3 offen lds", t)
            vm.issue(f"buffer_load_dwordx4 v{DW+1}, s[44:47], s3 offen offset:1024 lds", t)
    pre0 = opt.get("pre0", 2)
    for n in range(pre0): D(n)
    srd(P, 36, P_WS, WS_SIZE); srd(P, 48, P_DBG, 256)
    x_addr(P, XA, 18)
    P("v_lshlrev_b32 v1, 4, v0")
    P("v_mov_b32 v16, 0")
    NLOAD = "buffer_load_dwordx2 v[12:13], v16, s[48:51], 0 offen sc1"
    def ret(s):
        for ks in range(4): lg.issue(f"ds_read_b128 {vr(RET+16*s+4*ks,4)}, v{XA+ks}", "R")
        d = lit(32768 if s % 5 != 4 else -131072)
        for ks in range(4): P(f"v_add_u32 v{XA+ks}, {d}, v{XA+ks}")
    vm.need("D0")
    P("; TS 0")
    P("s_barrier")
    P("; TS 1")
    ret(0)
    for n in range(pre0, 4): D(n)
    hooks = setup_hooks(P, opt)
    for n in range(16):
        vm.need(f"D{n+1}")
        lg.drain()
        P("s_barrier")
        if n in (0, 4, 8, 12): P(f"; TS {2 + n // 4}")
        if n < 7: ret(n + 1)
        if n == 9: vm.issue(NLOAD, "N")
        D(n + 4)
        if n == 13:
            vm.need("N")
            spin(P, NLOAD, nonce_ok(P, 12))
    P("; TS 6")
    w_addr(P, 2, "1"); P(f"v_add_u32 v2, {U[1]}, v2"); P("v_xor_b32 v3, 64, v2")
    for i in range(2):
        f = QF[i]; o = i * 2048
        lg.issue(f"ds_read_b64_tr_b16 {vr(f,2)}, v2 offset:{o}", f"F{i}a"); lg.issue(f"ds_read_b64_tr_b16 {vr(f+2,2)}, v2 offset:{o+512}", f"F{i}a")
        lg.issue(f"ds_read_b64_tr_b16 {vr(f+4,2)}, v3 offset:{o}", f"F{i}b"); lg.issue(f"ds_read_b64_tr_b16 {vr(f+6,2)}, v3 offset:{o+512}", f"F{i}b")
    H = {}
    for n in range(16, 19): H[f"pre{n}"] = (lambda n=n: vm.need(f"D{n+1}"))
    for n, h in enumerate(hooks): H.setdefault(n, []).append(h)
    H.setdefault(opt.get("kpL", 24), []).append(lambda: vm.issue(KLOAD, "KF"))
    qg(P, opt, "L", vm, lg, H)

ONES, LS, Q, K, V, C, O, SA, SB = 8, 12, 16, 24, 32, 40, 56, 72, 88
T = 128
RW = 105
WSU = [3, 4, 1, 2]
WOU = [0, 3, 4, 1]
XU = 2

def g2_ids(P):
    def a():
        P(f"s_lshr_b32 s54, {S_W}, 2"); P(f"s_bfe_u32 s55, {S_W}, 0x10001"); P(f"s_and_b32 s56, {S_W}, 1")
        P(f"s_lshl_b32 s57, {S_XCD}, 2"); P(f"s_and_b32 s3, {S_J}, 3"); P("s_add_u32 s57, s57, s3")
    def b():
        P(f"s_lshr_b32 s58, {S_J}, 2"); P("s_lshl_b32 s58, s58, 1"); P("s_add_u32 s58, s58, s55")
        P("s_cmp_eq_u32 s54, 0")
        P(f"s_cselect_b32 s44, s{P_WSR}, s{P_WSI}"); P(f"s_cselect_b32 s45, s{P_WSR+1}, s{P_WSI+1}"); P(f"s_mov_b32 s46, {8*MB}")
    def c():
        P("s_lshl_b32 s59, s57, 17"); P("s_lshl_b32 s3, s55, 16"); P("s_add_u32 s59, s59, s3"); P("s_lshl_b32 s3, s56, 10"); P("s_add_u32 s59, s59, s3")
        P("v_lshrrev_b32 v6, 4, v0"); P("v_and_b32 v7, 15, v0"); P("v_xor_b32 v7, v7, v6"); P("v_lshlrev_b32 v7, 4, v7")
    def d():
        P("v_lshl_add_u32 v7, v6, 12, v7"); P(f"v_add_u32 v{WD}, s59, v7")
        P("s_lshl_b32 s59, s54, 14"); P("s_lshl_b32 s3, s56, 13"); P("s_add_u32 s59, s59, s3"); P("s_lshl_b32 s3, s55, 12"); P("s_add_u32 s59, s59, s3")
    def e():
        for n in range(1, 4):
            P(f"v_xor_b32 v{WD+n}, {n<<6}, v{WD}"); P(f"v_add_u32 v{WD+n}, {(4*n<<12) - 1024*n}, v{WD+n}")
    def f():
        P("s_lshl_b32 s3, s54, 4"); P("s_add_u32 s3, s3, s58"); P("s_lshl_b32 s3, s3, 1"); P("s_add_u32 s3, s3, s56"); P("s_lshl_b32 s60, s3, 15"); P("s_lshl_b32 s3, s3, 8"); P(f"s_add_u32 s3, s3, {FL3}")
        P(f"s_add_u32 s60, s60, {WS_TE}")
        P(f"v_and_b32 v{FA}, 31, v0"); P(f"v_lshlrev_b32 v{FA}, 3, v{FA}"); P(f"v_add_u32 v{FA}, s3, v{FA}")
    return [a, b, c, d, e, f]

def op_ids(P):
    P(f"s_and_b32 s61, {S_XCD}, 1"); P("s_lshl_b32 s61, s61, 3"); P(f"s_lshr_b32 s3, {S_J}, 3"); P("s_lshl_b32 s3, s3, 1"); P("s_add_u32 s61, s61, s3")
    P(f"s_bfe_u32 s3, {S_XCD}, 0x10001"); P("s_add_u32 s61, s61, s3")
    P(f"s_lshr_b32 s62, {S_XCD}, 2"); P("s_lshl_b32 s62, s62, 3"); P(f"s_and_b32 s3, {S_J}, 7"); P("s_add_u32 s62, s62, s3")

def attention(P, opt):
    vm = VM(P); lg = LG(P)
    ool = []
    P.label("F_ATT")
    P("; TS 9")
    def kv_upd():
        P(f"v_cmp_eq_u64 vcc, {NON}, {vr(FV,2)}")
        P("s_mov_b32 s53, vcc_lo")
    def kv_ok(bits):
        def f():
            kv_upd()
            P(f"s_andn2_b32 s3, {bits}, s53")
            P("s_cmp_eq_u32 s3, 0")
        return f
    def kvdma(h):
        def a():
            P(f"s_add_u32 m0, s52, {(h % 6) * 16384}")
            P(f"s_mov_b32 s3, {h * 8192}")
            vm.issue("buffer_load_dwordx4 v4, s[40:43], s3 offen sc1 lds", f"H{h}")
            vm.issue("buffer_load_dwordx4 v4, s[40:43], s3 offen offset:1024 sc1 lds", f"H{h}")
        return a
    P(f"s_lshl_b32 s3, {S_W}, 12"); P(f"s_add_u32 s3, s3, {U[3]}")
    P("v_add_u32 v2, s3, v1"); P("v_xor_b32 v3, 0x4000, v2")
    P("s_waitcnt vmcnt(0)")
    spin(P, KLOAD, kv_ok("31"))
    P("; TS 10")
    for h in range(5):
        kvdma(h)()
        if h < 4: lg.issue(f"ds_write_b128 v2, {vr(QX+4*h,4)} offset:{1024*h}", "QW")
    vm.issue(KLOAD, "KF")
    P("v_mov_b32 v5, 0xdddddddd")
    P("v_and_b32 v6, 7, v0"); P("v_mov_b32 v7, 0x3f803f80")
    P("v_cmp_eq_u32 vcc, 0, v6"); P(f"v_cndmask_b32 v{ONES}, 0, v7, vcc"); P(f"v_cndmask_b32 v{ONES+1}, 0, v7, vcc")
    P("v_cmp_eq_u32 vcc, 4, v6"); P(f"v_cndmask_b32 v{ONES+2}, 0, v7, vcc"); P(f"v_cndmask_b32 v{ONES+3}, 0, v7, vcc")
    for i in range(8, 16): P(f"v_mov_b32 v{SB+i}, 0")
    for i in range(4): P(f"v_mov_b32 v{LS+i}, 0")
    lg.drain()
    P("s_barrier")
    for g in range(4): lg.issue(f"ds_read_b128 {vr(QP+4*g,4)}, v3 offset:{1024*g}", f"QP{g}")
    P(f"s_mov_b32 s3, {f32hex(math.log2(math.e) / math.sqrt(32.0))}")
    P("s_lshr_b32 s62, s65, 5"); P("v_add_u32 v2, s62, v1"); P("v_add_u32 v3, 0xc000, v2")
    for g in range(4):
        lg.need(f"QP{g}")
        for i in range(4 * g, 4 * g + 4): P(f"v_add_f32 v{QO+i}, v{QO+i}, v{QP+i}")
        for i in range(4 * g, 4 * g + 4): P(f"v_mul_f32 v{QO+i}, s3, v{QO+i}")
        for i in range(2 * g, 2 * g + 2): P(f"v_cvt_pk_bf16_f32 v{Q+i}, v{QO+2*i}, v{QO+2*i+1}")
    for i in range(16): P(f"v_mov_b32 v{O+i}, 0")
    vm.need("H0")
    P("s_barrier")
    P("; TS 11")
    def at(t, off):
        sl = (t >> 1) % 6
        return f"v{2 + sl // 3} offset:{(sl % 3) * 16384 + (t & 1) * 4096 + off}"
    lg.issue(f"ds_read_b128 {vr(K,4)}, {at(0,0)}", "K0"); lg.issue(f"ds_read_b128 {vr(K+4,4)}, {at(0,1024)}", "K1")
    P(f"s_mov_b32 s62, {f32hex(float(opt.get('margin', 88)))}")
    lg.need("K0"); P(f"{M32} {vr(SA,16)}, {vr(K,4)}, {vr(Q,4)}, 0")
    lg.need("K1"); P(f"{M32} {vr(SA,16)}, {vr(K+4,4)}, {vr(Q+4,4)}, {vr(SA,16)}")
    lg.issue(f"ds_read_b128 {vr(K,4)}, {at(1,0)}", "K0")
    lg.issue(f"ds_read_b128 {vr(K+4,4)}, {at(1,1024)}", "K1")
    lg.issue(f"ds_read_b128 {vr(V,4)}, {at(0,2048)}", "V0")
    P(f"v_max3_f32 v6, v{SA}, v{SA+1}, v{SA+2}")
    for i in range(3, 15, 2): P(f"v_max3_f32 v6, v6, v{SA+i}, v{SA+i+1}")
    P(f"v_max_f32 v6, v6, v{SA+15}")
    P("v_mov_b32 v7, v6"); P("v_permlane32_swap_b32 v6, v7"); P("v_max_f32 v6, v6, v7")
    P("v_add_f32 v6, s62, v6")
    for i in range(16): P(f"v_sub_f32 v{C+i}, 0, v6")
    for i in range(16): P(f"v_sub_f32 v{SA+i}, v{SA+i}, v6")

    X = {t: [] for t in range(64)}
    def add(t, *fs): X[t].extend(fs)
    def ld(text, tag=None): return lambda: vm.issue(text, tag)
    def lonly(name, body):
        def f():
            P(f"s_cmp_lg_u32 {S_LO}, 0"); P(f"s_cbranch_scc1 {name}")
            body()
            P.label(name)
        return f
    sch = dict(fo1=0, fo2=4, g=8, wd0=2, wd1=6, fold=12, gj=16, f1=19, f1p=22, x=24, g1=30, f3=37, ws=35, tp=40, t=42, cj=46, wo=52)
    sch.update(opt.get("sch", {}))
    F1, F2, R1, R2, E1, E2, GX, GW, TM, EE, OO, FOUT = 128, 132, 136, 140, 144, 145, 148, 156, 164, 168, 176, 184
    add(1, lambda: (vm.need("KF"), kv_upd(), vm.issue(KLOAD, "KF")))
    add(5, lambda: (vm.need("KF"), kv_upd()))
    add(sch["fo1"], ld(f"buffer_load_dwordx4 {vr(F1,4)}, v{FOA}, s[48:51], {S_LO} offen", "FO"), ld(f"buffer_load_dwordx4 {vr(F2,4)}, v{FOA+1}, s[48:51], {S_LO} offen", "FO"))
    add(sch["fo2"], ld(f"buffer_load_dwordx4 {vr(R1,4)}, v{FOA+2}, s[48:51], {S_LO} offen", "FO"), ld(f"buffer_load_dwordx4 {vr(R2,4)}, v{FOA+3}, s[48:51], {S_LO} offen", "FO"))
    add(sch["fo2"] + 1, ld(f"buffer_load_ushort v{E1}, v{FOA+4}, s[48:51], {S_LO} offen", "FO"), ld(f"buffer_load_ushort v{E2}, v{FOA+5}, s[48:51], {S_LO} offen", "FO"))
    def gl1():
        P(f"s_add_u32 s3, {S_LO}, {2*MB}")
        vm.issue(f"buffer_load_dwordx4 {vr(GX,4)}, v{L32}, s[48:51], s3 offen", "G"); vm.issue(f"buffer_load_dwordx4 {vr(GX+4,4)}, v{L32}, s[48:51], s3 offen offset:16", "G")
    def gl2():
        P(f"s_mov_b32 s48, s{P_WDR}"); P(f"s_mov_b32 s49, s{P_WDR+1}"); P(f"s_mov_b32 s50, {513*2048}")
        vm.issue(f"buffer_load_dwordx4 {vr(GW,4)}, v{GWA}, s[48:51], {S_LO} offen", "G"); vm.issue(f"buffer_load_dwordx4 {vr(GW+4,4)}, v{GWA}, s[48:51], {S_LO} offen offset:16", "G")
    add(sch["g"], gl1); add(sch["g"] + 1, gl2)
    def wdd(u, n):
        def f():
            P(f"s_add_u32 m0, s57, {U[3+u]}"); P(f"s_movk_i32 s3, {u*512}")
            for i in (n, n + 1): vm.issue(f"buffer_load_dwordx4 v{WD+i}, s[44:47], s3 offen offset:{1024*i} lds", "WD")
        return f
    for u in range(2): add(sch[f"wd{u}"], wdd(u, 0)); add(sch[f"wd{u}"] + 1, wdd(u, 2))
    def unp(dst, src, j):
        if j & 1: P(f"v_and_b32 v{dst}, 0xffff0000, v{src + (j >> 1)}")
        else:     P(f"v_lshlrev_b32 v{dst}, 16, v{src + (j >> 1)}")
    def fold_a(js):
        for j in js:
            unp(TM, F1, j); unp(TM + 1, F2, j)
            if j == 0: P(f"v_lshlrev_b32 v{TM+2}, 16, v{E1}"); P(f"v_lshlrev_b32 v{TM+3}, 16, v{E2}")
            else: unp(TM + 2, R1, 8 - j); unp(TM + 3, R2, 8 - j)
            P(f"v_add_f32 v{TM}, v{TM}, v{TM+3}"); P(f"v_add_f32 v{TM+1}, v{TM+1}, v{TM+2}")
            P(f"v_add_f32 v{EE+j}, v{TM}, v{TM+1}"); P(f"v_sub_f32 v{OO+j}, v{TM}, v{TM+1}")
    def fold_b():
        unp(TM + 2, R1, 0); unp(TM + 3, R2, 0); P(f"v_add_f32 v{TM+2}, v{TM+2}, v{TM+3}")
        for r in range(4): P(f"v_cvt_pk_bf16_f32 v{FOUT+r}, v{EE+2*r}, v{EE+2*r+1}")
        for r in range(4): P(f"v_cvt_pk_bf16_f32 v{FOUT+4+r}, v{OO+2*r}, v{OO+2*r+1}")
    def fold_st():
        P("s_lshl_b32 s56, s61, 10"); P(f"s_add_u32 s56, s56, {S_LO}"); P(f"s_add_u32 s3, s56, {WS_XE+MB}"); P(f"s_add_u32 s56, s56, {WS_XE}")
        vm.issue(f"buffer_store_dwordx4 {vr(FOUT,4)}, v1, {RWS}, s56 offen sc1", "FS")
        vm.issue(f"buffer_store_dwordx4 {vr(FOUT+4,4)}, v1, {RWS}, s3 offen sc1", "FS")
        vm.issue(f"buffer_store_dword v{TM+2}, v{XSA}, {RWS}, {S_LO} offen sc1", "FS")
    t0 = sch["fold"]
    add(t0, lambda: vm.need("FO"), lonly("FD0", lambda: fold_a(range(0, 3))))
    add(t0 + 1, lonly("FD1", lambda: fold_a(range(3, 6))))
    add(t0 + 2, lonly("FD2", lambda: (fold_a(range(6, 8)), fold_b())), fold_st)
    def gj():
        P(f"v_mov_b32 v{TM}, 0")
        for r in range(8): P(f"v_dot2_f32_bf16 v{TM}, v{GX+r}, v{GW+r}, v{TM}")
        dpp_sum(P, TM)
        P(f"v_mov_b32 v{TM+1}, {OOB}"); P("v_cmp_eq_u32 vcc, 63, v0"); P(f"v_cndmask_b32 v{TM+1}, v{TM+1}, 0, vcc")
    def gj_blk():
        P(f"s_add_u32 s56, s61, {S_LO}"); P("s_cmp_gt_u32 s56, 512"); P("s_cbranch_scc1 GJ0")
        gj()
        P.label("GJ0")
        P("s_lshl_b32 s3, s61, 2"); P(f"s_add_u32 s3, s3, {SM_G}"); P("s_cmp_le_u32 s56, 512"); P(f"s_cselect_b32 s3, s3, {OOB}")
        vm.issue(f"buffer_store_dword v{TM}, v{TM+1}, {RWS}, s3 offen sc1", "FS")
    add(sch["gj"] - 1, lambda: P(f"v_mov_b32 v{TM+1}, 0"))
    add(sch["gj"], lambda: vm.need("G"), gj_blk)
    def nonce_v():
        P("v_mov_b32 v6, s32"); P("v_mov_b32 v7, s33"); P(f"v_mov_b32 v{XSA}, 0")
    def f1flag():
        P("s_lshl_b32 s3, s61, 3"); P(f"s_add_u32 s3, s3, {FL1}"); P(f"s_add_u32 s3, s3, {S_LO}")
        vm.need("FS")
        vm.issue(f"buffer_store_dwordx2 v[6:7], v{XSA}, {RWS}, s3 offen sc1", "F1")
    add(sch["f1"], nonce_v, f1flag)
    FLOAD = f"buffer_load_dwordx2 {vr(FV,2)}, v{F1A}, {RWS}, 0 offen sc1"
    add(sch["f1p"], ld(FLOAD, "F"))
    def check(tag, name, load, v=FV):
        def f():
            vm.need(tag)
            flags_ok(P, v)()
            P(f"s_cbranch_scc0 {name}_O")
            P.label(name + "_B")
            def o():
                P.label(name + "_O")
                spin(P, load, flags_ok(P, v))
                P(f"s_branch {name}_B")
            ool.append(o)
        return f
    XF, GF, GA, GI, GC = 128, [192, 200, 208], 216, 224, 228
    def xbase():
        P("s_lshl_b32 s56, s55, 14"); P("s_lshl_b32 s3, s65, 2"); P("s_add_u32 s56, s56, s3"); P(f"s_add_u32 s56, s56, {WS_XE}")
    add(sch["x"], check("F", "CK1", FLOAD), xbase)
    for k in range(16):
        if k % 4 == 0 and k: add(sch["x"] + k // 4, lambda: P("s_add_u32 s56, s56, 4096"))
        add(sch["x"] + k // 4, ld(f"buffer_load_dwordx4 {vr(XF+4*k,4)}, v1, {RWS}, s56 offen offset:{1024*(k%4)} sc1", f"X{k}"))
    def x512():
        P(f"v_and_b32 v{F1A}, 48, v0"); P("s_lshl_b32 s3, s55, 6"); P("s_lshl_b32 s56, s65, 12"); P("s_add_u32 s3, s3, s56"); P(f"s_add_u32 s3, s3, {SM_X512}")
        vm.issue(f"buffer_load_dwordx4 {vr(GC,4)}, v{F1A}, {RWS}, s3 offen sc1", "X512")
    add(sch["x"] + 4, x512)
    def g1rd(k):
        def f():
            g = GF[k % 3]; o = (k >> 3) * 32768 + ((k >> 2) & 1) * 8192
            lg.issue(f"ds_read_b128 {vr(g,4)}, v{GAD+(k&3)} offset:{o}", f"G{k}a"); lg.issue(f"ds_read_b128 {vr(g+4,4)}, v{GAD+(k&3)} offset:{o+4096}", f"G{k}b")
        return f
    def g1mm(k):
        def f():
            g = GF[k % 3]
            vm.need(f"X{k}")
            for half in range(2):
                lg.need(f"G{k}" + "ab"[half])
                a = GA + 4 * half
                P(f"{M16} {vr(a,4)}, {vr(XF+4*k,4)}, {vr(g+4*half,4)}, {vr(a,4) if k else vr(GI,4)}")
            if k + 2 < 16: g1rd(k + 2)()
        return f
    def ginit():
        vm.need("X512")
        P(f"v_lshlrev_b32 v{F1A}, 31, v0")
        for i in range(4): P(f"v_xor_b32 v{GI+i}, v{F1A}, v{GC+i}")
    t0 = sch["g1"]
    add(t0 - 1, ginit, g1rd(0), g1rd(1))
    for k in range(16): add(t0 + k // 4, g1mm(k))
    def cchain():
        P("s_or_b32 s56, s54, s65"); P("s_cmp_lg_u32 s56, 0"); P("s_cbranch_scc1 C_NOC")
        for i in range(4): P(f"v_mov_b32 v{GF[0]+i}, 0xbf803f80")
        for k in range(16): P(f"{M16} {vr(GC,4)}, {vr(XF+4*k,4)}, {vr(GF[0],4)}, {vr(GC,4)}")
        P(f"v_cvt_pk_bf16_f32 v{GC}, v{GC}, v{GC+1}"); P(f"v_cvt_pk_bf16_f32 v{GC+1}, v{GC+2}, v{GC+3}")
        P.label("C_NOC")
        P(f"v_lshrrev_b32 v{F1A}, 4, v0"); P(f"v_lshlrev_b32 v{F1A}, 3, v{F1A}")
        P("s_lshl_b32 s3, s55, 5"); P(f"s_add_u32 s3, s3, {SM_C}"); P("s_cmp_eq_u32 s56, 0"); P(f"s_cselect_b32 s3, s3, {OOB}")
        vm.issue(f"buffer_store_dwordx2 {vr(GC,2)}, v{F1A}, {RWS}, s3 offen sc1", "TS")
    def tstore():
        for i in range(4): P(f"v_cvt_pk_bf16_f32 v{GI+i}, v{GA+2*i}, v{GA+2*i+1}")
        P(f"v_permlane16_swap_b32 v{GI}, v{GI+2}"); P(f"v_permlane16_swap_b32 v{GI+1}, v{GI+3}")
        P("s_lshr_b32 s61, s65, 14"); P("s_add_u32 s61, s61, s54"); P("s_lshl_b32 s61, s61, 6"); P("s_add_u32 s61, s61, s55")
        P("s_lshl_b32 s3, s61, 10"); P(f"s_add_u32 s3, s3, {WS_TE}")
        vm.issue(f"buffer_store_dwordx4 {vr(GI,4)}, v1, {RWS}, s3 offen sc1", "TS")
        P("s_lshl_b32 s61, s61, 3"); P(f"s_add_u32 s61, s61, {FL3}")
    add(t0 + 4, tstore, cchain)
    add(sch["ws"], *g2_ids(P))
    def f3flag():
        nonce_v()
        vm.need("TS")
        vm.issue(f"buffer_store_dwordx2 v[6:7], v{XSA}, {RWS}, s61 offen sc1", "F3")
    add(sch["f3"], f3flag)
    def wsd(r, n):
        def f():
            P(f"s_add_u32 m0, s59, {U[WSU[r]]}"); P(f"s_movk_i32 s3, {r*256}")
            for i in (n, n + 1): vm.issue(f"buffer_load_dwordx4 v{WD+i}, s[44:47], s3 offen offset:{1024*i} lds", f"WS{r}")
        return f
    for r in range(2):
        for n in range(2): add(sch["ws"] + 3 + 2 * r + n, wsd(r, 2 * n))
    for r in range(2, 4):
        for n in range(2): add(52 + 2 * r + 2 * (r - 2) + 2 * n, wsd(r, 2 * n))
    CJ, CV = 224, 244
    CLOAD = f"buffer_load_dwordx2 {vr(CV,2)}, v{F1A}, {RWS}, 0 offen sc1"
    def cpoll():
        P(f"v_lshlrev_b32 v{F1A}, 3, v0"); P(f"v_add_u32 v{F1A}, {FL3}, v{F1A}")
        vm.issue(CLOAD, "CF")
    def cw():
        P(f"s_lshl_b32 s61, s2, 2"); P(f"s_add_u32 s61, s61, {S_W}")
        P("s_cmp_eq_u32 s61, 4"); P("s_movk_i32 s3, 1024"); P("s_cselect_b32 s3, s3, 0x10000")
        P(f"s_cmp_lt_u32 {S_W}, 4"); P("s_cselect_b32 s61, s61, s3")
        P(f"s_mov_b32 s48, s{P_WSR}"); P(f"s_mov_b32 s49, s{P_WSR+1}"); P(f"s_mov_b32 s50, {8*MB}")
        P("s_lshl_b32 s3, s61, 12")
        vm.issue(f"buffer_load_dwordx4 {vr(CJ,4)}, v{L32}, s[48:51], s3 offen", "CW"); vm.issue(f"buffer_load_dwordx4 {vr(CJ+4,4)}, v{L32}, s[48:51], s3 offen offset:16", "CW")
    add(sch["tp"], ld(KLOAD, "TF"), cpoll, cw)
    t0 = sch["t"]
    add(t0, check("TF", "CK2", KLOAD))
    def cc():
        P(f"s_mov_b32 s3, {SM_C}")
        vm.issue(f"buffer_load_dwordx4 {vr(CJ+8,4)}, v{L32}, {RWS}, s3 offen sc1", "CC"); vm.issue(f"buffer_load_dwordx4 {vr(CJ+12,4)}, v{L32}, {RWS}, s3 offen offset:16 sc1", "CC")
        P(f"s_mov_b32 s3, {SM_G+2048}")
        vm.issue(f"buffer_load_dword v{CJ+16}, v{XSA}, {RWS}, s3 offen sc1", "CC")
    def ge():
        P("s_or_b32 s3, s54, s56"); P("s_lshl_b32 s3, s3, 30"); P("s_lshl_b32 s62, s58, 7"); P("s_add_u32 s3, s3, s62"); P(f"s_add_u32 s3, s3, {SM_G}")
        P(f"v_and_b32 v{F1A}, 31, v0"); P(f"v_lshlrev_b32 v{F1A}, 2, v{F1A}")
        vm.issue(f"buffer_load_dword v{RW}, v{F1A}, {RWS}, s3 offen sc1", "GE")
    add(t0 + 1, check("CF", "CK3", CLOAD, CV), cc, ge)
    for i in range(32):
        t = t0 + i // 2
        if i % 4 == 0 and i: add(t, lambda: P("s_add_u32 s60, s60, 4096"))
        add(t, ld(f"buffer_load_dwordx4 {vr(T+4*i,4)}, v1, {RWS}, s60 offen offset:{1024*(i%4)} sc1", f"T{i}"))
    def cjob():
        vm.need("CC", "CW")
        P("s_cmp_eq_u32 s61, 0x10000"); P("s_cbranch_scc1 CJ0")
        P("s_lshl_b32 s3, s61, 31"); P(f"v_xor_b32 v{CJ+16}, s3, v{CJ+16}")
        P(f"v_mov_b32 v{CV}, 0")
        for r in range(8): P(f"v_dot2_f32_bf16 v{CV}, v{CJ+r}, v{CJ+8+r}, v{CV}")
        dpp_sum(P, CV)
        P(f"v_add_f32 v{CV}, v{CV}, v{CJ+16}"); P(f"v_cvt_pk_bf16_f32 v{CV}, v{CV}, v{CV}")
        P.label("CJ0")
        P(f"v_mov_b32 v{CV+1}, {OOB}"); P("v_cmp_eq_u32 vcc, 63, v0"); P(f"v_cndmask_b32 v{CV+1}, v{CV+1}, 0, vcc")
        P(f"s_mov_b32 s48, s{P_OUT}"); P(f"s_mov_b32 s49, s{P_OUT+1}")
        P("s_lshl_b32 s3, s61, 12"); P("s_add_u32 s62, s3, 1024"); P(f"s_sub_u32 s3, {8*MB+1024}, s3")
        vm.issue(f"buffer_store_short v{CV}, v{CV+1}, s[48:51], s62 offen"); vm.issue(f"buffer_store_short v{CV}, v{CV+1}, s[48:51], s3 offen")
    add(sch["cj"], cjob)
    assert t0 + 12 > sch["cj"]

    order = opt.get("order", "ee P eee L ee M eee N ee p eee l e").replace(" ", "")
    NCHK = opt.get("nchk", 8)
    for t in range(64):
        S, Tn = (SA, SB) if t % 2 == 0 else (SB, SA)
        ex = list(X[t])
        ev = t // 2
        if t % 2 == 0 and ev + 5 < 32: ex = [kvdma(ev + 5)] + ex
        first = order[:order.index("L")].count("e") if t % 2 == 0 else 0
        nsl = 16 - first
        pos = {}
        for n, f in enumerate(ex): pos.setdefault(first + (n * nsl) // max(len(ex), 1), []).append(f)
        e = 0
        for ch in order:
            if ch == "e":
                P(f"v_exp_f32 v{S+e}, v{S+e}")
                for f in pos.get(e, []): f()
                e += 1
            elif ch == "P":
                if t:
                    lg.need("V1")
                    P(f"v_smfmac_f32_32x32x32_bf16 {vr(O,16)}, {vr(V+4,4)}, {vr(Tn+8,8)}, v5")
                lg.issue(f"ds_read_b128 {vr(V+4,4)}, {at(t,3072)}", "V1")
            elif ch == "L":
                if t: P(f"v_smfmac_f32_16x16x64_bf16 {vr(LS,4)}, {vr(ONES,4)}, {vr(Tn+8,8)}, v5")
                if t % 2 == 0:
                    if ev <= NCHK:
                        if ev < NCHK: P(f"s_bitcmp1_b32 s53, {ev+5}")
                        else: P("s_cmp_eq_u32 s53, -1")
                        P(f"s_cbranch_scc0 KS{ev}")
                        P.label(f"KB{ev}")
                        def o(ev=ev):
                            P.label(f"KS{ev}")
                            P(f"s_mov_b32 s62, {lit(1 << (ev + 5)) if ev < NCHK else -1}")
                            P(f"s_call_b64 {LINK}, KVSPIN")
                            P(f"s_branch KB{ev}")
                        ool.append(o)
                    vm.need(f"H{ev+1}")
                    if not opt.get("nobar"): P("s_barrier")
            elif ch == "M":
                if t < 63:
                    lg.need("K0")
                    P(f"{M32} {vr(Tn,16)}, {vr(K,4)}, {vr(Q,4)}, {vr(C,16)}")
                if t < 62: lg.issue(f"ds_read_b128 {vr(K,4)}, {at(t+2,0)}", "K0")
            elif ch == "N":
                if t < 63:
                    lg.need("K1")
                    P(f"{M32} {vr(Tn,16)}, {vr(K+4,4)}, {vr(Q+4,4)}, {vr(Tn,16)}")
                if t < 62: lg.issue(f"ds_read_b128 {vr(K+4,4)}, {at(t+2,1024)}", "K1")
            elif ch == "p":
                lg.need("V0")
                P(f"v_smfmac_f32_32x32x32_bf16 {vr(O,16)}, {vr(V,4)}, {vr(S,8)}, v5")
                if t < 63: lg.issue(f"ds_read_b128 {vr(V,4)}, {at(t+1,2048)}", "V0")
            elif ch == "l":
                P(f"v_smfmac_f32_16x16x64_bf16 {vr(LS,4)}, {vr(ONES,4)}, {vr(S,8)}, v5")
        if opt.get("tsa") and t in (15, 31, 47): P(f"; TS {20 + t // 16}")
    def kvspin():
        P.label("KVSPIN")
        P("s_waitcnt vmcnt(0)")
        spin(P, KLOAD, kv_ok("s62"))
        P(f"s_setpc_b64 {LINK}")
    ool.append(kvspin)
    lg.need("V1")
    P(f"v_smfmac_f32_32x32x32_bf16 {vr(O,16)}, {vr(V+4,4)}, {vr(SB+8,8)}, v5")
    P(f"v_smfmac_f32_16x16x64_bf16 {vr(LS,4)}, {vr(ONES,4)}, {vr(SB+8,8)}, v5")
    lg.drain()
    P("; TS 12")
    P(f"v_add_f32 v6, |v{O}|, |v{O+1}|"); P(f"v_add_f32 v7, |v{O+2}|, |v{O+3}|")
    for i in range(4, 16, 2):
        P(f"v_add_f32 v6, v6, |v{O+i}|"); P(f"v_add_f32 v7, v7, |v{O+i+1}|")
    P("v_add_f32 v6, v6, v7")
    P(f"s_mov_b32 s3, {f32hex(2.0**-104)}"); P(f"s_mov_b32 s61, {f32hex(2.0**120)}")
    P("v_cmp_lt_f32 s[52:53], s3, v6"); P("v_cmp_gt_f32 s[62:63], s61, v6"); P(f"v_cmp_gt_f32 vcc, s61, v{LS}")
    P("s_and_b64 s[52:53], s[52:53], s[62:63]"); P("s_and_b64 s[52:53], s[52:53], vcc")
    if opt.get("force_slow"): P("s_mov_b64 s[52:53], 0")
    P("s_cmp_eq_u64 s[52:53], -1")
    P("s_cbranch_scc0 AT_SLOW")
    def slow():
        P.label("AT_SLOW")
        P("v_mov_b32 v6, 0xff800000"); P("s_mov_b32 s3, s65"); P("s_add_u32 s61, s65, 0x40000")
        P.label("AT_MP")
        P(f"buffer_load_dwordx4 {vr(K,4)}, v1, s[40:43], s3 offen sc1"); P(f"buffer_load_dwordx4 {vr(K+4,4)}, v1, s[40:43], s3 offen offset:1024 sc1")
        P("s_waitcnt vmcnt(0)")
        P(f"{M32} {vr(SA,16)}, {vr(K,4)}, {vr(Q,4)}, 0"); P(f"{M32} {vr(SA,16)}, {vr(K+4,4)}, {vr(Q+4,4)}, {vr(SA,16)}")
        for i in range(8): P(f"v_max3_f32 v6, v6, v{SA+2*i}, v{SA+2*i+1}")
        P("s_add_u32 s3, s3, 4096"); P("s_cmp_lg_u32 s3, s61"); P("s_cbranch_scc1 AT_MP")
        P("v_mov_b32 v7, v6"); P("v_permlane32_swap_b32 v6, v7"); P("v_max_f32 v6, v6, v7")
        for i in range(16): P(f"v_sub_f32 v{C+i}, 0, v6")
        for i in range(16): P(f"v_mov_b32 v{O+i}, 0")
        for i in range(4): P(f"v_mov_b32 v{LS+i}, 0")
        P("s_mov_b32 s3, s65")
        P.label("AT_SL")
        for i, r in enumerate((K, K + 4, V, V + 4)): P(f"buffer_load_dwordx4 {vr(r,4)}, v1, s[40:43], s3 offen offset:{1024*i} sc1")
        P("s_waitcnt vmcnt(0)")
        P(f"{M32} {vr(SA,16)}, {vr(K,4)}, {vr(Q,4)}, {vr(C,16)}"); P(f"{M32} {vr(SA,16)}, {vr(K+4,4)}, {vr(Q+4,4)}, {vr(SA,16)}")
        for i in range(16): P(f"v_exp_f32 v{SA+i}, v{SA+i}")
        P(f"v_smfmac_f32_32x32x32_bf16 {vr(O,16)}, {vr(V,4)}, {vr(SA,8)}, v5"); P(f"v_smfmac_f32_16x16x64_bf16 {vr(LS,4)}, {vr(ONES,4)}, {vr(SA,8)}, v5")
        P(f"v_smfmac_f32_32x32x32_bf16 {vr(O,16)}, {vr(V+4,4)}, {vr(SA+8,8)}, v5"); P(f"v_smfmac_f32_16x16x64_bf16 {vr(LS,4)}, {vr(ONES,4)}, {vr(SA+8,8)}, v5")
        P("s_nop 15")
        P("s_add_u32 s3, s3, 4096"); P("s_cmp_lg_u32 s3, s61"); P("s_cbranch_scc1 AT_SL")
        P("s_branch AT_FIN")
    ool.append(slow)
    P.label("AT_FIN")
    P(f"v_rcp_f32 v6, v{LS}")
    P("s_lshl_b32 s3, s64, 11"); P(f"s_add_u32 s3, s3, {WS_OF}")
    for i in range(16): P(f"v_mul_f32 v{O+i}, v6, v{O+i}")
    for i in range(8): P(f"v_cvt_pk_bf16_f32 v{SA+i}, v{O+2*i}, v{O+2*i+1}")
    vm.issue(f"buffer_store_dwordx4 {vr(SA,4)}, v1, {RWS}, s3 offen sc1", "OS")
    vm.issue(f"buffer_store_dwordx4 {vr(SA+4,4)}, v1, {RWS}, s3 offen offset:1024 sc1", "OS")
    P("s_lshl_b32 s64, s64, 3"); P(f"s_add_u32 s64, s64, {FL4}")
    return vm, ool

def tail(P, opt, vm, ool):
    AC, AF, PA, DO = 16, 32, 44, 56
    lg = LG(P)
    P("s_lshl_b32 s52, s54, 1"); P("s_add_u32 s52, s52, s56")
    P("s_lshl_b32 s3, s52, 3"); P("v_xor_b32 v2, s3, v0")
    P("v_and_b32 v3, 31, v2"); P("v_lshrrev_b32 v4, 5, v2"); P("v_and_b32 v2, 15, v2"); P("v_xor_b32 v4, v4, v2"); P("v_lshlrev_b32 v4, 4, v4")
    P(f"v_lshl_add_u32 v{PA}, v3, 8, v4"); P("s_lshl_b32 s3, s52, 13"); P(f"s_add_u32 s3, s3, {U[3]}"); P(f"v_add_u32 v{PA}, s3, v{PA}")
    for k in range(1, 8): P(f"v_xor_b32 v{PA+k}, {k<<5}, v{PA}")
    def rd(i):
        r, k = i >> 3, i & 7
        lg.issue(f"ds_read_b128 {vr(AF+4*(i%3),4)}, v{PA+k} offset:{32768*(r&1)}", f"A{i}")
        if r == 1: P(f"v_subrev_u32 v{PA+k}, {U[2]}, v{PA+k}")
    rd(0); rd(1)
    P("s_or_b32 s53, s57, s54")
    P("s_mov_b32 s59, 0xbf803f80")
    vm.need("GE")
    for i in range(16):
        if i & 1: P(f"v_sub_f32 v{AC+i}, 0, v{RW}")
        else:     P(f"v_mov_b32 v{AC+i}, v{RW}")
    P("v_cmp_gt_u32 vcc, 32, v0"); P(f"v_cndmask_b32 v{RW}, 0, v{RW}, vcc")
    P("; TS 13")
    def wo_setup():
        op_ids(P)
        srd(P, 40, P_WO, 2 * MB)
        P("v_lshrrev_b32 v2, 3, v0"); P("v_and_b32 v3, 7, v0"); P("v_bfe_u32 v4, v0, 4, 1"); P("v_lshlrev_b32 v4, 2, v4"); P("v_xor_b32 v3, v3, v4")
        P("v_lshlrev_b32 v3, 4, v3"); P("v_lshl_add_u32 v3, v2, 11, v3")
        P("s_lshl_b32 s3, s54, 20"); P(f"s_lshl_b32 s63, {S_WL}, 16"); P("s_add_u32 s3, s3, s63"); P("s_lshl_b32 s63, s62, 7"); P("s_add_u32 s3, s3, s63")
        P(f"v_add_u32 v{DO}, s3, v3")
        for n in range(1, 4): P(f"v_add_u32 v{DO+n}, {n*(16384-1024)}, v{DO}")
        P(f"s_lshl_b32 s63, {S_W}, 12")
        P("s_lshl_b32 s65, s61, 2"); P(f"s_add_u32 s65, s65, {S_WL}")
        P("s_lshl_b32 s3, s65, 1"); P("s_add_u32 s3, s3, s54"); P("s_lshl_b32 s60, s3, 15"); P(f"s_add_u32 s60, s60, {WS_OF}"); P("s_lshl_b32 s3, s3, 7"); P(f"s_add_u32 s3, s3, {FL4}")
        P(f"v_and_b32 v{FA}, 15, v0"); P(f"v_lshlrev_b32 v{FA}, 3, v{FA}"); P(f"v_add_u32 v{FA}, s3, v{FA}")
        P("v_mov_b32 v6, s32"); P("v_mov_b32 v7, s33")
    def wo_dma(o):
        P(f"s_add_u32 m0, s63, {U[WOU[o]]}"); P(f"s_mov_b32 s3, {o*0x40000}")
        for n in range(4): vm.issue(f"buffer_load_dwordx4 v{DO+n}, s[40:43], s3 offen offset:{1024*n} lds", f"WO{o}")
    for i in range(32):
        r, k = i >> 3, i & 7
        if i == 2: wo_setup()
        if i == opt.get("f4", 9):
            vm.need("OS")
            vm.issue(f"buffer_store_dwordx2 v[6:7], v{XSA}, {RWS}, s64 offen sc1", "F4")
            P("; TS 14")
        if k == 2 and r >= 1:
            if r == 1: vm.need("WS3")
            P("s_barrier")
            if r == 1: wo_dma(0)
            wo_dma(r)
        if i == opt.get("opoll", 27): vm.issue(KLOAD, "OF")
        if i + 2 < 32: rd(i + 2)
        lg.need(f"A{i}"); vm.need(f"T{i}")
        P(f"{M32} {vr(AC,16)}, {vr(AF+4*(i%3),4)}, {vr(T+4*i,4)}, {vr(AC,16)}")
        if k == 7:
            P("s_cmp_lg_u32 s53, 0"); P(f"s_cbranch_scc1 G2_NR{r}")
            for j in range(32): P(f"v_dot2_f32_bf16 v{RW}, v{T+32*r+j}, s59, v{RW}")
            P.label(f"G2_NR{r}")
    P("; TS 15")
    for q in range(1, 4):
        P(f"s_xor_b32 s3, {S_W}, {(q & 1) | ((q >> 1) << 2)}"); P("s_mul_i32 s3, s3, 3072"); P(f"s_add_u32 s3, s3, {U[XU] + (q-1)*1024}")
        P(f"v_add_u32 v{1+q}, s3, v1")
    P(f"s_lshl_b32 s3, {S_W}, 8"); P(f"s_add_u32 s3, s3, {U[XU]+24576}"); P("v_lshlrev_b32 v5, 2, v0"); P("v_add_u32 v5, s3, v5")
    P("s_barrier")
    for q in range(1, 4): lg.issue(f"ds_write_b128 v{1+q}, {vr(AC+4*q,4)}", "XW")
    lg.issue(f"ds_write_b32 v5, v{RW}", "XW")
    P(f"s_mul_i32 s3, {S_W}, 3072"); P(f"s_add_u32 s3, s3, {U[XU]}"); P("v_add_u32 v2, s3, v1")
    lg.drain()
    P("s_barrier")
    for q in range(3): lg.issue(f"ds_read_b128 {vr(AC+4+4*q,4)}, v2 offset:{1024*q}", "XR")
    vm.need("OF")
    spin(P, KLOAD, flags_ok(P, FV))
    P("; TS 16")
    for i in range(32):
        if i % 4 == 0 and i: P("s_add_u32 s60, s60, 4096")
        vm.issue(f"buffer_load_dwordx4 {vr(T+4*i,4)}, v1, {RWS}, s60 offen offset:{1024*(i%4)} sc1", f"O{i}")
    P("v_and_b32 v3, 31, v0"); P("s_lshl_b32 s3, s58, 5"); P("v_add_u32 v3, s3, v3")
    P("v_lshlrev_b32 v4, 1, v3"); P("v_sub_u32 v5, 2048, v4"); P(f"v_mov_b32 v6, {OOB}"); P("v_cmp_eq_u32 vcc, 0, v3"); P("v_cndmask_b32 v5, v5, v6, vcc")
    P("v_lshrrev_b32 v6, 5, v0"); P("v_lshlrev_b32 v6, 14, v6")
    P("s_lshl_b32 s3, s57, 17"); P("s_lshl_b32 s59, s52, 15"); P("s_add_u32 s3, s3, s59"); P("v_add_u32 v6, s3, v6")
    P(f"v_sub_u32 v7, {8*MB}, v6")
    P("v_add_u32 v8, v6, v4"); P("v_add_u32 v9, v7, v5"); P("v_add_u32 v10, v7, v4"); P("v_add_u32 v11, v6, v5")
    P("s_lshl_b32 s59, s54, 31")
    lg.need("XR")
    for r in range(4):
        P(f"v_add_f32 v{AC+r}, v{AC+r}, v{AC+4+r}")
        P(f"v_add_f32 v{AC+8+r}, v{AC+8+r}, v{AC+12+r}")
        P(f"v_sub_f32 v12, v{AC+r}, v{AC+8+r}")
        P(f"v_add_f32 v13, v{AC+r}, v{AC+8+r}")
        P("v_xor_b32 v12, s59, v12")
        P(f"v_cvt_pk_bf16_f32 v{AF+r}, v12, v13")
        if r:
            a = 84 + 4 * r
            P(f"v_add_u32 v{a}, {4096*r}, v8"); P(f"v_subrev_u32 v{a+1}, {4096*r}, v9"); P(f"v_subrev_u32 v{a+2}, {4096*r}, v10"); P(f"v_add_u32 v{a+3}, {4096*r}, v11")
        else: a = 8
        vm.issue(f"buffer_store_short v{AF+r}, v{a}, s[48:51], 0 offen"); vm.issue(f"buffer_store_short v{AF+r}, v{a+1}, s[48:51], 0 offen")
        vm.issue(f"buffer_store_short_d16_hi v{AF+r}, v{a+2}, s[48:51], 0 offen"); vm.issue(f"buffer_store_short_d16_hi v{AF+r}, v{a+3}, s[48:51], 0 offen")
    P("s_or_b32 s53, s53, s56"); P("s_cmp_lg_u32 s53, 0"); P("s_cbranch_scc1 G2_END")
    P("v_and_b32 v3, 31, v0"); P("v_lshlrev_b32 v3, 2, v3"); P(f"s_lshl_b32 s3, {S_W}, 8"); P(f"s_add_u32 s3, s3, {U[XU]+24576}"); P("v_add_u32 v3, s3, v3")
    for i in range(4): P(f"ds_read_b32 v{12+i}, v3 offset:{128*i}")
    P(f"v_add_u32 v8, {4*MB}, v4"); P(f"v_add_u32 v9, {4*MB}, v5")
    P("s_waitcnt lgkmcnt(0)")
    P("v_add_f32 v12, v12, v13"); P("v_add_f32 v14, v14, v15"); P("v_add_f32 v12, v12, v14"); P("v_cvt_pk_bf16_f32 v12, v12, v12")
    P("buffer_store_short v12, v8, s[48:51], 0 offen"); P("buffer_store_short v12, v9, s[48:51], 0 offen")
    P.label("G2_END")
    A0, A1 = 32, 48
    P("v_lshrrev_b32 v2, 5, v0"); P("v_bfe_u32 v3, v0, 2, 2"); P("v_lshl_add_u32 v2, v2, 2, v3"); P("v_lshlrev_b32 v2, 7, v2")
    P("v_bfe_u32 v3, v0, 3, 1"); P("v_xor_b32 v3, s54, v3"); P("v_lshl_add_u32 v2, v3, 6, v2")
    P("v_bfe_u32 v3, v0, 4, 1"); P("v_lshl_add_u32 v2, v3, 5, v2")
    P("v_and_b32 v3, 3, v0"); P("v_lshl_add_u32 v2, v3, 3, v2")
    P("s_lshl_b32 s3, s54, 14"); P("v_add_u32 v2, s3, v2"); P("v_xor_b32 v3, 64, v2")
    P(f"v_add_u32 v4, {U[3]}, v2"); P(f"v_add_u32 v5, {U[3]}, v3")
    P("; TS 17")
    def ord_(i):
        o, k = i >> 3, i & 7
        f = QF[i % 3]; u = WOU[o]
        b = 2 if u < 2 else 4; off = (u % 3) * 32768 + k * 2048
        return [(f"ds_read_b64_tr_b16 {vr(f,2)}, v{b} offset:{off}", f"F{i}a"), (f"ds_read_b64_tr_b16 {vr(f+2,2)}, v{b} offset:{off+1024}", f"F{i}a"),
                (f"ds_read_b64_tr_b16 {vr(f+4,2)}, v{b+1} offset:{off}", f"F{i}b"), (f"ds_read_b64_tr_b16 {vr(f+6,2)}, v{b+1} offset:{off+1024}", f"F{i}b")]
    P("s_barrier")
    for r in ord_(0) + ord_(1): lg.issue(*r)
    for i in range(32):
        R = ord_(i + 2) if i + 2 < 32 else []
        f = QF[i % 3]
        for half in range(2):
            lg.need(f"F{i}" + "ab"[half])
            if half == 0: vm.need(f"O{i}")
            a = (A0, A1)[half]
            P(f"{M32} {vr(a,16)}, {vr(f+4*half,4)}, {vr(T+4*i,4)}, {vr(a,16) if i else 0}")
            for r in R[2 * half:2 * half + 2]: lg.issue(*r)
    P("; TS 18")
    P(f"s_lshl_b32 s3, {S_W}, 12"); P(f"s_add_u32 s3, s3, {U[XU]}"); P("v_add_u32 v2, s3, v1"); P("v_xor_b32 v3, 0x4000, v2")
    for g in range(4): lg.issue(f"ds_write_b128 v2, {vr(A1+4*g,4)} offset:{1024*g}", "XW")
    P("v_and_b32 v4, 31, v0"); P("v_lshrrev_b32 v5, 5, v0"); P("v_lshlrev_b32 v5, 4, v5"); P("v_lshl_add_u32 v4, v4, 12, v5")
    P("s_lshl_b32 s3, s65, 17"); P("s_lshl_b32 s59, s62, 7"); P("s_add_u32 s3, s3, s59"); P("s_lshl_b32 s59, s54, 6"); P("s_add_u32 s3, s3, s59"); P("s_add_u32 s3, s3, 2048")
    lg.drain()
    P("s_barrier")
    for g in range(4): lg.issue(f"ds_read_b128 {vr(A1+4*g,4)}, v3 offset:{1024*g}", f"XR{g}")
    for g in range(4):
        lg.need(f"XR{g}")
        for i in range(4): P(f"v_add_f32 v{A0+4*g+i}, v{A0+4*g+i}, v{A1+4*g+i}")
        P(f"v_cvt_pk_bf16_f32 v{8+2*g}, v{A0+4*g}, v{A0+4*g+1}"); P(f"v_cvt_pk_bf16_f32 v{9+2*g}, v{A0+4*g+2}, v{A0+4*g+3}")
        if g & 1:
            t = 8 + 4 * (g >> 1)
            P(f"v_permlane32_swap_b32 v{t}, v{t+2}"); P(f"v_permlane32_swap_b32 v{t+1}, v{t+3}")
            P(f"buffer_store_dwordx4 {vr(t,4)}, v4, s[48:51], s3 offen offset:{32*(g>>1)}")

def fused(opt):
    P = Prog()
    sk, sv = opt.get("skew", (5, 10))
    P("s_cmp_ge_u32 s2, 256"); P("s_cbranch_scc1 F_END")
    P("s_load_dwordx16 s[4:19], s[0:1], 0")
    P("s_load_dwordx4 s[20:23], s[0:1], 64")
    P("s_load_dwordx2 s[24:25], s[0:1], 80")
    if opt.get("cpf", 0):
        P("s_getpc_b64 s[40:41]"); P(f"s_mov_b32 s42, {opt['cpf']}"); P("s_mov_b32 s43, 0x00020000")
        P("s_lshl_b32 s3, s2, 4"); P("s_and_b32 s3, s3, 128")
        P("v_lshlrev_b32 v1, 8, v0")
        P("buffer_load_dword v24, v1, s[40:43], s3 offen")
    P("v_lshrrev_b32 v1, 6, v0"); P("v_and_b32 v0, 63, v0"); P(f"v_readfirstlane_b32 {S_W}, v1")
    P(f"s_and_b32 {S_XCD}, s2, 7"); P(f"s_lshr_b32 {S_J}, s2, 3")
    P(f"s_and_b32 s3, {S_XCD}, 1"); P(f"s_lshr_b32 s52, {S_J}, 2")
    P(f"s_lshl_b32 {S_RB}, s3, 3"); P(f"s_add_u32 {S_RB}, {S_RB}, s52")
    P(f"s_lshl_b32 {S_PRB}, s52, 1"); P(f"s_add_u32 {S_PRB}, {S_PRB}, s3")
    P(f"s_lshr_b32 {S_CB}, {S_XCD}, 1"); P(f"s_lshl_b32 {S_CB}, {S_CB}, 2"); P(f"s_and_b32 s3, {S_J}, 3"); P(f"s_add_u32 {S_CB}, {S_CB}, s3")
    P(f"s_add_u32 s52, {S_CB}, {sk}"); P("s_and_b32 s52, s52, 15")
    P(f"s_add_u32 s53, {S_CB}, {sv}"); P("s_and_b32 s53, s53, 15")
    P(f"s_and_b32 {S_WL}, {S_W}, 3")
    P(f"s_movk_i32 {S_TMO}, {opt.get('tmo', 20000)}")
    P(f"s_cmp_ge_u32 {S_W}, 4"); P("s_cbranch_scc1 F_L")
    phase1_C(P, opt)
    P.label("F_L")
    phase1_L(P, opt)
    vm, ool = attention(P, opt)
    tail(P, opt, vm, ool)
    P.label("F_END")
    P("s_endpgm")
    for o in ool: o()
    return P.L

def build(opt, verbose=False):
    head = []
    for line in open(REF):
        if line.startswith("; @launch"): break
        head.append(line.rstrip("\n"))
    L = fused(opt)
    if opt.get("prof"): L = prof(L)
    out = head + ["; @launch grid=(256,1,1) block=(512,1,1) lds=163840", '.amdgcn_target "amdgcn-amd-amdhsa--gfx950"', ".text", khead(NAME)]
    rep = []
    out.append(fmt(pad(L, rep)))
    if verbose:
        print(len(L), "instr; nops:", sum(k for k, _ in rep))
        for k, s in rep: print("   ", k, s)
    out.append('.section .rodata,"a"')
    out.append(kdesc(NAME, 256, 100))
    return "\n".join(out) + "\n"

if __name__ == "__main__":
    import json
    opt = json.loads(sys.argv[2]) if len(sys.argv) > 2 else {}
    open(sys.argv[1], "w").write(build(opt, verbose=True))
```

```python
import sys, math, struct
sys.path.insert(0, "gen")
from asmlib import Prog, pad, fmt, Ins
from common import srd, LG, kdesc, khead, vr, sr, dpp_sum, MB

def f32hex(x): return "0x%08x" % struct.unpack("<I", struct.pack("<f", x))[0]
M32 = "v_mfma_f32_32x32x16_bf16"
M16 = "v_mfma_f32_16x16x32_bf16"
WS_KV = 0
WS_OF = 8 * MB
WS_XE = 12 * MB
WS_TE = 14 * MB
WS_SM = 16 * MB
SM_X512 = WS_SM
SM_G = WS_SM + 4096
SM_C = WS_SM + 8192
FL1 = WS_SM + 65536
FL2 = FL1 + 8192
FL3 = FL1 + 24576
FL4 = FL1 + 40960
WS_QD = 17 * MB
WS_SIZE = 21 * MB
OOB = 0x40000000
U = [32768 * i for i in range(5)]
P_AX, P_WSR, P_WSI, P_WDR, P_WDI, P_BX, P_WQKV, P_WO, P_OUT, P_DBG, P_WS = 4, 6, 8, 10, 12, 14, 16, 18, 20, 22, 24
S_W, S_XCD, S_J, S_RB, S_CB, S_PRB, S_WL, S_TMO = "s26", "s27", "s28", "s29", "s30", "s31", "s34", "s35"
NON = "s[32:33]"
RWS = "s[36:39]"

class VM:
    def __init__(self, P): self.P = P; self.q = []; self.t = []; self.now = 0; self.log = []
    def issue(self, text, tag=None):
        self.P(text); self.q.append(tag); self.t.append(self.now)
    def need(self, *tags):
        idx = -1
        for t in tags:
            if t in self.q: idx = max(idx, len(self.q) - 1 - self.q[::-1].index(t))
        if idx >= 0:
            n = min(len(self.q) - 1 - idx, 63)
            self.P(f"s_waitcnt vmcnt({n})")
            k = len(self.q) - n
            d = {}
            for g, t in zip(self.q[:k], self.t[:k]): d[g] = t
            self.log.append((self.now, tags, d))
            self.q = self.q[k:]; self.t = self.t[k:]
    def drain(self):
        self.P("s_waitcnt vmcnt(0)"); self.q = []; self.t = []

_uid = [0]
def uid(p):
    _uid[0] += 1
    return f"{p}{_uid[0]}"

def spin(P, load, cond_ok):
    a, b = uid("SP"), uid("SQ")
    P.label(a)
    cond_ok()
    P(f"s_cbranch_scc1 {b}")
    P(f"s_sub_u32 {S_TMO}, {S_TMO}, 1")
    P(f"s_cbranch_scc1 {b}_t")
    P("s_sleep 2")
    P(load)
    P("s_waitcnt vmcnt(0)")
    P(f"s_branch {a}")
    P.label(b + "_t")
    P(f"s_mov_b32 {S_TMO}, 0")
    P.label(b)

def flags_ok(P, v):
    def f():
        P(f"v_cmp_eq_u64 vcc, {NON}, {vr(v,2)}")
        P("s_cmp_eq_u64 vcc, -1")
    return f

def nonce_ok(P, v):
    def f():
        P(f"v_readfirstlane_b32 s32, v{v}")
        P(f"v_readfirstlane_b32 s33, v{v+1}")
        P("s_cmp_lg_u32 s32, 0")
    return f
```

```python
from fcommon import *
import fused as F1M
from fused import lit, w_addr, x_addr, g1_ids, prof, REF, NAME

RET, ACC = 128, 64
QF = [8, 16, 24]
QO, QX, QP = 32, 48, 64
FA, FV, WD, GAD, FOA, XSA, L32, GWA, F1A = 104, 106, 108, 112, 116, 122, 123, 124, 125
S_LO = "s63"
LINK = "s[96:97]"
FOUT = 144
S_K = "s98"
KLOAD = f"buffer_load_dwordx2 {vr(FV,2)}, v{FA}, {RWS}, 0 offen sc1"

def qg(P, opt, role, vm, lg, hooks):
    barstep = opt.get("barC", 6) if role == "C" else opt.get("barL", 6)
    def reads(i):
        f = QF[i % 3]; o = (i & 7) * 2048
        return [(f"ds_read_b64_tr_b16 {vr(f,2)}, v2 offset:{o}", f"F{i}a"), (f"ds_read_b64_tr_b16 {vr(f+2,2)}, v2 offset:{o+512}", f"F{i}a"),
                (f"ds_read_b64_tr_b16 {vr(f+4,2)}, v3 offset:{o}", f"F{i}b"), (f"ds_read_b64_tr_b16 {vr(f+6,2)}, v3 offset:{o+512}", f"F{i}b")]
    for i in range(32):
        n = 16 + (i >> 3)
        if (i & 7) == barstep:
            if f"pre{n}" in hooks: hooks[f"pre{n}"]()
            P("s_barrier")
            if opt.get("tsq"): P(f"; TS {n+3}")
        if i + 2 < 32 and ((i + 2) & 7) == 0:
            P("v_add_u32 v2, 0x8000, v2"); P("v_add_u32 v3, 0x8000, v3")
        R = reads(i + 2) if i + 2 < 32 else []
        f = QF[i % 3]
        for half in ((0, 1) if i < 31 else (1, 0)):
            lg.need(f"F{i}" + "ab"[half])
            a = (QO, QX)[half]
            P(f"{M32} {vr(a,16)}, {vr(f+4*half,4)}, {vr(RET+4*i,4)}, {vr(a,16) if i else 0}")
            for r in R[half * 2:half * 2 + 2]: lg.issue(*r)
        for h in hooks.get(i, []): h()

def setup_hooks(P, opt):
    def h_ids():
        g1_ids(P)
        P(f"s_lshl_b32 s61, s2, 2"); P(f"s_add_u32 s61, s61, {S_WL}")
        P(f"s_lshr_b32 s62, {S_W}, 2")
        P(f"s_lshl_b32 s64, {S_RB}, 2"); P(f"s_add_u32 s64, s64, {S_WL}"); P("s_lshl_b32 s64, s64, 4"); P(f"s_add_u32 s64, s64, {S_CB}"); P("s_lshl_b32 s64, s64, 1"); P("s_add_u32 s64, s64, s62")
        P("s_lshl_b32 s65, s62, 18")
    def h_kv():
        P(f"s_lshl_b32 s3, {S_PRB}, 1"); P("v_add_u32 v5, s3, v0"); P("v_and_b32 v5, 31, v5"); P("v_lshrrev_b32 v6, 5, v0"); P("v_lshlrev_b32 v6, 13, v6")
        P(f"s_lshl_b32 s3, {S_CB}, 1"); P("s_add_u32 s3, s3, s62"); P("s_lshl_b32 s3, s3, 8"); P(f"s_add_u32 s3, s3, {FL2}")
        P("v_lshl_add_u32 v5, v5, 3, v6"); P(f"v_add_u32 v{FA}, s3, v5")
        P(f"s_lshl_b32 s3, {S_CB}, 19")
        srd(P, 40, P_WS, 512 * 1024, "s3")
        P("v_add_u32 v4, s65, v1")
        P(f"s_lshl_b32 s52, {S_WL}, 1"); P("s_add_u32 s52, s52, s62"); P("s_lshl_b32 s52, s52, 12")
        P(f"s_lshl_b32 {S_K}, {S_PRB}, 2"); P(f"s_add_u32 {S_K}, {S_K}, {S_WL}"); P(f"s_lshl_b32 {S_K}, {S_K}, 12")
    def h_misc():
        P(f"v_lshlrev_b32 v{L32}, 5, v0")
    def h_wd1():
        P("s_lshl_b32 s56, s54, 16"); P(f"s_and_b32 s3, {S_WL}, 1"); P("s_lshl_b32 s3, s3, 8"); P("s_add_u32 s56, s56, s3"); P("s_lshl_b32 s3, s62, 15"); P("s_add_u32 s56, s56, s3")
        P("v_lshrrev_b32 v5, 4, v0"); P("v_and_b32 v6, 15, v0"); P("v_xor_b32 v7, v6, v5"); P("v_lshlrev_b32 v7, 4, v7")
        P(f"v_lshl_add_u32 v{GAD}, v6, 8, v7")
        P("v_lshl_add_u32 v7, v5, 11, v7"); P(f"v_add_u32 v{WD}, s56, v7")
    def h_wd2():
        for n in range(1, 4):
            P(f"v_xor_b32 v{WD+n}, {n<<6}, v{WD}"); P(f"v_add_u32 v{WD+n}, {(4*n<<11) - 1024*n}, v{WD+n}")
        P(f"s_lshl_b32 s57, {S_WL}, 13"); P("s_lshl_b32 s3, s62, 12"); P("s_add_u32 s57, s57, s3")
    def h_g1a():
        P("s_lshl_b32 s3, s62, 14"); P(f"s_add_u32 s3, s3, {U[3]}"); P(f"v_add_u32 v{GAD}, s3, v{GAD}")
        for k in range(1, 4): P(f"v_xor_b32 v{GAD+k}, {k<<6}, v{GAD}")
        P(f"s_cmp_lt_u32 {S_WL}, 2")
        P(f"s_cselect_b32 s44, s{P_WDR}, s{P_WDI}"); P(f"s_cselect_b32 s45, s{P_WDR+1}, s{P_WDI+1}"); P(f"s_mov_b32 s46, {2*MB}"); P("s_mov_b32 s47, 0x00020000")
    return [h_ids, h_kv, h_misc, h_wd1, h_wd2, h_g1a]

def fold_job(P, vm, lg):
    F1, F2, R1, R2, E1, E2, GX, GW, TM, EE, OO, FO, A, XS, GS, BP, GA_ = 64, 68, 72, 76, 80, 81, 84, 92, 100, 128, 136, 144, 116, 122, 124, 126, 103
    t0, t1, t2, t3 = 100, 127, 101, 102
    def st1():
        P(f"s_lshl_b32 s61, s2, 2"); P(f"s_add_u32 s61, s61, {S_WL}")
        P("s_lshr_b32 s3, s61, 4"); P("s_lshl_b32 s3, s3, 1"); P("s_and_b32 s56, s61, 1"); P("s_add_u32 s3, s3, s56"); P("s_lshl_b32 s3, s3, 14")
        P(f"v_lshrrev_b32 v{BP}, 3, v0"); P(f"v_lshlrev_b32 v{t0}, 11, v{BP}"); P(f"v_add_u32 v{t0}, s3, v{t0}")
        P(f"v_sub_u32 v{t1}, {4*MB}, v{t0}")
        P("s_and_b32 s3, s61, 14"); P("s_lshl_b32 s3, s3, 6")
        P(f"v_and_b32 v{GS}, 0x70, v1"); P(f"v_add_u32 v{t2}, s3, v{GS}")
        P(f"v_add_u32 v{A}, v{t0}, v{t2}"); P(f"v_add_u32 v{A+1}, v{t1}, v{t2}")
        srd(P, 48, P_AX, 4 * MB); srd(P, 40, P_WDR, 513 * 2048)
        for r, a in ((F1, 0), (F2, 1)): vm.issue(f"buffer_load_dwordx4 {vr(r,4)}, v{A+a}, s[48:51], 0 offen", "FO")
    def st2():
        P(f"v_lshrrev_b32 v{XS}, 9, v{t0}"); P(f"v_add_u32 v{XS}, {SM_X512}, v{XS}")
        P(f"v_mov_b32 v{t3}, {OOB}"); P(f"v_cmp_eq_u32 vcc, 0x3f0, v{t2}"); P(f"v_cndmask_b32 v{XS}, v{t3}, v{XS}, vcc")
        P(f"v_sub_u32 v{t2}, 2032, v{t2}")
        P(f"v_add_u32 v{A+2}, v{t0}, v{t2}"); P(f"v_add_u32 v{A+3}, v{t1}, v{t2}")
        for r, a in ((R1, 2), (R2, 3)): vm.issue(f"buffer_load_dwordx4 {vr(r,4)}, v{A+a}, s[48:51], 0 offen", "FO")
    def st3():
        P("s_and_b32 s3, s61, 14"); P("s_cselect_b32 vcc_lo, 0x01010101, 0"); P("s_mov_b32 vcc_hi, vcc_lo")
        P(f"v_add_u32 v{t2}, 16, v{t2}"); P(f"v_cndmask_b32 v{t2}, v{t3}, v{t2}, vcc")
        P(f"v_add_u32 v{A+4}, v{t0}, v{t2}"); P(f"v_add_u32 v{A+5}, v{t1}, v{t2}")
        for r, a in ((E1, 4), (E2, 5)): vm.issue(f"buffer_load_ushort v{r}, v{A+a}, s[48:51], 0 offen", "FO")
    def st4():
        P("s_lshl_b32 s3, s61, 11"); P(f"v_add_u32 v{GA_}, s3, v1")
        P("s_cmp_gt_u32 s61, 512"); P(f"s_cselect_b32 s3, {OOB}, {2*MB}")
        vm.issue(f"buffer_load_dwordx4 {vr(GX,4)}, v1, s[48:51], s3 offen", "G"); vm.issue(f"buffer_load_dwordx4 {vr(GX+4,4)}, v1, s[48:51], s3 offen offset:1024", "G")
    def st5():
        vm.issue(f"buffer_load_dwordx4 {vr(GW,4)}, v{GA_}, s[40:43], 0 offen", "G"); vm.issue(f"buffer_load_dwordx4 {vr(GW+4,4)}, v{GA_}, s[40:43], 0 offen offset:1024", "G")
        P(f"v_lshl_add_u32 v{t1}, v{BP}, 8, v{GS}")
        P(f"v_lshlrev_b32 v{BP}, 2, v{BP}"); P(f"v_lshl_add_u32 v{BP}, v{GS}, 1, v{BP}")
        P("v_cmp_eq_u32 vcc, 63, v0"); P(f"v_cndmask_b32 v{GS}, v{t3}, 0, vcc")
    def unp(dst, src, j):
        if j & 1: P(f"v_and_b32 v{dst}, 0xffff0000, v{src + (j >> 1)}")
        else:     P(f"v_lshlrev_b32 v{dst}, 16, v{src + (j >> 1)}")
    def f0():
        vm.need("FO")
        P("s_mov_b32 vcc_lo, 0x01010101"); P("s_mov_b32 vcc_hi, 0x01010101")
        for e, r in ((E1, R1), (E2, R2)): P(f"v_cndmask_b32_dpp v{e}, v{r}, v{e}, vcc row_shr:1 row_mask:0xf bank_mask:0xf bound_ctrl:0")
    def fa1(j):
        def f():
            unp(TM, F1, j); unp(TM + 1, F2, j)
            if j == 0: P(f"v_lshlrev_b32 v{TM+2}, 16, v{E1}"); P(f"v_lshlrev_b32 v{TM+3}, 16, v{E2}")
            else: unp(TM + 2, R1, 8 - j); unp(TM + 3, R2, 8 - j)
        return f
    def fa2(j):
        def f():
            P(f"v_add_f32 v{TM}, v{TM}, v{TM+3}"); P(f"v_add_f32 v{TM+1}, v{TM+1}, v{TM+2}")
            P(f"v_add_f32 v{EE+j}, v{TM}, v{TM+1}"); P(f"v_sub_f32 v{OO+j}, v{TM}, v{TM+1}")
        return f
    def fb1():
        unp(TM + 2, R1, 0); unp(TM + 3, R2, 0); P(f"v_add_f32 v{FO+8}, v{TM+2}, v{TM+3}")
        P("s_lshr_b32 s58, s61, 1"); P("s_lshl_b32 s58, s58, 4"); P("s_and_b32 s3, s61, 1"); P("s_add_u32 s58, s58, s3"); P("s_lshl_b32 s58, s58, 7")
        P(f"s_add_u32 s59, s58, {WS_XE+MB}"); P(f"s_add_u32 s58, s58, {WS_XE}")
        vm.issue(f"buffer_store_dword v{FO+8}, v{XS}, {RWS}, 0 offen sc1", "FS")
    def fb2(h):
        def f():
            for r in range(4 * h, 4 * h + 4): P(f"v_cvt_pk_bf16_f32 v{FO+r}, v{EE+2*r}, v{EE+2*r+1}")
        return f
    def fb3(h):
        def f():
            for r in range(2 * h, 2 * h + 2): lg.issue(f"ds_bpermute_b32 v{F1+r}, v{BP}, v{FO+r}", f"BP{h>>1}")
        return f
    def fb4(h):
        def f():
            lg.need(f"BP{h}")
            vm.issue(f"buffer_store_dwordx4 {vr(F1+4*h,4)}, v{t1}, {RWS}, s{58+h} offen sc1", "FS")
        return f
    def gj(a):
        def f():
            if a == 0: vm.need("G"); P(f"v_mov_b32 v{FO+9}, 0")
            for r in range(a, a + 2): P(f"v_dot2_f32_bf16 v{FO+9}, v{GX+r}, v{GW+r}, v{FO+9}")
        return f
    v = FO + 9
    D = [f"v_add_f32_dpp v{v}, v{v}, v{v} {m} row_mask:0xf bank_mask:0xf bound_ctrl:0" for m in ("row_shr:1", "row_shr:2", "row_shr:4", "row_shr:8")]
    D += [f"v_add_f32_dpp v{v}, v{v}, v{v} row_bcast:15 row_mask:0xa bank_mask:0xf", f"v_add_f32_dpp v{v}, v{v}, v{v} row_bcast:31 row_mask:0xc bank_mask:0xf"]
    def gst():
        P("s_lshl_b32 s3, s61, 2"); P(f"s_add_u32 s3, s3, {SM_G}")
        vm.issue(f"buffer_store_dword v{FO+9}, v{GS}, {RWS}, s3 offen sc1", "FS")
    def flag():
        P("s_lshl_b32 s3, s61, 3"); P(f"s_add_u32 s3, s3, {FL1}")
        P(f"v_mov_b32 v{TM}, s32"); P(f"v_mov_b32 v{TM+1}, s33"); P(f"v_mov_b32 v{TM+2}, 0")
        vm.need("FS")
        vm.issue(f"buffer_store_dwordx2 {vr(TM,2)}, v{TM+2}, {RWS}, s3 offen sc1", "F1")
    L = [f0]
    for j in range(8): L += [fa1(j), fa2(j)]
    L += [fb1, fb2(0), fb2(1), fb3(0), fb3(1), fb3(2), fb3(3), gj(0), fb4(0), gj(2), fb4(1), gj(4), gj(6)] + [(lambda d=d: P(d)) for d in D] + [gst]
    return [st1, st2, st3, st4, st5], L, flag

def x_job(P, vm, a, d):
    load = f"buffer_load_dwordx2 {vr(d,2)}, v{a}, {RWS}, 0 offen sc1"
    def poll():
        g1_ids(P)
        P(f"v_and_b32 v{a}, 15, v0"); P(f"v_lshlrev_b32 v{a}, 3, v{a}"); P("s_lshl_b32 s3, s55, 7"); P(f"s_add_u32 s3, s3, {FL1}"); P(f"v_add_u32 v{a}, s3, v{a}")
        vm.issue(load, "F")
        P("s_lshl_b32 s100, s55, 14"); P(f"s_lshr_b32 s3, {S_W}, 2"); P("s_lshl_b32 s3, s3, 20"); P("s_add_u32 s100, s100, s3"); P(f"s_add_u32 s100, s100, {WS_XE}")
    def check():
        vm.need("F")
        spin(P, load, flags_ok(P, d))
    def xld(k):
        def f():
            if k % 4 == 0 and k: P("s_add_u32 s100, s100, 4096")
            vm.issue(f"buffer_load_dwordx4 {vr(RET+4*k,4)}, v1, {RWS}, s100 offen offset:{1024*(k%4)} sc1", f"X{k}")
        return f
    return poll, check, xld

def phase1_C(P, opt):
    XO, XT, WA = 2, 6, 10
    SET = [dict(XO=32, XT=36, WK=40, WV=44), dict(XO=48, XT=52, WK=56, WV=60)]
    vm = VM(P); lg = LG(P)
    TL = opt.get("tl", 2)
    P(f"s_lshl_b32 s3, {S_RB}, 2"); P(f"s_and_b32 s58, {S_J}, 3"); P("s_add_u32 s3, s3, s58"); P("s_lshl_b32 s3, s3, 2"); P(f"s_add_u32 s3, s3, {S_W}"); P("s_lshl_b32 s3, s3, 14")
    P("v_and_b32 v17, 7, v0"); P("v_lshlrev_b32 v17, 11, v17"); P("v_lshrrev_b32 v18, 3, v0"); P("v_lshl_add_u32 v17, v18, 7, v17"); P("v_add_u32 v17, s3, v17")
    P(f"v_mov_b32 v21, {OOB}"); P("v_cmp_gt_u32 vcc, 16, v0"); P("v_cndmask_b32 v17, v21, v17, vcc")
    P(f"s_lshr_b32 s3, {S_J}, 2"); P("s_lshl_b32 s3, s3, 2"); P(f"s_add_u32 s3, s3, {S_W}"); P("s_lshl_b32 s3, s3, 1")
    P("v_and_b32 v18, 1, v0"); P("v_add_u32 v22, s3, v18")
    P("v_bfe_u32 v18, v0, 1, 1"); P("v_lshl_add_u32 v18, v18, 6, v22"); P("v_mul_u32_u24 v18, 0x1800, v18")
    P("s_lshl_b32 s3, s52, 7"); P("s_add_u32 s3, s3, 2048"); P("s_lshl_b32 s58, s53, 7"); P("s_add_u32 s58, s58, 4096")
    P("v_mov_b32 v20, s3"); P("v_mov_b32 v23, s58"); P("v_cmp_gt_u32 vcc, 4, v0"); P("v_cndmask_b32 v20, v23, v20, vcc"); P("v_add_u32 v18, v18, v20")
    P("v_cmp_gt_u32 vcc, 8, v0"); P("v_cndmask_b32 v18, v21, v18, vcc")
    P("s_waitcnt lgkmcnt(0)")
    def touch(p):
        if p > 7: return
        vm.issue(f"buffer_load_dword v24, v17, s[40:43], 0 offen offset:{256*p}")
        P(f"s_mov_b32 s3, {p*786432}")
        vm.issue("buffer_load_dword v24, v18, s[44:47], s3 offen")
    srd(P, 40, P_BX, 4 * MB); srd(P, 44, P_WQKV, 6 * MB)
    for p_ in range(opt.get("t0", 1), TL + 1): touch(p_)
    P("v_lshrrev_b32 v19, 1, v0"); P("v_lshl_add_u32 v19, v19, 6, v22"); P("v_mul_u32_u24 v19, 0x1800, v19"); P(f"s_lshl_b32 s3, {S_CB}, 7"); P("v_add_u32 v19, s3, v19")
    x_addr(P, XO, 10)
    for k in range(4): P(f"v_xor_b32 v{XT+k}, 0x1000, v{XO+k}")
    P(f"s_and_b32 s57, {S_W}, 1")
    w_addr(P, WA, "s57")
    P(f"v_add_u32 v{WA}, 0x4000, v{WA}")
    P("v_lshlrev_b32 v1, 4, v0")
    P("v_mov_b32 v16, 0")
    srd(P, 36, P_WS, WS_SIZE); srd(P, 48, P_DBG, 256)
    P(f"s_or_b32 s3, s2, {S_W}"); P("s_cmp_lg_u32 s3, 0"); P("s_cbranch_scc1 C_NN")
    P("s_memrealtime s[58:59]"); P("s_waitcnt lgkmcnt(0)"); P("s_or_b32 s58, s58, 1")
    P("v_mov_b32 v12, s58"); P("v_mov_b32 v13, s59")
    P("buffer_store_dwordx2 v[12:13], v16, s[48:51], 0 offen sc1")
    P.label("C_NN")
    NLOAD = "buffer_load_dwordx2 v[12:13], v16, s[48:51], 0 offen sc1"
    HK = {}
    def hk(p, f): HK.setdefault(p, []).append(f)
    def atouch():
        P(f"s_lshl_b32 s56, s2, 2"); P(f"s_add_u32 s56, s56, {S_WL}")
        P("s_lshr_b32 s3, s56, 4"); P("s_lshl_b32 s3, s3, 1"); P("s_and_b32 s58, s56, 1"); P("s_add_u32 s3, s3, s58"); P("s_lshl_b32 s3, s3, 14")
        P("v_and_b32 v25, 7, v0"); P("v_lshlrev_b32 v25, 11, v25"); P("v_add_u32 v25, s3, v25"); P(f"v_sub_u32 v26, {4*MB}, v25")
        P("s_mov_b32 vcc_lo, 0xff00ff00"); P("s_mov_b32 vcc_hi, 0"); P("v_cndmask_b32 v25, v25, v26, vcc")
        P("s_and_b32 s3, s56, 14"); P("s_lshl_b32 s3, s3, 6"); P("s_sub_u32 s58, 1920, s3")
        P("v_mov_b32 v26, s3"); P("v_mov_b32 v27, s58"); P("s_mov_b32 vcc_lo, 0xffff0000"); P("v_cndmask_b32 v26, v26, v27, vcc"); P("v_add_u32 v25, v25, v26")
        P("v_lshlrev_b32 v26, 7, v0"); P(f"v_add_u32 v27, {2*MB-4096}, v26"); P("s_mov_b32 vcc_lo, 0"); P("s_mov_b32 vcc_hi, 0xffff"); P("v_cndmask_b32 v25, v25, v27, vcc")
        P("s_mov_b32 vcc_hi, 0xffff0000"); P("v_cndmask_b32 v25, v25, v21, vcc")
        srd(P, 60, P_AX, 4 * MB)
        vm.issue("buffer_load_dword v24, v25, s[60:63], 0 offen")
        P(f"s_mov_b32 s60, s{P_WDR}"); P(f"s_mov_b32 s61, s{P_WDR+1}"); P(f"s_mov_b32 s62, {513*2048}")
        P("v_cmp_gt_u32 vcc, 16, v0"); P("s_lshl_b32 s3, s56, 11"); P("v_cndmask_b32 v26, v21, v26, vcc")
        vm.issue("buffer_load_dword v24, v26, s[60:63], s3 offen")
    if opt.get("at", -1) >= 0: hk(opt["at"], atouch)
    hk(opt.get("nl", 12 * 16 + 10), lambda: vm.issue(NLOAD, "N"))
    def ncheck():
        vm.need("N")
        spin(P, NLOAD, nonce_ok(P, 12))
    hk(15 * 16 + 2, ncheck)
    P("s_setprio 2")
    P("; TS 0")
    P("s_barrier")
    P("; TS 1")
    def xo(s, ks): return RET + 4 * (4 * (s - 8) + ks) if s >= 8 else SET[ks & 1]["XO"]
    def reads(s, ks):
        t = SET[ks & 1]; g = f"{s}_{ks}"
        return [(f"ds_read_b128 {vr(xo(s,ks),4)}, v{XO+ks}", "XO" + g),
                (f"ds_read_b64_tr_b16 {vr(t['WK'],2)}, v{WA} offset:{ks*2048}", "WK" + g),
                (f"ds_read_b64_tr_b16 {vr(t['WK']+2,2)}, v{WA} offset:{ks*2048+512}", "WK" + g),
                (f"ds_read_b128 {vr(t['XT'],4)}, v{XT+ks}", "XT" + g),
                (f"ds_read_b64_tr_b16 {vr(t['WV'],2)}, v{WA} offset:{8192+ks*2048}", "WV" + g),
                (f"ds_read_b64_tr_b16 {vr(t['WV']+2,2)}, v{WA} offset:{8192+ks*2048+512}", "WV" + g)]
    for r in reads(0, 0): lg.issue(*r)
    for s in range(16):
        for ks in range(4):
            t = SET[ks & 1]; g = f"{s}_{ks}"
            last = ks == 3
            R = reads(s, ks + 1) if not last else (reads(s + 1, 0) if s < 15 else [])
            d = lit(32768 if s % 5 != 4 else -131072)
            for i in range(4):
                x, xt = (xo(s, ks), "XO") if i % 2 == 0 else (t["XT"], "XT")
                w = "WK" if i < 2 else "WV"
                lg.need(xt + g, w + g)
                A, B = (t[w], x) if i < 2 else (x, t[w])
                a = ACC + 16 * i
                P(f"{M32} {vr(a,16)}, {vr(A,4)}, {vr(B,4)}, {vr(a,16) if (s or ks) else 0}")
                if last and s < 15:
                    if i == 0:
                        for r in (XO, WA, XT): P(f"v_add_u32 v{r}, {d}, v{r}")
                    if i == 2:
                        for k in range(1, 4): P(f"v_add_u32 v{XO+k}, {d}, v{XO+k}"); P(f"v_add_u32 v{XT+k}, {d}, v{XT+k}")
                if i < 2:
                    for r in R[3 * i:3 * i + 3]: lg.issue(*r)
                if ks == 1 and i == 3:
                    P("s_barrier")
                    if s in (0, 4, 8, 12): P(f"; TS {2 + s // 4}")
                if ks == 2 and i == 0:
                    if s % 2 == 0: touch(TL + 1 + s // 2)
                    if s == opt.get("tq", 7): vm.issue("buffer_load_dword v24, v19, s[44:47], 0 offen")
                for f in HK.get(16 * s + 4 * ks + i, []): f()
                if s == 15 and ks == 0 and i == 2:
                    P(f"s_lshl_b32 s58, {S_PRB}, 2"); P(f"s_add_u32 s58, s58, {S_W}"); P("s_lshl_b32 s58, s58, 12")
                    P("s_lshl_b32 s59, s52, 1"); P("s_add_u32 s59, s59, s57")
                    P("s_lshl_b32 s60, s53, 1"); P("s_add_u32 s60, s60, s57")
                    P("s_lshl_b32 s61, s59, 18"); P("s_add_u32 s61, s61, s58"); P("s_xor_b32 s62, s61, 0x1000")
                    P("s_lshl_b32 s63, s60, 18"); P("s_add_u32 s63, s63, s58"); P("s_xor_b32 s64, s63, 0x1000")
                if s == 15 and ks == 1 and i == 2:
                    P("v_and_b32 v30, 0x33, v0")
                    P("v_bfe_u32 v31, v0, 2, 1"); P("v_lshl_or_b32 v30, v31, 3, v30")
                    P("v_bfe_u32 v31, v0, 3, 1"); P("v_lshl_or_b32 v30, v31, 2, v30")
                    P("v_lshlrev_b32 v30, 4, v30")
                if s == 15 and ks == 3 and i == 0:
                    P(f"s_lshl_b32 s3, s57, 6"); P(f"v_xor_b32 v2, s3, v{WA}"); P(f"v_add_u32 v2, {U[1]}, v2"); P("v_xor_b32 v3, 64, v2")
    P("; TS 6")
    for i in range(4):
        a = ACC + 16 * i; d = ACC + 8 * i
        for r in range(8): P(f"v_cvt_pk_bf16_f32 v{d+r}, v{a+2*r}, v{a+2*r+1}")
        va, off = (30, 0) if i < 2 else (1, 2048)
        vm.issue(f"buffer_store_dwordx4 {vr(d,4)}, v{va}, {RWS}, s{61+i} offen offset:{off} sc1", "KV")
        vm.issue(f"buffer_store_dwordx4 {vr(d+4,4)}, v{va}, {RWS}, s{61+i} offen offset:{off+1024} sc1", "KV")
        if i == 2: P("v_mov_b32 v102, v30")
        if i >= 2:
            f = QF[i - 2]; o = (i - 2) * 2048; q = i - 2
            lg.issue(f"ds_read_b64_tr_b16 {vr(f,2)}, v2 offset:{o}", f"F{q}a"); lg.issue(f"ds_read_b64_tr_b16 {vr(f+2,2)}, v2 offset:{o+512}", f"F{q}a")
            lg.issue(f"ds_read_b64_tr_b16 {vr(f+4,2)}, v3 offset:{o}", f"F{q}b"); lg.issue(f"ds_read_b64_tr_b16 {vr(f+6,2)}, v3 offset:{o+512}", f"F{q}b")
    P("s_setprio 0")
    P("; TS 7")
    def kvflag0():
        P("s_add_u32 s60, s60, 32"); P("s_lshl_b32 s59, s59, 8"); P("s_lshl_b32 s60, s60, 8")
        P(f"s_lshl_b32 s3, {S_PRB}, 1"); P(f"s_lshr_b32 s58, {S_W}, 1"); P("s_add_u32 s58, s3, s58"); P("s_lshl_b32 s58, s58, 3"); P(f"s_add_u32 s58, s58, {FL2}")
        P(f"v_mov_b32 v96, s59"); P(f"v_mov_b32 v97, s60"); P("v_cmp_eq_u32 vcc, 0, v0"); P(f"v_cndmask_b32 v96, v97, v96, vcc")
        P(f"v_mov_b32 v98, s32"); P(f"v_mov_b32 v99, s33")
        P(f"v_mov_b32 v{XSA}, 0"); P(f"v_mov_b32 v{GWA}, 0")
    def kvflag():
        vm.need("KV")
        P("; TS 8")
        vm.issue(f"buffer_store_dwordx2 v[98:99], v96, {RWS}, s58 offen sc1", "FK")
    def slot(src, back):
        P(f"s_sub_u32 s3, {src}, {back}"); P("s_cselect_b32 s58, 12, 0"); P("s_add_u32 s3, s3, s58")
        P("s_lshl_b32 s3, s3, 1"); P("s_add_u32 s3, s3, s59"); P("s_lshl_b32 s3, s3, 12")
    def own1():
        P(f"s_and_b32 s59, {S_W}, 1"); P(f"s_xor_b32 s60, {S_W}, 1")
        slot(S_W, 2); P("v_add_u32 v96, s3, v102"); P("v_xor_b32 v97, 0x2000, v96")
        slot(S_W, 0); P("v_add_u32 v100, s3, v1"); P("v_xor_b32 v101, 0x2000, v100")
    def own2():
        slot(S_W, 1); P("v_add_u32 v98, s3, v1")
        slot("s60", 1); P("v_add_u32 v99, s3, v1")
    OW = [(96, 0, 64), (96, 1024, 68), (97, 0, 72), (97, 1024, 76), (98, 2048, 80), (100, 3072, 84), (99, 2048, 88), (101, 3072, 92)]
    H = {0: [kvflag0]}
    for n, h in enumerate(setup_hooks(P, opt)): H.setdefault(1 + n, []).append(h)
    kf = opt.get("kvflag", 12)
    assert kf < 22
    H.setdefault(kf, []).append(kvflag)
    H.setdefault(22, []).append(own1); H.setdefault(23, []).append(own2)
    for n, (a, o, d) in enumerate(OW):
        H.setdefault(24 + n // 2, []).append(lambda a=a, o=o, d=d: lg.issue(f"ds_write_b128 v{a}, {vr(d,4)} offset:{o}", "OW"))
    H.setdefault(opt.get("kpC", 23), []).append(lambda: vm.issue(KLOAD, "KF"))
    qg(P, opt, "C", vm, lg, H)
    P("s_branch F_ATT")

def phase1_L(P, opt):
    vm = VM(P); lg = LG(P)
    DX, DW, XA = 2, 6, 8
    P("v_lshrrev_b32 v1, 3, v0")
    P("v_and_b32 v6, 7, v0")
    P("v_lshrrev_b32 v7, 4, v0")
    P("v_xor_b32 v8, v6, v7")
    P("v_lshlrev_b32 v8, 4, v8")
    P("v_lshl_add_u32 v8, v1, 11, v8")
    P(f"s_lshl_b32 s56, {S_RB}, 18"); P(f"s_lshl_b32 s57, {S_WL}, 16"); P("s_add_u32 s56, s56, s57")
    P("v_add_u32 v2, s56, v8")
    P("v_xor_b32 v3, 64, v2")
    P(f"v_add_u32 v3, {16384-1024}, v3")
    P(f"v_add_u32 v4, {32768-2048}, v2")
    P(f"v_add_u32 v5, {32768-2048}, v3")
    P("v_and_b32 v7, 1, v7")
    P("v_lshlrev_b32 v7, 2, v7")
    P("v_xor_b32 v6, v6, v7")
    P("v_lshlrev_b32 v6, 4, v6")
    P(f"s_lshl_b32 s56, {S_WL}, 4")
    P("v_add_u32 v1, s56, v1")
    P("v_mul_u32_u24 v1, 0x1800, v1")
    P("v_add_u32 v6, v1, v6")
    P(f"v_add_u32 v7, {8*6144-1024}, v6")
    P("s_lshl_b32 s52, s52, 7"); P("s_add_u32 s52, s52, 2048")
    P("s_lshl_b32 s53, s53, 7"); P("s_add_u32 s53, s53, 4096")
    P(f"s_lshl_b32 s58, {S_WL}, 12")
    P(f"s_lshl_b32 s59, {S_WL}, 11")
    P(f"s_lshl_b32 s60, {S_CB}, 7")
    P("s_waitcnt lgkmcnt(0)")
    srd(P, 40, P_BX, 4 * MB); srd(P, 44, P_WQKV, 6 * MB)
    def D(n, part=None):
        u = U[n % 5]; t = f"D{n}"
        if n < 16:
            P(f"s_add_u32 m0, s58, {u}"); P(f"s_movk_i32 s3, {n*128}")
            for i in range(4): vm.issue(f"buffer_load_dwordx4 v{DX+i}, s[40:43], s3 offen offset:{1024*i} lds", t)
            subs = [(16384, "s52", n), (24576, "s53", n)]
        else:
            q = n - 16
            subs = [(8192 * b, "s60", (b >> 1) * 8 + 2 * q + (b & 1)) for b in range(4)]
        if part is not None: subs = subs[part:part + 1]
        for lo, sc, st in subs:
            P(f"s_add_u32 m0, s59, {u+lo}"); P(f"s_add_u32 s3, {sc}, {st*393216}")
            vm.issue(f"buffer_load_dwordx4 v{DW}, s[44:47], s3 offen lds", t)
            vm.issue(f"buffer_load_dwordx4 v{DW+1}, s[44:47], s3 offen offset:1024 lds", t)
    pre0 = opt.get("pre0", 2)
    for n in range(pre0): D(n)
    srd(P, 36, P_WS, WS_SIZE); srd(P, 48, P_DBG, 256)
    x_addr(P, XA, 18)
    P("v_lshlrev_b32 v1, 4, v0")
    P("v_mov_b32 v16, 0")
    NLOAD = "buffer_load_dwordx2 v[12:13], v16, s[48:51], 0 offen sc1"
    def ret(s):
        for ks in range(4): lg.issue(f"ds_read_b128 {vr(RET+16*s+4*ks,4)}, v{XA+ks}", "R")
        d = lit(32768 if s % 5 != 4 else -131072)
        for ks in range(4): P(f"v_add_u32 v{XA+ks}, {d}, v{XA+ks}")
    vm.need("D0")
    P("; TS 0")
    P("s_barrier")
    P("; TS 1")
    ret(0)
    for n in range(pre0, 4): D(n)
    hooks = setup_hooks(P, opt)
    fstart, fparts, fflag = fold_job(P, vm, lg)
    for n in range(16):
        vm.need(f"D{n+1}")
        lg.drain()
        P("s_barrier")
        if n in (0, 4, 8, 12): P(f"; TS {2 + n // 4}")
        if n < 7: ret(n + 1)
        if n == 9: vm.issue(NLOAD, "N")
        if n < 15 or opt.get("d19", 1): D(n + 4)
        if n == 13:
            vm.need("N")
            spin(P, NLOAD, nonce_ok(P, 12))
    P("; TS 6")
    w_addr(P, 2, "1"); P(f"v_add_u32 v2, {U[1]}, v2"); P("v_xor_b32 v3, 64, v2")
    for i in range(2):
        f = QF[i]; o = i * 2048
        lg.issue(f"ds_read_b64_tr_b16 {vr(f,2)}, v2 offset:{o}", f"F{i}a"); lg.issue(f"ds_read_b64_tr_b16 {vr(f+2,2)}, v2 offset:{o+512}", f"F{i}a")
        lg.issue(f"ds_read_b64_tr_b16 {vr(f+4,2)}, v3 offset:{o}", f"F{i}b"); lg.issue(f"ds_read_b64_tr_b16 {vr(f+6,2)}, v3 offset:{o+512}", f"F{i}b")
    H = {}
    for n in range(16, 19): H[f"pre{n}"] = (lambda n=n: vm.need(f"D{n+1}"))
    if not opt.get("d19", 1):
        for b in range(4): H.setdefault(b, []).append(lambda b=b: D(19, b))
    fa = opt.get("foat", 6)
    for n, h in enumerate(fstart): H.setdefault(fa + n, []).append(h)
    for n, h in enumerate(hooks): H.setdefault(fa + 5 + n, []).append(h)
    f0 = opt.get("fold", 20); fr = opt.get("foldr", 4)
    assert f0 >= 4 and f0 + 17 // fr >= 7
    for n, f in enumerate(fparts): H.setdefault(f0 + n // fr, []).append(f)
    fl = opt.get("fflag", -1)
    if fl >= 0:
        assert fl > f0 + len(fparts) // fr
        H.setdefault(fl, []).append(fflag)
    H.setdefault(opt.get("kpL", 24), []).append(lambda: vm.issue(KLOAD, "KF"))
    qg(P, opt, "L", vm, lg, H)

ONES, LS, Q, K, V, C, O, SA, SB = 8, 12, 16, 24, 32, 40, 56, 72, 88
RW = 105
TR, AC, AF, PA, RA, RD, CW, CC, G5, CV = 128, 192, 208, 220, 228, 232, 236, 244, 252, 254
DO = GAD
WOU = [3, 4, 1, 2]
S_CR = "s99"

def g2_dma(P):
    def a():
        P(f"s_lshl_b32 s57, {S_XCD}, 2"); P(f"s_and_b32 s3, {S_J}, 3"); P("s_add_u32 s57, s57, s3")
        P("s_cmp_eq_u32 s65, 0")
        P(f"s_cselect_b32 s44, s{P_WSR}, s{P_WSI}"); P(f"s_cselect_b32 s45, s{P_WSR+1}, s{P_WSI+1}"); P(f"s_mov_b32 s46, {8*MB}")
        P(f"s_and_b32 s100, {S_W}, 2"); P(f"s_and_b32 s101, {S_W}, 1")
        P("s_lshl_b32 s59, s57, 17"); P("s_lshl_b32 s3, s100, 15"); P("s_add_u32 s59, s59, s3"); P("s_lshl_b32 s3, s101, 10"); P("s_add_u32 s59, s59, s3")
        P("v_lshrrev_b32 v6, 4, v0"); P("v_and_b32 v7, 15, v0"); P("v_xor_b32 v7, v7, v6"); P("v_lshlrev_b32 v7, 4, v7")
    def b():
        P("v_lshl_add_u32 v7, v6, 12, v7"); P(f"v_add_u32 v{WD}, s59, v7")
        P("s_lshr_b32 s59, s65, 4"); P("s_lshl_b32 s3, s101, 13"); P("s_add_u32 s59, s59, s3"); P("s_lshl_b32 s3, s100, 11"); P("s_add_u32 s59, s59, s3")
    def c():
        for n in range(1, 4):
            P(f"v_xor_b32 v{WD+n}, {n<<6}, v{WD}"); P(f"v_add_u32 v{WD+n}, {(4*n<<12) - 1024*n}, v{WD+n}")
    return [a, b, c]

def g2_ids(P):
    def a():
        P(f"s_lshr_b32 s54, {S_W}, 2"); P(f"s_bfe_u32 s55, {S_W}, 0x10001"); P(f"s_and_b32 s56, {S_W}, 1")
        P(f"s_lshr_b32 s58, {S_J}, 2"); P("s_lshl_b32 s58, s58, 1"); P("s_add_u32 s58, s58, s55")
    def f():
        P("s_lshl_b32 s3, s54, 4"); P("s_add_u32 s3, s3, s58"); P("s_lshl_b32 s3, s3, 1"); P("s_add_u32 s3, s3, s56"); P("s_lshl_b32 s60, s3, 15"); P("s_lshl_b32 s3, s3, 8"); P(f"s_add_u32 s3, s3, {FL3}")
        P(f"s_add_u32 s60, s60, {WS_TE}")
        P(f"v_and_b32 v{FA}, 31, v0"); P(f"v_lshlrev_b32 v{FA}, 3, v{FA}"); P(f"v_add_u32 v{FA}, s3, v{FA}")
    return [a, f]

def op_ids(P):
    P(f"s_and_b32 s61, {S_XCD}, 1"); P("s_lshl_b32 s61, s61, 3"); P(f"s_lshr_b32 s3, {S_J}, 3"); P("s_lshl_b32 s3, s3, 1"); P("s_add_u32 s61, s61, s3")
    P(f"s_bfe_u32 s3, {S_XCD}, 0x10001"); P("s_add_u32 s61, s61, s3")
    P(f"s_lshr_b32 s62, {S_XCD}, 2"); P("s_lshl_b32 s62, s62, 3"); P(f"s_and_b32 s3, {S_J}, 7"); P("s_add_u32 s62, s62, s3")

def attention(P, opt):
    vm = VM(P); lg = LG(P)
    vm.now = -2
    ool = []
    P.label("F_ATT")
    P("; TS 9")
    def kv_upd():
        P(f"v_cmp_eq_u64 vcc, {NON}, {vr(FV,2)}")
        P("s_and_b32 s53, vcc_lo, vcc_hi")
    def kv_ok(bits):
        def f():
            kv_upd()
            P(f"s_andn2_b32 s3, {bits}, s53")
            P("s_cmp_eq_u32 s3, 0")
        return f
    def kvp(u, *pcs):
        def a():
            P(f"s_add_u32 m0, s52, {U[u % 3]}")
            last = None
            for pc in pcs:
                d = (2, 2, 1, 0)[pc]
                if d != last: P(f"s_add_u32 s3, {S_K}, {(4 * u + d) * 4096}"); P("s_and_b32 s3, s3, 0x3ffff")
                last = d
                vm.issue(f"buffer_load_dwordx4 v4, s[40:43], s3 offen offset:{1024*pc} sc1 lds", f"H{u}")
        return a
    P(f"s_lshl_b32 s3, {S_W}, 12"); P(f"s_add_u32 s3, s3, {U[3]}")
    P("v_add_u32 v2, s3, v1"); P("v_xor_b32 v3, 0x4000, v2")
    P("s_waitcnt vmcnt(0)")
    spin(P, KLOAD, kv_ok("28"))
    P("; TS 10")
    P(f"s_cmp_lt_u32 {S_WL}, 2"); P("s_cbranch_scc1 A_N0")
    kvp(0, 0, 1)()
    P(f"s_cmp_lt_u32 {S_WL}, 3"); P("s_cbranch_scc1 A_N0")
    kvp(0, 2)()
    P.label("A_N0")
    for g in range(4):
        lg.issue(f"ds_write_b128 v2, {vr(QX+4*g,4)} offset:{1024*g}", "QW")
        kvp(1, g)()
    P("v_mov_b32 v5, 0xdddddddd")
    P("v_and_b32 v6, 7, v0"); P("v_mov_b32 v7, 0x3f803f80")
    P("v_cmp_eq_u32 vcc, 0, v6"); P(f"v_cndmask_b32 v{ONES}, 0, v7, vcc"); P(f"v_cndmask_b32 v{ONES+1}, 0, v7, vcc")
    P("v_cmp_eq_u32 vcc, 4, v6"); P(f"v_cndmask_b32 v{ONES+2}, 0, v7, vcc"); P(f"v_cndmask_b32 v{ONES+3}, 0, v7, vcc")
    for i in range(4): P(f"v_mov_b32 v{LS+i}, 0")
    P("s_waitcnt lgkmcnt(0)"); lg.q = []
    P("s_barrier")
    for g in range(4): lg.issue(f"ds_read_b128 {vr(QP+4*g,4)}, v3 offset:{1024*g}", f"QP{g}")
    P(f"s_mov_b32 s3, {f32hex(math.log2(math.e) / math.sqrt(32.0))}")
    P("s_lshr_b32 s62, s65, 6"); P("v_add_u32 v2, s62, v1"); P("v_add_u32 v3, 0xc000, v2")
    def at(t, off):
        sl = (t - (2, 2, 1, 0)[off >> 10]) % 12
        return f"v{2 + sl // 6} offset:{(sl % 6) * 8192 + off}"
    lg.issue(f"ds_read_b128 {vr(K,4)}, {at(0,0)}", "K0"); lg.issue(f"ds_read_b128 {vr(K+4,4)}, {at(0,1024)}", "K1")
    for g in range(4):
        lg.need(f"QP{g}")
        for i in range(4 * g, 4 * g + 4): P(f"v_add_f32 v{QO+i}, v{QO+i}, v{QP+i}")
        for i in range(4 * g, 4 * g + 4): P(f"v_mul_f32 v{QO+i}, s3, v{QO+i}")
        for i in range(2 * g, 2 * g + 2): P(f"v_cvt_pk_bf16_f32 v{Q+i}, v{QO+2*i}, v{QO+2*i+1}")
    P("; TS 11")
    P(f"s_mov_b32 s62, {f32hex(float(opt.get('margin', 88)))}")
    lg.need("K0"); P(f"{M32} {vr(SA,16)}, {vr(K,4)}, {vr(Q,4)}, 0")
    lg.need("K1"); P(f"{M32} {vr(SA,16)}, {vr(K+4,4)}, {vr(Q+4,4)}, {vr(SA,16)}")
    lg.issue(f"ds_read_b128 {vr(K,4)}, {at(1,0)}", "K0")
    lg.issue(f"ds_read_b128 {vr(K+4,4)}, {at(1,1024)}", "K1")
    lg.issue(f"ds_read_b128 {vr(V,4)}, {at(0,2048)}", "V0")
    for i in range(16): P(f"v_mov_b32 v{O+i}, 0")
    P(f"v_max3_f32 v6, v{SA}, v{SA+1}, v{SA+2}")
    for i in range(3, 15, 2): P(f"v_max3_f32 v6, v6, v{SA+i}, v{SA+i+1}")
    P(f"v_max_f32 v6, v6, v{SA+15}")
    P("v_mov_b32 v7, v6"); P("v_permlane32_swap_b32 v6, v7"); P("v_max_f32 v6, v6, v7")
    P("v_add_f32 v6, s62, v6")
    for i in range(16): P(f"v_sub_f32 v{SA+i}, v{SA+i}, v6")
    for i in range(16): P(f"v_sub_f32 v{C+i}, 0, v6")

    X = {t: [] for t in range(64)}
    PRE = {t: [] for t in range(64)}
    def add(t, *fs): X[t].extend(fs)
    def ld(text, tag=None): return lambda: vm.issue(text, tag)
    def bar_after(t): return (t // 4 + 1) * 4
    def bar_upto(t): return t // 4 * 4
    sch = dict(cw=5, wd=[2, 2, 2, 3, 0, 1, 1, 1], f1p=6, x=8, xr=3, g1=13, f3=22, ws=[20, 22, 36, 40], tp=25, t=27,
               tt=[27, 27, 28, 28, 29, 29, 30, 30, 30, 31, 31, 31, 32, 32, 33, 33, 38, 38, 39, 39, 42, 42, 43, 43, 44, 44, 45, 45, 46, 46, 47, 47],
               g2=[32, 36, 44, 48], cc=34, wot=35, cj=39, wo=[48, 52, 56, 60], po=16, pf=24)
    sch.update(opt.get("sch", {}))
    NCHK = opt.get("nchk", 2)
    def chk(e):
        def f():
            m = lit((1 << (2 * e + 7)) - 4) if e < NCHK else "-1"
            vm.need("KF"); kv_upd()
            P(f"s_andn2_b32 s3, {m}, s53"); P(f"s_cbranch_scc1 KS{e}")
            P.label(f"KB{e}")
            def o():
                P.label(f"KS{e}")
                P(f"s_mov_b32 s62, {m}")
                P(f"s_call_b64 {LINK}, KVSPIN")
                P(f"s_branch KB{e}")
            ool.append(o)
        return f
    add(0, ld(KLOAD, "KF"))
    PRE[2].append(lambda: vm.need("H0"))
    add(3, chk(1), kvp(2, 0, 1))
    for e in range(1, 16):
        t = 4 * e
        if 1 < e <= NCHK: PRE[t].append(chk(e))
        if e < NCHK: add(t, ld(KLOAD, "KF"))
        PRE[t].append(lambda e=e: vm.need(f"H{e}"))
        if e == 1:
            add(4, kvp(2, 2), kvp(2, 3)); add(5, kvp(3, 0)); add(6, kvp(3, 1)); add(7, kvp(3, 2), kvp(3, 3))
        elif e + 2 < 16:
            for pc in range(4): add(t + pc, kvp(e + 2, pc))
    def dma(tag, unit, so, areg, i, base):
        def f():
            P(f"s_add_u32 m0, {base}, {U[unit]}"); P(f"s_mov_b32 s3, {so}")
            vm.issue(f"buffer_load_dwordx4 v{areg+i}, s[44:47], s3 offen offset:{1024*i} lds", tag)
        return f
    assert min(sch["wd"][:4]) >= 2
    for n, t in enumerate(sch["wd"]): add(t, dma("WD", 3 + n // 4, (n // 4) * 512, WD, n % 4, "s57"))
    def cw():
        P(f"s_lshl_b32 {S_CR}, {S_XCD}, 2"); P(f"s_and_b32 s3, {S_J}, 3"); P(f"s_add_u32 {S_CR}, {S_CR}, s3"); P(f"s_lshl_b32 {S_CR}, {S_CR}, 5")
        P(f"s_andn2_b32 s3, {S_J}, 3"); P(f"s_add_u32 {S_CR}, {S_CR}, s3"); P(f"s_add_u32 {S_CR}, {S_CR}, {S_WL}")
        P("s_lshl_b32 s3, s2, 3"); P(f"s_add_u32 s3, s3, {S_W}"); P("s_cmp_eq_u32 s3, 4")
        P(f"s_cselect_b32 {S_CR}, 0x400, {S_CR}"); P(f"s_cselect_b32 s100, 0, {S_W}")
        P(f"s_lshl_b32 s3, {S_CR}, 12")
        P("s_cmp_lt_u32 s100, 4")
        P(f"s_cselect_b32 s48, s{P_WSR}, s{P_WSI}"); P(f"s_cselect_b32 s49, s{P_WSR+1}, s{P_WSI+1}"); P(f"s_mov_b32 s50, {8*MB}")
        P(f"s_cselect_b32 {S_CR}, {S_CR}, 0x10000")
        vm.issue(f"buffer_load_dwordx4 {vr(CW,4)}, v1, s[48:51], s3 offen", "CW"); vm.issue(f"buffer_load_dwordx4 {vr(CW+4,4)}, v1, s[48:51], s3 offen offset:1024", "CW")
    add(sch["cw"], cw)
    def nonce_v():
        P("v_mov_b32 v6, s32"); P("v_mov_b32 v7, s33"); P(f"v_mov_b32 v{XSA}, 0")
    def check(tag, name, load, v=FV):
        def f():
            vm.need(tag)
            flags_ok(P, v)()
            P(f"s_cbranch_scc0 {name}_O")
            P.label(name + "_B")
            def o():
                P.label(name + "_O")
                spin(P, load, flags_ok(P, v))
                P(f"s_branch {name}_B")
            ool.append(o)
        return f
    add(max(sch["wd"]) + 2, *g2_dma(P))
    XF, GF, GA, GI, GC = 128, [192, 200, 208], 216, 224, 228
    def x512():
        P(f"v_and_b32 v{F1A}, 48, v0"); P("s_lshl_b32 s3, s55, 6"); P("s_lshl_b32 s56, s65, 12"); P("s_add_u32 s3, s3, s56"); P(f"s_add_u32 s3, s3, {SM_X512}")
        vm.issue(f"buffer_load_dwordx4 {vr(GC,4)}, v{F1A}, {RWS}, s3 offen sc1", "X512")
    if opt.get("fflag", -1) < 0:
        def f1flag():
            nonce_v()
            P("s_lshl_b32 s3, s61, 3"); P(f"s_add_u32 s3, s3, {FL1}"); P(f"s_cmp_lt_u32 {S_W}, 4"); P(f"s_cselect_b32 s3, {OOB}, s3")
            vm.issue(f"buffer_store_dwordx2 v[6:7], v{XSA}, {RWS}, s3 offen sc1", "F1")
        X[0].insert(0, f1flag)
    FLOAD = f"buffer_load_dwordx2 {vr(CV,2)}, v{F1A}, {RWS}, 0 offen sc1"
    def fpoll():
        P(f"v_and_b32 v{F1A}, 15, v0"); P(f"v_lshlrev_b32 v{F1A}, 3, v{F1A}"); P("s_lshl_b32 s3, s55, 7"); P(f"s_add_u32 s3, s3, {FL1}"); P(f"v_add_u32 v{F1A}, s3, v{F1A}")
        vm.issue(FLOAD, "F")
    add(sch["f1p"], fpoll)
    def xbase():
        P("s_lshl_b32 s56, s55, 14"); P("s_lshl_b32 s3, s65, 2"); P("s_add_u32 s56, s56, s3"); P(f"s_add_u32 s56, s56, {WS_XE}")
    add(sch["x"], check("F", "CK1", FLOAD, CV), x512, xbase)
    xr = sch["xr"]
    def xld(k):
        def f():
            if k % 4 == 0 and k: P("s_add_u32 s56, s56, 4096")
            vm.issue(f"buffer_load_dwordx4 {vr(XF+4*k,4)}, v1, {RWS}, s56 offen offset:{1024*(k%4)} sc1", f"X{k}")
        return f
    for k in range(16): add(sch["x"] + (k + 1) // xr, xld(k))
    def g1rd(k):
        def f():
            g = GF[k % 3]; o = (k >> 3) * 32768 + ((k >> 2) & 1) * 8192
            lg.issue(f"ds_read_b128 {vr(g,4)}, v{GAD+(k&3)} offset:{o}", f"G{k}a"); lg.issue(f"ds_read_b128 {vr(g+4,4)}, v{GAD+(k&3)} offset:{o+4096}", f"G{k}b")
        return f
    def g1mm(k):
        def f():
            g = GF[k % 3]
            vm.need(f"X{k}")
            for half in range(2):
                lg.need(f"G{k}" + "ab"[half])
                a = GA + 4 * half
                P(f"{M16} {vr(a,4)}, {vr(XF+4*k,4)}, {vr(g+4*half,4)}, {vr(a,4) if k else vr(GI,4)}")
            if k + 2 < 16: g1rd(k + 2)()
        return f
    def ginit():
        vm.need("X512")
        P(f"v_lshlrev_b32 v{F1A}, 31, v0")
        for i in range(4): P(f"v_xor_b32 v{GI+i}, v{F1A}, v{GC+i}")
    t0 = sch["g1"]
    PRE[bar_upto(t0 - 1)].append(lambda: vm.need("WD"))
    assert bar_upto(t0 - 1) > max(sch["wd"])
    add(t0 - 1, g1rd(0), g1rd(1)); add(t0, ginit)
    for k in range(16): add(t0 + (k + 1) // xr, g1mm(k))
    t1 = t0 + 16 // xr + 1
    def cchain():
        P("s_or_b32 s56, s54, s65"); P("s_cmp_lg_u32 s56, 0"); P("s_cbranch_scc1 C_NOC")
        for i in range(4): P(f"v_mov_b32 v{GF[0]+i}, 0xbf803f80")
        for k in range(16): P(f"{M16} {vr(GC,4)}, {vr(XF+4*k,4)}, {vr(GF[0],4)}, {vr(GC,4)}")
        P(f"v_cvt_pk_bf16_f32 v{GC}, v{GC}, v{GC+1}"); P(f"v_cvt_pk_bf16_f32 v{GC+1}, v{GC+2}, v{GC+3}")
        P.label("C_NOC")
        P(f"v_lshrrev_b32 v{F1A}, 4, v0"); P(f"v_lshlrev_b32 v{F1A}, 3, v{F1A}")
        P("s_lshl_b32 s3, s55, 5"); P(f"s_add_u32 s3, s3, {SM_C}"); P("s_cmp_eq_u32 s56, 0"); P(f"s_cselect_b32 s3, s3, {OOB}")
        vm.issue(f"buffer_store_dwordx2 {vr(GC,2)}, v{F1A}, {RWS}, s3 offen sc1", "TS")
    def tstore():
        for i in range(4): P(f"v_cvt_pk_bf16_f32 v{GI+i}, v{GA+2*i}, v{GA+2*i+1}")
        P(f"v_permlane16_swap_b32 v{GI}, v{GI+2}"); P(f"v_permlane16_swap_b32 v{GI+1}, v{GI+3}")
        P("s_lshr_b32 s61, s65, 14"); P("s_add_u32 s61, s61, s54"); P("s_lshl_b32 s61, s61, 6"); P("s_add_u32 s61, s61, s55")
        P("s_lshl_b32 s3, s61, 10"); P(f"s_add_u32 s3, s3, {WS_TE}")
        vm.issue(f"buffer_store_dwordx4 {vr(GI,4)}, v1, {RWS}, s3 offen sc1", "TS")
        P("s_lshl_b32 s61, s61, 3"); P(f"s_add_u32 s61, s61, {FL3}")
    add(t1, tstore, cchain)
    assert 4 * NCHK <= t1 and sch["f3"] > t1 and sch["tp"] > t1 + 1 and bar_upto(sch["ws"][0]) >= t1
    add(t1 + 1, *g2_ids(P))
    def f3flag():
        nonce_v()
        vm.need("TS")
        vm.issue(f"buffer_store_dwordx2 v[6:7], v{XSA}, {RWS}, s61 offen sc1", "F3")
    X[sch["f3"]].insert(0, f3flag)
    for r in range(4):
        for n in range(4): add(sch["ws"][r] + n // 2, dma(f"WS{r}", 3 + (r & 1), r * 256, WD, n, "s59"))
    def pa1():
        P("s_lshl_b32 s63, s54, 1"); P("s_add_u32 s63, s63, s56")
        P("s_lshl_b32 s3, s63, 3"); P("v_xor_b32 v6, s3, v0")
        P("v_lshrrev_b32 v7, 5, v6"); P(f"v_and_b32 v{PA}, 15, v6"); P(f"v_xor_b32 v7, v7, v{PA}"); P("v_lshlrev_b32 v7, 4, v7"); P("v_and_b32 v6, 31, v6")
        P(f"v_lshl_add_u32 v{PA}, v6, 8, v7"); P("s_lshl_b32 s3, s63, 13"); P(f"s_add_u32 s3, s3, {U[3]}"); P(f"v_add_u32 v{PA}, s3, v{PA}")
    def pa2():
        for k in range(1, 8): P(f"v_xor_b32 v{PA+k}, {k<<5}, v{PA}")
    def ra():
        P("s_or_b32 s53, s57, s54")
        P("v_and_b32 v6, 31, v0"); P("v_cmp_eq_u32 vcc, 0, v6"); P("v_cmp_eq_u32 s[100:101], 17, v6"); P("s_or_b64 vcc, vcc, s[100:101]")
        P("v_mov_b32 v7, 0xbf803f80")
        for i in range(4): P(f"v_cndmask_b32 v{RA+i}, 0, v7, vcc")
    add(sch["f3"] + 1, pa1); add(sch["f3"] + 2, pa2); add(sch["f3"] + 3, ra)
    CLOAD = f"buffer_load_dwordx2 {vr(CV,2)}, v{F1A}, {RWS}, 0 offen sc1"
    def cpoll():
        P(f"v_lshlrev_b32 v{F1A}, 3, v0"); P(f"v_add_u32 v{F1A}, {FL3}, v{F1A}")
        vm.issue(CLOAD, "CF")
    add(sch["tp"], ld(KLOAD, "TF")); add(sch["cc"] - 3, cpoll)
    add(sch["t"], check("TF", "CK2", KLOAD))
    def tld(i):
        def f():
            if i % 4 == 0 and i: P("s_add_u32 s60, s60, 4096")
            vm.issue(f"buffer_load_dwordx4 {vr(TR+4*(i&15),4)}, v1, {RWS}, s60 offen offset:{1024*(i%4)} sc1", f"T{i}")
        return f
    for i, t in enumerate(sch["tt"]):
        assert t >= sch["t"] and (i < 16 or t >= sch["g2"][(i - 16) // 8] + 4)
        add(t, tld(i))
    def cc():
        P(f"s_mov_b32 s3, {SM_C}")
        vm.issue(f"buffer_load_dwordx4 {vr(CC,4)}, v1, {RWS}, s3 offen sc1", "CC"); vm.issue(f"buffer_load_dwordx4 {vr(CC+4,4)}, v1, {RWS}, s3 offen offset:1024 sc1", "CC")
        P(f"s_mov_b32 s3, {SM_G+2048}")
        vm.issue(f"buffer_load_dword v{G5}, v{XSA}, {RWS}, s3 offen sc1", "CC")
    def ge():
        P("s_lshl_b32 s3, s58, 7"); P(f"s_add_u32 s3, s3, {SM_G}")
        P(f"v_and_b32 v{F1A}, 31, v0"); P(f"v_lshlrev_b32 v{F1A}, 2, v{F1A}")
        vm.issue(f"buffer_load_dword v{RW}, v{F1A}, {RWS}, s3 offen sc1", "GE")
    add(sch["cc"], check("CF", "CK3", CLOAD, CV), cc, ge)
    def wot():
        op_ids(P)
        P(f"s_mov_b32 s48, s{P_WO}"); P(f"s_mov_b32 s49, s{P_WO+1}"); P(f"s_mov_b32 s50, {2*MB}")
        P(f"s_lshr_b32 s3, {S_J}, 3"); P("s_lshl_b32 s3, s3, 3"); P(f"s_add_u32 s3, s3, {S_W}"); P("s_lshl_b32 s3, s3, 16"); P("s_lshl_b32 s100, s62, 7"); P("s_add_u32 s3, s3, s100")
        P(f"v_lshlrev_b32 v6, 9, v{F1A}")
        if not opt.get("nowot"): vm.issue("buffer_load_dword v126, v6, s[48:51], s3 offen", "WT")
    assert sch["wot"] >= sch["cc"] and sch["cj"] > sch["wot"]
    add(sch["wot"], wot)
    def cjob():
        vm.need("CC", "CW")
        P(f"s_cmp_eq_u32 {S_CR}, 0x10000"); P("s_cbranch_scc1 CJ0")
        P(f"s_lshl_b32 s3, {S_CR}, 31"); P(f"v_xor_b32 v{G5}, s3, v{G5}")
        P(f"v_mov_b32 v{CV}, 0")
        for r in range(8): P(f"v_dot2_f32_bf16 v{CV}, v{CW+r}, v{CC+r}, v{CV}")
        dpp_sum(P, CV)
        P(f"v_add_f32 v{CV}, v{CV}, v{G5}"); P(f"v_cvt_pk_bf16_f32 v{CV}, v{CV}, v{CV}")
        P.label("CJ0")
        P(f"v_mov_b32 v{CV+1}, {OOB}"); P("v_cmp_eq_u32 vcc, 63, v0"); P(f"v_cndmask_b32 v{CV+1}, v{CV+1}, 0, vcc")
        P(f"s_mov_b32 s48, s{P_OUT}"); P(f"s_mov_b32 s49, s{P_OUT+1}"); P(f"s_mov_b32 s50, {8*MB}")
        P(f"s_lshl_b32 s3, {S_CR}, 12"); P("s_add_u32 s100, s3, 1024"); P(f"s_sub_u32 s3, {8*MB+1024}, s3")
        vm.issue(f"buffer_store_short v{CV}, v{CV+1}, s[48:51], s100 offen", "CS"); vm.issue(f"buffer_store_short v{CV}, v{CV+1}, s[48:51], s3 offen", "CS")
    add(sch["cj"], cjob)
    def rd(i):
        def f():
            r, k = i >> 3, i & 7
            lg.issue(f"ds_read_b128 {vr(AF+4*(i%3),4)}, v{PA+k} offset:{32768*(r&1)}", f"A{i}")
        return f
    def g2mm(i):
        def f():
            lg.need(f"A{i}"); vm.need(f"T{i}")
            P(f"{M32} {vr(AC,16)}, {vr(AF+4*(i%3),4)}, {vr(TR+4*(i&15),4)}, {vr(AC,16) if i else 0}")
            if (i & 7) < 6: rd(i + 2)()
        return f
    def rowjob(r):
        def f():
            P("s_cmp_lg_u32 s53, 0"); P(f"s_cbranch_scc1 G2_NR{r}")
            for j in range(8): P(f"{M16} {vr(RD,4)}, {vr(RA,4)}, {vr(TR+4*((8*r+j)&15),4)}, {vr(RD,4) if (r or j) else 0}")
            P.label(f"G2_NR{r}")
        return f
    for r, tb in enumerate(sch["g2"]):
        assert tb % 4 == 0 and tb > sch["ws"][r] + 1 and (r < 2 or sch["ws"][r] >= sch["g2"][r - 2] + 4)
        PRE[tb].append(lambda r=r: vm.need(f"WS{r}"))
        X[tb] = [rd(8 * r), rd(8 * r + 1)] + X[tb]
        for k in range(8): add(tb + k // 2, g2mm(8 * r + k))
        add(tb + 3, rowjob(r))
    def wo_setup():
        srd(P, 44, P_WO, 2 * MB)
        P("v_lshrrev_b32 v6, 3, v0"); P("v_and_b32 v7, 7, v0"); P(f"v_bfe_u32 v{DO}, v0, 4, 1"); P(f"v_lshlrev_b32 v{DO}, 2, v{DO}"); P(f"v_xor_b32 v7, v7, v{DO}")
        P("v_lshlrev_b32 v7, 4, v7"); P("v_lshl_add_u32 v7, v6, 11, v7")
        P("s_lshl_b32 s3, s54, 20"); P(f"s_lshl_b32 s59, {S_WL}, 16"); P("s_add_u32 s3, s3, s59"); P("s_lshl_b32 s59, s62, 7"); P("s_add_u32 s3, s3, s59")
        P(f"v_add_u32 v{DO}, s3, v7")
        P(f"s_lshl_b32 s59, {S_W}, 12")
    def wo_setup2():
        for n in range(1, 4): P(f"v_add_u32 v{DO+n}, {n*(16384-1024)}, v{DO}")
    def wo_setup3():
        P("s_lshl_b32 s61, s61, 2"); P(f"s_add_u32 s61, s61, {S_WL}")
        P("s_lshl_b32 s3, s61, 1"); P("s_add_u32 s3, s3, s54"); P("s_lshl_b32 s60, s3, 15"); P(f"s_add_u32 s60, s60, {WS_OF}"); P("s_lshl_b32 s3, s3, 7"); P(f"s_add_u32 s3, s3, {FL4}")
        P(f"v_and_b32 v{FA}, 15, v0"); P(f"v_lshlrev_b32 v{FA}, 3, v{FA}"); P(f"v_add_u32 v{FA}, s3, v{FA}")
    tw = sch["ws"][3] + 2
    assert tw > sch["wot"] and tw + 1 < sch["wo"][0] and sch["wo"][0] >= sch["g2"][2] + 4 and sch["wo"][1] >= sch["g2"][3] + 4 and sch["wo"][2] >= 56 and sch["wo"][3] >= 60
    add(tw, wo_setup); add(tw + 1, wo_setup2); add(max(sch["tt"]) + 1, wo_setup3)
    for o in range(4):
        for n in range(4): add(sch["wo"][o] + n // 2, dma(f"WO{o}", WOU[o], o * 0x40000, DO, n, "s59"))

    SPEC = opt.get("spec", 1)
    if SPEC:
        def poison():
            for i in range(4): P(f"v_mov_b32 v{CC+i}, -1")
            P("s_lshl_b32 s3, s64, 11"); P(f"s_add_u32 s3, s3, {WS_OF}")
            for h in range(2): vm.issue(f"buffer_store_dwordx4 {vr(CC,4)}, v1, {RWS}, s3 offen offset:{1024*h} sc1", "PO")
        def pflag():
            nonce_v()
            P("s_lshl_b32 s3, s64, 3"); P(f"s_add_u32 s3, s3, {FL4}")
            vm.need("PO")
            vm.issue(f"buffer_store_dwordx2 v[6:7], v{XSA}, {RWS}, s3 offen sc1", "F4")
        assert sch["po"] < sch["cc"]
        add(sch["po"], poison); add(sch["pf"], pflag)
        add(max(sch["tt"]) + 2, ld(KLOAD, "OF")); add(max(sch["tt"]) + 7, check("OF", "CK4", KLOAD))
    order = opt.get("order", "ee P eee L ee M eee N ee p eee l e").replace(" ", "")
    for t in range(64):
        vm.now = t
        S, Tn = (SA, SB) if t % 2 == 0 else (SB, SA)
        ex = list(X[t])
        evt = (t % 4 == 0 and t) or t == 2
        first = order[:order.index("P")].count("e") if evt else 0
        nsl = 16 - first
        pos = {}
        for n, f in enumerate(ex): pos.setdefault(first + (n * nsl) // max(len(ex), 1), []).append(f)
        e = 0
        for ch in order:
            if ch == "e":
                P(f"v_exp_f32 v{S+e}, v{S+e}")
                for f in pos.get(e, []): f()
                e += 1
            elif ch == "P":
                if t:
                    lg.need("V1")
                    P(f"v_smfmac_f32_32x32x32_bf16 {vr(O,16)}, {vr(V+4,4)}, {vr(Tn+8,8)}, v5")
                if evt:
                    for f in PRE[t]: f()
                    lg.drain()
                    if not opt.get("nobar"): P("s_barrier")
                else: assert not PRE[t]
                lg.issue(f"ds_read_b128 {vr(V+4,4)}, {at(t,3072)}", "V1")
            elif ch == "L":
                if t: P(f"v_smfmac_f32_16x16x64_bf16 {vr(LS,4)}, {vr(ONES,4)}, {vr(Tn+8,8)}, v5")
            elif ch == "M":
                if t < 63:
                    lg.need("K0")
                    P(f"{M32} {vr(Tn,16)}, {vr(K,4)}, {vr(Q,4)}, {vr(C,16)}")
                if t < 62: lg.issue(f"ds_read_b128 {vr(K,4)}, {at(t+2,0)}", "K0")
            elif ch == "N":
                if t < 63:
                    lg.need("K1")
                    P(f"{M32} {vr(Tn,16)}, {vr(K+4,4)}, {vr(Q+4,4)}, {vr(Tn,16)}")
                if t < 62: lg.issue(f"ds_read_b128 {vr(K+4,4)}, {at(t+2,1024)}", "K1")
            elif ch == "p":
                lg.need("V0")
                P(f"v_smfmac_f32_32x32x32_bf16 {vr(O,16)}, {vr(V,4)}, {vr(S,8)}, v5")
                if t < 63: lg.issue(f"ds_read_b128 {vr(V,4)}, {at(t+1,2048)}", "V0")
            elif ch == "l":
                P(f"v_smfmac_f32_16x16x64_bf16 {vr(LS,4)}, {vr(ONES,4)}, {vr(S,8)}, v5")
        if opt.get("tsa") and t in (15, 31, 47): P(f"; TS {20 + t // 16}")
        if "tse" in opt and t in opt["tse"]: P(f"; TSE {opt['tse'].index(t)}")
    vm.now = 64
    def kvspin():
        P.label("KVSPIN")
        P("s_waitcnt vmcnt(0)")
        spin(P, KLOAD, kv_ok("s62"))
        P(f"s_setpc_b64 {LINK}")
    ool.append(kvspin)
    lg.need("V1")
    P(f"v_smfmac_f32_32x32x32_bf16 {vr(O,16)}, {vr(V+4,4)}, {vr(SB+8,8)}, v5")
    P(f"v_smfmac_f32_16x16x64_bf16 {vr(LS,4)}, {vr(ONES,4)}, {vr(SB+8,8)}, v5")
    lg.drain()
    P("; TS 12")
    for q in range(1, 4):
        P(f"s_xor_b32 s3, {S_W}, {(q & 1) | ((q >> 1) << 2)}"); P("s_lshl_b32 s3, s3, 12"); P(f"v_add_u32 v{AF+q}, s3, v1")
    P(f"v_add_f32 v6, |v{O}|, |v{O+1}|"); P(f"v_add_f32 v7, |v{O+2}|, |v{O+3}|")
    for i in range(4, 16, 2):
        P(f"v_add_f32 v6, v6, |v{O+i}|"); P(f"v_add_f32 v7, v7, |v{O+i+1}|")
    P("v_add_f32 v6, v6, v7")
    P(f"s_mov_b32 s3, {f32hex(2.0**-104)}"); P(f"s_mov_b32 s52, {f32hex(2.0**120)}")
    P("v_cmp_lt_f32 s[96:97], s3, v6"); P("v_cmp_gt_f32 s[100:101], s52, v6"); P(f"v_cmp_gt_f32 vcc, s52, v{LS}")
    P("s_and_b64 s[96:97], s[96:97], s[100:101]"); P("s_and_b64 s[96:97], s[96:97], vcc")
    if opt.get("force_slow"): P("s_mov_b64 s[96:97], 0")
    P("s_cmp_eq_u64 s[96:97], -1")
    P("s_cbranch_scc0 AT_SLOW")
    def slow():
        P.label("AT_SLOW")
        P("v_mov_b32 v6, 0xff800000"); P("s_mov_b32 s3, s65"); P("s_add_u32 s52, s65, 0x40000")
        P.label("AT_MP")
        P(f"buffer_load_dwordx4 {vr(K,4)}, v1, s[40:43], s3 offen sc1"); P(f"buffer_load_dwordx4 {vr(K+4,4)}, v1, s[40:43], s3 offen offset:1024 sc1")
        P("s_waitcnt vmcnt(0)")
        P(f"{M32} {vr(SA,16)}, {vr(K,4)}, {vr(Q,4)}, 0"); P(f"{M32} {vr(SA,16)}, {vr(K+4,4)}, {vr(Q+4,4)}, {vr(SA,16)}")
        for i in range(8): P(f"v_max3_f32 v6, v6, v{SA+2*i}, v{SA+2*i+1}")
        P("s_add_u32 s3, s3, 4096"); P("s_cmp_lg_u32 s3, s52"); P("s_cbranch_scc1 AT_MP")
        P("v_mov_b32 v7, v6"); P("v_permlane32_swap_b32 v6, v7"); P("v_max_f32 v6, v6, v7")
        for i in range(16): P(f"v_sub_f32 v{C+i}, 0, v6")
        for i in range(16): P(f"v_mov_b32 v{O+i}, 0")
        for i in range(4): P(f"v_mov_b32 v{LS+i}, 0")
        P("s_mov_b32 s3, s65")
        P.label("AT_SL")
        for i, r in enumerate((K, K + 4, V, V + 4)): P(f"buffer_load_dwordx4 {vr(r,4)}, v1, s[40:43], s3 offen offset:{1024*i} sc1")
        P("s_waitcnt vmcnt(0)")
        P(f"{M32} {vr(SA,16)}, {vr(K,4)}, {vr(Q,4)}, {vr(C,16)}"); P(f"{M32} {vr(SA,16)}, {vr(K+4,4)}, {vr(Q+4,4)}, {vr(SA,16)}")
        for i in range(16): P(f"v_exp_f32 v{SA+i}, v{SA+i}")
        P(f"v_smfmac_f32_32x32x32_bf16 {vr(O,16)}, {vr(V,4)}, {vr(SA,8)}, v5"); P(f"v_smfmac_f32_16x16x64_bf16 {vr(LS,4)}, {vr(ONES,4)}, {vr(SA,8)}, v5")
        P(f"v_smfmac_f32_32x32x32_bf16 {vr(O,16)}, {vr(V+4,4)}, {vr(SA+8,8)}, v5"); P(f"v_smfmac_f32_16x16x64_bf16 {vr(LS,4)}, {vr(ONES,4)}, {vr(SA+8,8)}, v5")
        P("s_nop 15")
        P("s_add_u32 s3, s3, 4096"); P("s_cmp_lg_u32 s3, s52"); P("s_cbranch_scc1 AT_SL")
        P("s_branch AT_FIN")
    ool.append(slow)
    P.label("AT_FIN")
    P(f"v_rcp_f32 v6, v{LS}")
    P("s_lshl_b32 s3, s64, 11"); P(f"s_add_u32 s3, s3, {WS_OF}")
    for h in range(2):
        for i in range(8 * h, 8 * h + 8): P(f"v_mul_f32 v{O+i}, v6, v{O+i}")
        for i in range(4 * h, 4 * h + 4): P(f"v_cvt_pk_bf16_f32 v{SB+8+i}, v{O+2*i}, v{O+2*i+1}")
        if SPEC:
            for i in range(4 * h, 4 * h + 4): P(f"v_min_u32 v{SB+8+i}, -2, v{SB+8+i}")
        vm.issue(f"buffer_store_dwordx4 {vr(SB+8+4*h,4)}, v1, {RWS}, s3 offen offset:{1024*h} sc1", "OS")
    P("s_lshl_b32 s64, s64, 3"); P(f"s_add_u32 s64, s64, {FL4}")
    return vm, ool

def tail(P, opt, vm, ool):
    lg = LG(P)
    A0, A1 = 32, 48
    def OFr(i): return (128 + 4 * i) if i < 16 else (64 + 4 * (i - 16)) if i < 24 else 128 + 4 * (i - 24)
    SPEC = opt.get("spec", 1)
    LEAD = opt.get("lead", 24 if SPEC else 10)
    def oload(i, so): return f"buffer_load_dwordx4 {vr(OFr(i),4)}, v1, {RWS}, {so} offen offset:{1024*(i%4)} sc1"
    def old(i):
        if i % 4 == 0: P(f"s_add_u32 s101, s60, {1024*i}")
        vm.issue(oload(i, "s101"), f"O{i}")
    def spec(p):
        if SPEC and opt.get("sp", 3) == p:
            for i in range(LEAD): old(i)
            P("; TS 17")
    def gchk(g):
        r = [OFr(4 * g + q) + d for q in range(4) for d in range(4)]
        P(f"v_max3_u32 v6, v{r[0]}, v{r[1]}, v{r[2]}"); P(f"v_max3_u32 v7, v{r[3]}, v{r[4]}, v{r[5]}")
        for n in range(6, 16, 2): P(f"v_max3_u32 v{6+(n>>1&1)}, v{6+(n>>1&1)}, v{r[n]}, v{r[n+1]}")
        P("v_max_u32 v6, v6, v7"); P("v_cmp_eq_u32 vcc, -1, v6"); P("s_cmp_eq_u64 vcc, 0")
    def group(g):
        vm.need(f"O{4*g+3}")
        gchk(g)
        P(f"s_cbranch_scc0 OG{g}")
        P.label(f"OB{g}")
        def o():
            P.label(f"OG{g}")
            P("s_waitcnt vmcnt(0)")
            P.label(f"OL{g}")
            P(f"s_sub_u32 {S_TMO}, {S_TMO}, 1"); P(f"s_cbranch_scc1 OT{g}")
            P(f"s_sleep {opt.get('osl', 1)}")
            for h in range(g, min(8, (4 * g + LEAD) // 4)):
                if h > g: gchk(h); P(f"s_cbranch_scc1 OS{g}_{h}")
                P(f"s_add_u32 s3, s60, {4096*h}")
                for q in range(4): P(oload(4 * h + q, "s3"))
                if h > g: P.label(f"OS{g}_{h}")
            P("s_waitcnt vmcnt(0)")
            gchk(g)
            P(f"s_cbranch_scc0 OL{g}")
            P(f"s_branch OB{g}")
            P.label(f"OT{g}")
            P(f"s_mov_b32 {S_TMO}, 0")
            P(f"s_branch OB{g}")
        ool.append(o)
    assert LEAD % 4 == 0 or not SPEC
    P("; TS 13")
    spec(0)
    P("s_barrier")
    for q in range(1, 4): lg.issue(f"ds_write_b128 v{AF+q}, {vr(AC+4*q,4)} offset:{(q-1)*1024}", "XW")
    P(f"s_andn2_b32 s3, {S_W}, 1"); P("s_lshl_b32 s3, s3, 12"); P("s_lshl_b32 s52, s56, 7"); P("s_add_u32 s3, s3, s52"); P("s_add_u32 s3, s3, 3072")
    P("v_lshlrev_b32 v6, 2, v0"); P("v_add_u32 v7, 0x200, v6"); P("v_cmp_gt_u32 vcc, 16, v0"); P("v_cndmask_b32 v6, v7, v6, vcc"); P("v_add_u32 v6, s3, v6")
    lg.issue(f"ds_write2_b32 v6, v{RD}, v{RD+1} offset0:0 offset1:16", "XW")
    P(f"v_add_u32 v{AF}, s59, v1")
    P("v_lshrrev_b32 v2, 5, v0"); P("v_bfe_u32 v3, v0, 2, 2"); P("v_lshl_add_u32 v2, v2, 2, v3"); P("v_lshlrev_b32 v2, 7, v2")
    P("v_bfe_u32 v3, v0, 3, 1"); P("v_xor_b32 v3, s54, v3"); P("v_lshl_add_u32 v2, v3, 6, v2")
    P("v_bfe_u32 v3, v0, 4, 1"); P("v_lshl_add_u32 v2, v3, 5, v2")
    P("v_and_b32 v3, 3, v0"); P("v_lshl_add_u32 v2, v3, 3, v2")
    P("s_lshl_b32 s3, s54, 14"); P(f"s_add_u32 s3, s3, {U[1]}"); P("v_add_u32 v2, s3, v2"); P("v_xor_b32 v3, 64, v2")
    P(f"v_add_u32 v4, {U[2]}, v2"); P(f"v_add_u32 v5, {U[2]}, v3")
    def f4():
        P("v_mov_b32 v6, s32"); P("v_mov_b32 v7, s33")
        vm.need("OS")
        vm.issue(f"buffer_store_dwordx2 v[6:7], v{XSA}, {RWS}, s64 offen sc1", "F4")
        P("; TS 15")
    vm.need("WO3")
    lg.drain()
    F4 = -1 if SPEC else opt.get("f4", 0)
    if F4 == 0: f4()
    spec(1)
    P("s_barrier")
    for q in range(3): lg.issue(f"ds_read_b128 {vr(AC+4+4*q,4)}, v{AF} offset:{1024*q}", "XR")
    P(f"v_add_u32 v6, s59, v{F1A}")
    lg.issue(f"ds_read_b32 v{RD}, v6 offset:3072", "XR"); lg.issue(f"ds_read_b32 v{RD+1}, v6 offset:3200", "XR")
    def ord_(i):
        o, k = i >> 3, i & 7
        f = QF[i % 3]; u = WOU[o]
        b = 2 if u < 3 else 4; off = ((u - 1) & 1) * 32768 + k * 2048
        return [(f"ds_read_b64_tr_b16 {vr(f,2)}, v{b} offset:{off}", f"F{i}a"), (f"ds_read_b64_tr_b16 {vr(f+2,2)}, v{b} offset:{off+1024}", f"F{i}a"),
                (f"ds_read_b64_tr_b16 {vr(f+4,2)}, v{b+1} offset:{off}", f"F{i}b"), (f"ds_read_b64_tr_b16 {vr(f+6,2)}, v{b+1} offset:{off+1024}", f"F{i}b")]
    for r in ord_(0) + ord_(1): lg.issue(*r)
    E0, CL, CM, RR, RM, SAD, OV = 212, 213, 214, 215, 216, 236, 220
    P(f"v_lshrrev_b32 v{E0}, 1, v{F1A}"); P("s_lshl_b32 s3, s58, 6"); P(f"v_add_u32 v{CL}, s3, v{E0}")
    P(f"v_sub_u32 v{CM}, 2048, v{CL}"); P(f"v_mov_b32 v6, {OOB}"); P(f"v_cmp_eq_u32 vcc, 0, v{CL}"); P(f"v_cndmask_b32 v{CM}, v{CM}, v6, vcc")
    P(f"v_lshrrev_b32 v{RR}, 5, v0"); P(f"v_lshlrev_b32 v{RR}, 14, v{RR}")
    P("s_lshl_b32 s3, s57, 17"); P("s_lshl_b32 s52, s63, 15"); P("s_add_u32 s3, s3, s52"); P(f"v_add_u32 v{RR}, s3, v{RR}")
    P(f"v_sub_u32 v{RM}, {8*MB}, v{RR}")
    P(f"v_add_u32 v{SAD}, v{RR}, v{CL}"); P(f"v_add_u32 v{SAD+1}, v{RM}, v{CM}"); P(f"v_add_u32 v{SAD+2}, v{RM}, v{CL}"); P(f"v_add_u32 v{SAD+3}, v{RR}, v{CM}")
    for r in range(1, 4):
        a = SAD + 4 * r
        P(f"v_add_u32 v{a}, {4096*r}, v{SAD}"); P(f"v_subrev_u32 v{a+1}, {4096*r}, v{SAD+1}"); P(f"v_subrev_u32 v{a+2}, {4096*r}, v{SAD+2}"); P(f"v_add_u32 v{a+3}, {4096*r}, v{SAD+3}")
    P("s_lshl_b32 s52, s54, 31")
    if F4 == 1: f4()
    spec(2)
    vm.need("GE")
    lg.need("XR")
    for r in range(4):
        P(f"v_add_f32 v{AC+r}, v{AC+r}, v{AC+4+r}")
        P(f"v_add_f32 v{AC+8+r}, v{AC+8+r}, v{AC+12+r}")
        P(f"v_sub_f32 v6, v{AC+r}, v{AC+8+r}")
        P(f"v_add_f32 v7, v{AC+r}, v{AC+8+r}")
        P("v_xor_b32 v6, s52, v6")
        op = "v_sub_f32" if r & 1 else "v_add_f32"
        P(f"{op} v6, v6, v{RW}"); P(f"{op} v7, v7, v{RW}")
        P(f"v_cvt_pk_bf16_f32 v{OV+r}, v6, v7")
    P(f"v_add_f32 v{RD}, v{RD}, v{RD+1}"); P(f"v_add_f32 v{RD}, v{RD}, v{RW}"); P(f"v_cvt_pk_bf16_f32 v{RD}, v{RD}, v{RD}")
    P("s_or_b32 s53, s53, s56"); P("s_cmp_eq_u32 s53, 0"); P(f"s_cselect_b32 s53, {4*MB}, {OOB}")
    ST = []
    for r in range(4):
        a = SAD + 4 * r
        ST += [f"buffer_store_short v{OV+r}, v{a}, s[48:51], 0 offen", f"buffer_store_short v{OV+r}, v{a+1}, s[48:51], 0 offen",
               f"buffer_store_short_d16_hi v{OV+r}, v{a+2}, s[48:51], 0 offen", f"buffer_store_short_d16_hi v{OV+r}, v{a+3}, s[48:51], 0 offen"]
    ST += [f"buffer_store_short v{RD}, v{CL}, s[48:51], s53 offen", f"buffer_store_short v{RD}, v{CM}, s[48:51], s53 offen"]
    n1, st0, str_ = opt.get("st", (0, 32 - LEAD, 1 if SPEC else 2))
    P("; TS 14")
    spec(3)
    if F4 == 2: f4()
    for s in ST[:n1]: vm.issue(s, "ST")
    ST = ST[n1:]
    if not SPEC:
        vm.issue(KLOAD, "OF")
        vm.need("OF")
        spin(P, KLOAD, flags_ok(P, FV))
        P("; TS 16")
        for i in range(LEAD): old(i)
        P("; TS 17")
    for i in range(32):
        R = ord_(i + 2) if i + 2 < 32 else []
        f = QF[i % 3]
        if SPEC and i % 4 == 0:
            group(i // 4)
            if i == 0: P("; TS 16")
            if i == 16: P("; TS 15")
        for half in range(2):
            lg.need(f"F{i}" + "ab"[half])
            if half == 0: vm.need(f"O{i}")
            a = (A0, A1)[half]
            P(f"{M32} {vr(a,16)}, {vr(f+4*half,4)}, {vr(OFr(i),4)}, {vr(a,16) if i else 0}")
            for r in R[2 * half:2 * half + 2]: lg.issue(*r)
        if i + LEAD < 32: old(i + LEAD)
        if i >= st0:
            for s in ST[:str_]: vm.issue(s, "ST")
            ST = ST[str_:]
    for s in ST: vm.issue(s, "ST")
    P("; TS 18")
    P(f"v_xor_b32 v3, 0x4000, v{AF}")
    for g in range(4): lg.issue(f"ds_write_b128 v{AF}, {vr(A1+4*g,4)} offset:{1024*g}", "XW")
    P("v_and_b32 v4, 31, v0"); P("v_lshrrev_b32 v5, 5, v0"); P("v_lshlrev_b32 v5, 4, v5"); P("v_lshl_add_u32 v4, v4, 12, v5")
    P("s_lshl_b32 s3, s61, 17"); P("s_lshl_b32 s59, s62, 7"); P("s_add_u32 s3, s3, s59"); P("s_lshl_b32 s59, s54, 6"); P("s_add_u32 s3, s3, s59"); P("s_add_u32 s3, s3, 2048")
    lg.drain()
    P("s_barrier")
    for g in range(4): lg.issue(f"ds_read_b128 {vr(A1+4*g,4)}, v3 offset:{1024*g}", f"XR{g}")
    for g in range(4):
        lg.need(f"XR{g}")
        for i in range(4): P(f"v_add_f32 v{A0+4*g+i}, v{A0+4*g+i}, v{A1+4*g+i}")
        P(f"v_cvt_pk_bf16_f32 v{8+2*g}, v{A0+4*g}, v{A0+4*g+1}"); P(f"v_cvt_pk_bf16_f32 v{9+2*g}, v{A0+4*g+2}, v{A0+4*g+3}")
        if g & 1:
            t = 8 + 4 * (g >> 1)
            P(f"v_permlane32_swap_b32 v{t}, v{t+2}"); P(f"v_permlane32_swap_b32 v{t+1}, v{t+3}")
            P(f"buffer_store_dwordx4 {vr(t,4)}, v4, s[48:51], s3 offen offset:{32*(g>>1)}")
    if opt.get("vlog"):
        for now, tags, d in vm.log:
            print(f"  t{now} need {','.join(tags)}: " + " ".join(f"{g}@{t}" for g, t in d.items()))

def fused(opt):
    P = Prog()
    sk, sv = (0, 0)
    P("s_cmp_ge_u32 s2, 256"); P("s_cbranch_scc1 F_END")
    P("s_load_dwordx16 s[4:19], s[0:1], 0")
    P("s_load_dwordx4 s[20:23], s[0:1], 64")
    P("s_load_dwordx2 s[24:25], s[0:1], 80")
    if opt.get("cpf", 0):
        P("s_getpc_b64 s[40:41]"); P(f"s_mov_b32 s42, {opt['cpf']}"); P("s_mov_b32 s43, 0x00020000")
        P("s_lshl_b32 s3, s2, 4"); P("s_and_b32 s3, s3, 128")
        P("v_lshlrev_b32 v1, 8, v0")
        P("buffer_load_dword v24, v1, s[40:43], s3 offen")
    P("v_lshrrev_b32 v1, 6, v0"); P("v_and_b32 v0, 63, v0"); P(f"v_readfirstlane_b32 {S_W}, v1")
    P(f"s_and_b32 {S_XCD}, s2, 7"); P(f"s_lshr_b32 {S_J}, s2, 3")
    P(f"s_and_b32 s3, {S_XCD}, 1"); P(f"s_lshr_b32 s52, {S_J}, 2")
    P(f"s_lshl_b32 {S_RB}, s3, 3"); P(f"s_add_u32 {S_RB}, {S_RB}, s52")
    P(f"s_lshl_b32 {S_PRB}, s52, 1"); P(f"s_add_u32 {S_PRB}, {S_PRB}, s3")
    P(f"s_lshr_b32 {S_CB}, {S_XCD}, 1"); P(f"s_lshl_b32 {S_CB}, {S_CB}, 2"); P(f"s_and_b32 s3, {S_J}, 3"); P(f"s_add_u32 {S_CB}, {S_CB}, s3")
    P(f"s_add_u32 s52, {S_CB}, {sk}"); P("s_and_b32 s52, s52, 15")
    P(f"s_add_u32 s53, {S_CB}, {sv}"); P("s_and_b32 s53, s53, 15")
    P(f"s_and_b32 {S_WL}, {S_W}, 3")
    P(f"s_movk_i32 {S_TMO}, {opt.get('tmo', 20000)}")
    P(f"s_cmp_ge_u32 {S_W}, 4"); P("s_cbranch_scc1 F_L")
    phase1_C(P, opt)
    P.label("F_L")
    phase1_L(P, opt)
    vm, ool = attention(P, opt)
    tail(P, opt, vm, ool)
    P.label("F_END")
    P("s_endpgm")
    for o in ool: o()
    return P.L

def build(opt, verbose=False):
    head = []
    for line in open(REF):
        if line.startswith("; @launch"): break
        head.append(line.rstrip("\n"))
    L = fused(opt)
    if "tse" in opt:
        keep = opt.get("keep", [])
        L = [x.replace("; TSE", "; TS") for x in L if not (x.startswith("; TS ") and int(x.split()[2]) not in keep)]
    if opt.get("prof"): L = prof(L)
    out = head + ["; @launch grid=(256,1,1) block=(512,1,1) lds=163840", '.amdgcn_target "amdgcn-amd-amdhsa--gfx950"', ".text", khead(NAME)]
    rep = []
    out.append(fmt(pad(L, rep)))
    if verbose:
        print(len(L), "instr; nops:", sum(k for k, _ in rep))
        for k, s in rep: print("   ", k, s)
    out.append('.section .rodata,"a"')
    out.append(kdesc(NAME, 256, 102))
    return "\n".join(out) + "\n"

if __name__ == "__main__":
    import json
    opt = json.loads(sys.argv[2]) if len(sys.argv) > 2 else {}
    open(sys.argv[1], "w").write(build(opt, verbose=True))
```

```python
from fcommon import *
import fused as F1M
from fused import lit, w_addr, x_addr, g1_ids, prof, REF, NAME

RET, ACC = 128, 64
QF = [8, 16, 24]
QO, QX, QP = 32, 48, 64
FA, FV, WD, GAD, FOA, XSA, L32, GWA, F1A = 104, 106, 108, 112, 116, 122, 123, 124, 125
S_LO = "s63"
LINK = "s[96:97]"
FOUT = 144
S_K = "s98"
KLOAD = f"buffer_load_dwordx2 {vr(FV,2)}, v{FA}, {RWS}, 0 offen sc1"

def qg(P, opt, role, vm, lg, hooks):
    barstep = opt.get("barC", 0) if role == "C" else opt.get("barL", 6)
    def reads(i):
        f = QF[i % 3]; o = (i & 7) * 2048
        return [(f"ds_read_b64_tr_b16 {vr(f,2)}, v2 offset:{o}", f"F{i}a"), (f"ds_read_b64_tr_b16 {vr(f+2,2)}, v2 offset:{o+512}", f"F{i}a"),
                (f"ds_read_b64_tr_b16 {vr(f+4,2)}, v3 offset:{o}", f"F{i}b"), (f"ds_read_b64_tr_b16 {vr(f+6,2)}, v3 offset:{o+512}", f"F{i}b")]
    for i in range(32):
        n = 16 + (i >> 3)
        if (i & 7) == barstep:
            if f"pre{n}" in hooks: hooks[f"pre{n}"]()
            P("s_barrier")
            if opt.get("tsq"): P(f"; TS {n+3}")
        if i + 2 < 32 and ((i + 2) & 7) == 0:
            P("v_add_u32 v2, 0x8000, v2"); P("v_add_u32 v3, 0x8000, v3")
        R = reads(i + 2) if i + 2 < 32 else []
        f = QF[i % 3]
        for half in ((0, 1) if i < 31 else (1, 0)):
            lg.need(f"F{i}" + "ab"[half])
            a = (QO, QX)[half]
            P(f"{M32} {vr(a,16)}, {vr(f+4*half,4)}, {vr(RET+4*i,4)}, {vr(a,16) if i else 0}")
            for r in R[half * 2:half * 2 + 2]: lg.issue(*r)
        for h in hooks.get(i, []): h()

def setup_hooks(P, opt):
    def h_ids():
        g1_ids(P)
        P(f"s_lshl_b32 s61, s2, 2"); P(f"s_add_u32 s61, s61, {S_WL}")
        P(f"s_lshr_b32 s62, {S_W}, 2")
        P(f"s_lshl_b32 s64, {S_RB}, 2"); P(f"s_add_u32 s64, s64, {S_WL}"); P("s_lshl_b32 s64, s64, 4"); P(f"s_add_u32 s64, s64, {S_CB}"); P("s_lshl_b32 s64, s64, 1"); P("s_add_u32 s64, s64, s62")
        P("s_lshl_b32 s65, s62, 18")
    def h_kv():
        P(f"s_lshl_b32 s3, {S_PRB}, 1"); P("v_add_u32 v5, s3, v0"); P("v_and_b32 v5, 31, v5"); P("v_lshrrev_b32 v6, 5, v0"); P("v_lshlrev_b32 v6, 13, v6")
        P(f"s_lshl_b32 s3, {S_CB}, 1"); P("s_add_u32 s3, s3, s62"); P("s_lshl_b32 s3, s3, 8"); P(f"s_add_u32 s3, s3, {FL2}")
        P("v_lshl_add_u32 v5, v5, 3, v6"); P(f"v_add_u32 v{FA}, s3, v5")
        P(f"s_lshl_b32 s3, {S_CB}, 19")
        srd(P, 40, P_WS, 512 * 1024, "s3")
        P("v_add_u32 v4, s65, v1")
        P(f"s_lshl_b32 s52, {S_WL}, 1"); P("s_add_u32 s52, s52, s62"); P("s_lshl_b32 s52, s52, 12")
        P(f"s_lshl_b32 {S_K}, {S_PRB}, 2"); P(f"s_add_u32 {S_K}, {S_K}, {S_WL}"); P(f"s_lshl_b32 {S_K}, {S_K}, 12")
    def h_misc():
        P(f"v_lshlrev_b32 v{L32}, 5, v0")
    def h_wd1():
        P("s_lshl_b32 s56, s54, 16"); P(f"s_and_b32 s3, {S_WL}, 1"); P("s_lshl_b32 s3, s3, 8"); P("s_add_u32 s56, s56, s3"); P("s_lshl_b32 s3, s62, 15"); P("s_add_u32 s56, s56, s3")
        P("v_lshrrev_b32 v5, 4, v0"); P("v_and_b32 v6, 15, v0"); P("v_xor_b32 v7, v6, v5"); P("v_lshlrev_b32 v7, 4, v7")
        P(f"v_lshl_add_u32 v{GAD}, v6, 8, v7")
        P("v_lshl_add_u32 v7, v5, 11, v7"); P(f"v_add_u32 v{WD}, s56, v7")
    def h_wd2():
        for n in range(1, 4):
            P(f"v_xor_b32 v{WD+n}, {n<<6}, v{WD}"); P(f"v_add_u32 v{WD+n}, {(4*n<<11) - 1024*n}, v{WD+n}")
        P(f"s_lshl_b32 s57, {S_WL}, 13"); P("s_lshl_b32 s3, s62, 12"); P("s_add_u32 s57, s57, s3")
    def h_g1a():
        P("s_lshl_b32 s3, s62, 14"); P(f"s_add_u32 s3, s3, {U[3]}"); P(f"v_add_u32 v{GAD}, s3, v{GAD}")
        for k in range(1, 4): P(f"v_xor_b32 v{GAD+k}, {k<<6}, v{GAD}")
        P(f"s_cmp_lt_u32 {S_WL}, 2")
        P(f"s_cselect_b32 s44, s{P_WDR}, s{P_WDI}"); P(f"s_cselect_b32 s45, s{P_WDR+1}, s{P_WDI+1}"); P(f"s_mov_b32 s46, {2*MB}"); P("s_mov_b32 s47, 0x00020000")
    return [h_ids, h_kv, h_misc, h_wd1, h_wd2, h_g1a]

def fold_job(P, vm, lg):
    F1, F2, R1, R2, E1, E2, GX, GW, TM, EE, OO, FO, A, XS, GS, BP, GA_ = 64, 68, 72, 76, 80, 81, 84, 92, 100, 128, 136, 144, 116, 122, 124, 126, 103
    t0, t1, t2, t3 = 100, 127, 101, 102
    def st1():
        P(f"s_lshl_b32 s61, s2, 2"); P(f"s_add_u32 s61, s61, {S_WL}")
        P("s_lshr_b32 s3, s61, 4"); P("s_lshl_b32 s3, s3, 1"); P("s_and_b32 s56, s61, 1"); P("s_add_u32 s3, s3, s56"); P("s_lshl_b32 s3, s3, 14")
        P(f"v_lshrrev_b32 v{BP}, 3, v0"); P(f"v_lshlrev_b32 v{t0}, 11, v{BP}"); P(f"v_add_u32 v{t0}, s3, v{t0}")
        P(f"v_sub_u32 v{t1}, {4*MB}, v{t0}")
        P("s_and_b32 s3, s61, 14"); P("s_lshl_b32 s3, s3, 6")
        P(f"v_and_b32 v{GS}, 0x70, v1"); P(f"v_add_u32 v{t2}, s3, v{GS}")
        P(f"v_add_u32 v{A}, v{t0}, v{t2}"); P(f"v_add_u32 v{A+1}, v{t1}, v{t2}")
        srd(P, 48, P_AX, 4 * MB); srd(P, 40, P_WDR, 513 * 2048)
        for r, a in ((F1, 0), (F2, 1)): vm.issue(f"buffer_load_dwordx4 {vr(r,4)}, v{A+a}, s[48:51], 0 offen", "FO")
    def st2():
        P(f"v_lshrrev_b32 v{XS}, 9, v{t0}"); P(f"v_add_u32 v{XS}, {SM_X512}, v{XS}")
        P(f"v_mov_b32 v{t3}, {OOB}"); P(f"v_cmp_eq_u32 vcc, 0x3f0, v{t2}"); P(f"v_cndmask_b32 v{XS}, v{t3}, v{XS}, vcc")
        P(f"v_sub_u32 v{t2}, 2032, v{t2}")
        P(f"v_add_u32 v{A+2}, v{t0}, v{t2}"); P(f"v_add_u32 v{A+3}, v{t1}, v{t2}")
        for r, a in ((R1, 2), (R2, 3)): vm.issue(f"buffer_load_dwordx4 {vr(r,4)}, v{A+a}, s[48:51], 0 offen", "FO")
    def st3():
        P("s_and_b32 s3, s61, 14"); P("s_cselect_b32 vcc_lo, 0x01010101, 0"); P("s_mov_b32 vcc_hi, vcc_lo")
        P(f"v_add_u32 v{t2}, 16, v{t2}"); P(f"v_cndmask_b32 v{t2}, v{t3}, v{t2}, vcc")
        P(f"v_add_u32 v{A+4}, v{t0}, v{t2}"); P(f"v_add_u32 v{A+5}, v{t1}, v{t2}")
        for r, a in ((E1, 4), (E2, 5)): vm.issue(f"buffer_load_ushort v{r}, v{A+a}, s[48:51], 0 offen", "FO")
    def st4():
        P("s_lshl_b32 s3, s61, 11"); P(f"v_add_u32 v{GA_}, s3, v1")
        P("s_cmp_gt_u32 s61, 512"); P(f"s_cselect_b32 s3, {OOB}, {2*MB}")
        vm.issue(f"buffer_load_dwordx4 {vr(GX,4)}, v1, s[48:51], s3 offen", "G"); vm.issue(f"buffer_load_dwordx4 {vr(GX+4,4)}, v1, s[48:51], s3 offen offset:1024", "G")
    def st5():
        vm.issue(f"buffer_load_dwordx4 {vr(GW,4)}, v{GA_}, s[40:43], 0 offen", "G"); vm.issue(f"buffer_load_dwordx4 {vr(GW+4,4)}, v{GA_}, s[40:43], 0 offen offset:1024", "G")
        P(f"v_lshl_add_u32 v{t1}, v{BP}, 8, v{GS}")
        P(f"v_lshlrev_b32 v{BP}, 2, v{BP}"); P(f"v_lshl_add_u32 v{BP}, v{GS}, 1, v{BP}")
        P("v_cmp_eq_u32 vcc, 63, v0"); P(f"v_cndmask_b32 v{GS}, v{t3}, 0, vcc")
    def unp(dst, src, j):
        if j & 1: P(f"v_and_b32 v{dst}, 0xffff0000, v{src + (j >> 1)}")
        else:     P(f"v_lshlrev_b32 v{dst}, 16, v{src + (j >> 1)}")
    def f0():
        vm.need("FO")
        P("s_mov_b32 vcc_lo, 0x01010101"); P("s_mov_b32 vcc_hi, 0x01010101")
        for e, r in ((E1, R1), (E2, R2)): P(f"v_cndmask_b32_dpp v{e}, v{r}, v{e}, vcc row_shr:1 row_mask:0xf bank_mask:0xf bound_ctrl:0")
    def fa1(j):
        def f():
            unp(TM, F1, j); unp(TM + 1, F2, j)
            if j == 0: P(f"v_lshlrev_b32 v{TM+2}, 16, v{E1}"); P(f"v_lshlrev_b32 v{TM+3}, 16, v{E2}")
            else: unp(TM + 2, R1, 8 - j); unp(TM + 3, R2, 8 - j)
        return f
    def fa2(j):
        def f():
            P(f"v_add_f32 v{TM}, v{TM}, v{TM+3}"); P(f"v_add_f32 v{TM+1}, v{TM+1}, v{TM+2}")
            P(f"v_add_f32 v{EE+j}, v{TM}, v{TM+1}"); P(f"v_sub_f32 v{OO+j}, v{TM}, v{TM+1}")
        return f
    def fb1():
        unp(TM + 2, R1, 0); unp(TM + 3, R2, 0); P(f"v_add_f32 v{FO+8}, v{TM+2}, v{TM+3}")
        P("s_lshr_b32 s58, s61, 1"); P("s_lshl_b32 s58, s58, 4"); P("s_and_b32 s3, s61, 1"); P("s_add_u32 s58, s58, s3"); P("s_lshl_b32 s58, s58, 7")
        P(f"s_add_u32 s59, s58, {WS_XE+MB}"); P(f"s_add_u32 s58, s58, {WS_XE}")
        vm.issue(f"buffer_store_dword v{FO+8}, v{XS}, {RWS}, 0 offen sc1", "FS")
    def fb2(h):
        def f():
            for r in range(4 * h, 4 * h + 4): P(f"v_cvt_pk_bf16_f32 v{FO+r}, v{EE+2*r}, v{EE+2*r+1}")
        return f
    def fb3(h):
        def f():
            for r in range(2 * h, 2 * h + 2): lg.issue(f"ds_bpermute_b32 v{F1+r}, v{BP}, v{FO+r}", f"BP{h>>1}")
        return f
    def fb4(h):
        def f():
            lg.need(f"BP{h}")
            vm.issue(f"buffer_store_dwordx4 {vr(F1+4*h,4)}, v{t1}, {RWS}, s{58+h} offen sc1", "FS")
        return f
    def gj(a):
        def f():
            if a == 0: vm.need("G"); P(f"v_mov_b32 v{FO+9}, 0")
            for r in range(a, a + 2): P(f"v_dot2_f32_bf16 v{FO+9}, v{GX+r}, v{GW+r}, v{FO+9}")
        return f
    v = FO + 9
    D = [f"v_add_f32_dpp v{v}, v{v}, v{v} {m} row_mask:0xf bank_mask:0xf bound_ctrl:0" for m in ("row_shr:1", "row_shr:2", "row_shr:4", "row_shr:8")]
    D += [f"v_add_f32_dpp v{v}, v{v}, v{v} row_bcast:15 row_mask:0xa bank_mask:0xf", f"v_add_f32_dpp v{v}, v{v}, v{v} row_bcast:31 row_mask:0xc bank_mask:0xf"]
    def gst():
        P("s_lshl_b32 s3, s61, 2"); P(f"s_add_u32 s3, s3, {SM_G}")
        vm.issue(f"buffer_store_dword v{FO+9}, v{GS}, {RWS}, s3 offen sc1", "FS")
    def flag():
        P("s_lshl_b32 s3, s61, 3"); P(f"s_add_u32 s3, s3, {FL1}")
        P(f"v_mov_b32 v{TM}, s32"); P(f"v_mov_b32 v{TM+1}, s33"); P(f"v_mov_b32 v{TM+2}, 0")
        vm.need("FS")
        vm.issue(f"buffer_store_dwordx2 {vr(TM,2)}, v{TM+2}, {RWS}, s3 offen sc1", "F1")
    L = [f0]
    for j in range(8): L += [fa1(j), fa2(j)]
    L += [fb1, fb2(0), fb2(1), fb3(0), fb3(1), fb3(2), fb3(3), gj(0), fb4(0), gj(2), fb4(1), gj(4), gj(6)] + [(lambda d=d: P(d)) for d in D] + [gst]
    return [st1, st2, st3, st4, st5], L, flag

def x_job(P, vm, a, d):
    load = f"buffer_load_dwordx2 {vr(d,2)}, v{a}, {RWS}, 0 offen sc1"
    def poll():
        g1_ids(P)
        P(f"v_and_b32 v{a}, 15, v0"); P(f"v_lshlrev_b32 v{a}, 3, v{a}"); P("s_lshl_b32 s3, s55, 7"); P(f"s_add_u32 s3, s3, {FL1}"); P(f"v_add_u32 v{a}, s3, v{a}")
        vm.issue(load, "F")
        P("s_lshl_b32 s100, s55, 14"); P(f"s_lshr_b32 s3, {S_W}, 2"); P("s_lshl_b32 s3, s3, 20"); P("s_add_u32 s100, s100, s3"); P(f"s_add_u32 s100, s100, {WS_XE}")
    def check():
        vm.need("F")
        spin(P, load, flags_ok(P, d))
    def xld(k):
        def f():
            if k % 4 == 0 and k: P("s_add_u32 s100, s100, 4096")
            vm.issue(f"buffer_load_dwordx4 {vr(RET+4*k,4)}, v1, {RWS}, s100 offen offset:{1024*(k%4)} sc1", f"X{k}")
        return f
    return poll, check, xld

def phase1_C(P, opt):
    XO, XT, WA = 2, 6, 10
    SET = [dict(XO=32, XT=36, WK=40, WV=44), dict(XO=48, XT=52, WK=56, WV=60)]
    vm = VM(P); lg = LG(P)
    TL = opt.get("tl", 2)
    P(f"s_lshl_b32 s3, {S_RB}, 2"); P(f"s_and_b32 s58, {S_J}, 3"); P("s_add_u32 s3, s3, s58"); P("s_lshl_b32 s3, s3, 2"); P(f"s_add_u32 s3, s3, {S_W}"); P("s_lshl_b32 s3, s3, 14")
    P("v_and_b32 v17, 7, v0"); P("v_lshlrev_b32 v17, 11, v17"); P("v_lshrrev_b32 v18, 3, v0"); P("v_lshl_add_u32 v17, v18, 7, v17"); P("v_add_u32 v17, s3, v17")
    P(f"v_mov_b32 v21, {OOB}"); P("v_cmp_gt_u32 vcc, 16, v0"); P("v_cndmask_b32 v17, v21, v17, vcc")
    P(f"s_lshr_b32 s3, {S_J}, 2"); P("s_lshl_b32 s3, s3, 2"); P(f"s_add_u32 s3, s3, {S_W}"); P("s_lshl_b32 s3, s3, 1")
    P("v_and_b32 v18, 1, v0"); P("v_add_u32 v22, s3, v18")
    P("v_bfe_u32 v18, v0, 1, 1"); P("v_lshl_add_u32 v18, v18, 6, v22"); P("v_mul_u32_u24 v18, 0x1800, v18")
    P("s_lshl_b32 s3, s52, 7"); P("s_add_u32 s3, s3, 2048"); P("s_lshl_b32 s58, s53, 7"); P("s_add_u32 s58, s58, 4096")
    P("v_mov_b32 v20, s3"); P("v_mov_b32 v23, s58"); P("v_cmp_gt_u32 vcc, 4, v0"); P("v_cndmask_b32 v20, v23, v20, vcc"); P("v_add_u32 v18, v18, v20")
    P("v_cmp_gt_u32 vcc, 8, v0"); P("v_cndmask_b32 v18, v21, v18, vcc")
    P("s_waitcnt lgkmcnt(0)")
    def touch(p):
        if p > 7: return
        vm.issue(f"buffer_load_dword v24, v17, s[40:43], 0 offen offset:{256*p}")
        P(f"s_mov_b32 s3, {p*786432}")
        vm.issue("buffer_load_dword v24, v18, s[44:47], s3 offen")
    srd(P, 40, P_BX, 4 * MB); srd(P, 44, P_WQKV, 6 * MB)
    for p_ in range(opt.get("t0", 1), TL + 1): touch(p_)
    P("v_lshrrev_b32 v19, 1, v0"); P("v_lshl_add_u32 v19, v19, 6, v22"); P("v_mul_u32_u24 v19, 0x1800, v19"); P(f"s_lshl_b32 s3, {S_CB}, 7"); P("v_add_u32 v19, s3, v19")
    x_addr(P, XO, 10)
    for k in range(4): P(f"v_xor_b32 v{XT+k}, 0x1000, v{XO+k}")
    P(f"s_and_b32 s57, {S_W}, 1")
    w_addr(P, WA, "s57")
    P(f"v_add_u32 v{WA}, 0x4000, v{WA}")
    P("v_lshlrev_b32 v1, 4, v0")
    P("v_mov_b32 v16, 0")
    srd(P, 36, P_WS, WS_SIZE); srd(P, 48, P_DBG, 256)
    P(f"s_or_b32 s3, s2, {S_W}"); P("s_cmp_lg_u32 s3, 0"); P("s_cbranch_scc1 C_NN")
    P("s_memrealtime s[58:59]"); P("s_waitcnt lgkmcnt(0)"); P("s_or_b32 s58, s58, 1")
    P("v_mov_b32 v12, s58"); P("v_mov_b32 v13, s59")
    P("buffer_store_dwordx2 v[12:13], v16, s[48:51], 0 offen sc1")
    P.label("C_NN")
    NLOAD = "buffer_load_dwordx2 v[12:13], v16, s[48:51], 0 offen sc1"
    HK = {}
    def hk(p, f): HK.setdefault(p, []).append(f)
    def atouch():
        P(f"s_lshl_b32 s56, s2, 2"); P(f"s_add_u32 s56, s56, {S_WL}")
        P("s_lshr_b32 s3, s56, 4"); P("s_lshl_b32 s3, s3, 1"); P("s_and_b32 s58, s56, 1"); P("s_add_u32 s3, s3, s58"); P("s_lshl_b32 s3, s3, 14")
        P("v_and_b32 v25, 7, v0"); P("v_lshlrev_b32 v25, 11, v25"); P("v_add_u32 v25, s3, v25"); P(f"v_sub_u32 v26, {4*MB}, v25")
        P("s_mov_b32 vcc_lo, 0xff00ff00"); P("s_mov_b32 vcc_hi, 0"); P("v_cndmask_b32 v25, v25, v26, vcc")
        P("s_and_b32 s3, s56, 14"); P("s_lshl_b32 s3, s3, 6"); P("s_sub_u32 s58, 1920, s3")
        P("v_mov_b32 v26, s3"); P("v_mov_b32 v27, s58"); P("s_mov_b32 vcc_lo, 0xffff0000"); P("v_cndmask_b32 v26, v26, v27, vcc"); P("v_add_u32 v25, v25, v26")
        P("v_lshlrev_b32 v26, 7, v0"); P(f"v_add_u32 v27, {2*MB-4096}, v26"); P("s_mov_b32 vcc_lo, 0"); P("s_mov_b32 vcc_hi, 0xffff"); P("v_cndmask_b32 v25, v25, v27, vcc")
        P("s_mov_b32 vcc_hi, 0xffff0000"); P("v_cndmask_b32 v25, v25, v21, vcc")
        srd(P, 60, P_AX, 4 * MB)
        vm.issue("buffer_load_dword v24, v25, s[60:63], 0 offen")
        P(f"s_mov_b32 s60, s{P_WDR}"); P(f"s_mov_b32 s61, s{P_WDR+1}"); P(f"s_mov_b32 s62, {513*2048}")
        P("v_cmp_gt_u32 vcc, 16, v0"); P("s_lshl_b32 s3, s56, 11"); P("v_cndmask_b32 v26, v21, v26, vcc")
        vm.issue("buffer_load_dword v24, v26, s[60:63], s3 offen")
    if opt.get("at", -1) >= 0: hk(opt["at"], atouch)
    hk(opt.get("nl", 12 * 16 + 10), lambda: vm.issue(NLOAD, "N"))
    def ncheck():
        vm.need("N")
        spin(P, NLOAD, nonce_ok(P, 12))
    hk(15 * 16 + 2, ncheck)
    P("s_setprio 2")
    P("; TS 0")
    P("s_barrier")
    P("; TS 1")
    def xo(s, ks): return RET + 4 * (4 * (s - 8) + ks) if s >= 8 else SET[ks & 1]["XO"]
    def reads(s, ks):
        t = SET[ks & 1]; g = f"{s}_{ks}"
        return [(f"ds_read_b128 {vr(xo(s,ks),4)}, v{XO+ks}", "XO" + g),
                (f"ds_read_b64_tr_b16 {vr(t['WK'],2)}, v{WA} offset:{ks*2048}", "WK" + g),
                (f"ds_read_b64_tr_b16 {vr(t['WK']+2,2)}, v{WA} offset:{ks*2048+512}", "WK" + g),
                (f"ds_read_b128 {vr(t['XT'],4)}, v{XT+ks}", "XT" + g),
                (f"ds_read_b64_tr_b16 {vr(t['WV'],2)}, v{WA} offset:{8192+ks*2048}", "WV" + g),
                (f"ds_read_b64_tr_b16 {vr(t['WV']+2,2)}, v{WA} offset:{8192+ks*2048+512}", "WV" + g)]
    for r in reads(0, 0): lg.issue(*r)
    for s in range(16):
        for ks in range(4):
            t = SET[ks & 1]; g = f"{s}_{ks}"
            last = ks == 3
            R = reads(s, ks + 1) if not last else (reads(s + 1, 0) if s < 15 else [])
            d = lit(32768 if s % 5 != 4 else -131072)
            for i in range(4):
                x, xt = (xo(s, ks), "XO") if i % 2 == 0 else (t["XT"], "XT")
                w = "WK" if i < 2 else "WV"
                lg.need(xt + g, w + g)
                A, B = (t[w], x) if i < 2 else (x, t[w])
                a = ACC + 16 * i
                P(f"{M32} {vr(a,16)}, {vr(A,4)}, {vr(B,4)}, {vr(a,16) if (s or ks) else 0}")
                if last and s < 15:
                    if i == 0:
                        for r in (XO, WA, XT): P(f"v_add_u32 v{r}, {d}, v{r}")
                    if i == 2:
                        for k in range(1, 4): P(f"v_add_u32 v{XO+k}, {d}, v{XO+k}"); P(f"v_add_u32 v{XT+k}, {d}, v{XT+k}")
                if i < 2:
                    for r in R[3 * i:3 * i + 3]: lg.issue(*r)
                if ks == 1 and i == 3:
                    P("s_barrier")
                    if s in (0, 4, 8, 12): P(f"; TS {2 + s // 4}")
                if ks == 2 and i == 0:
                    if s % 2 == 0: touch(TL + 1 + s // 2)
                    if s == opt.get("tq", 7): vm.issue("buffer_load_dword v24, v19, s[44:47], 0 offen")
                for f in HK.get(16 * s + 4 * ks + i, []): f()
                if s == 15 and ks == 0 and i == 2:
                    P(f"s_lshl_b32 s58, {S_PRB}, 2"); P(f"s_add_u32 s58, s58, {S_W}"); P("s_lshl_b32 s58, s58, 12")
                    P("s_lshl_b32 s59, s52, 1"); P("s_add_u32 s59, s59, s57")
                    P("s_lshl_b32 s60, s53, 1"); P("s_add_u32 s60, s60, s57")
                    P("s_lshl_b32 s61, s59, 18"); P("s_add_u32 s61, s61, s58"); P("s_xor_b32 s62, s61, 0x1000")
                    P("s_lshl_b32 s63, s60, 18"); P("s_add_u32 s63, s63, s58"); P("s_xor_b32 s64, s63, 0x1000")
                if s == 15 and ks == 1 and i == 2:
                    P("v_and_b32 v30, 0x33, v0")
                    P("v_bfe_u32 v31, v0, 2, 1"); P("v_lshl_or_b32 v30, v31, 3, v30")
                    P("v_bfe_u32 v31, v0, 3, 1"); P("v_lshl_or_b32 v30, v31, 2, v30")
                    P("v_lshlrev_b32 v30, 4, v30")
                if s == 15 and ks == 3 and i == 0:
                    P(f"s_lshl_b32 s3, s57, 6"); P(f"v_xor_b32 v2, s3, v{WA}"); P(f"v_add_u32 v2, {U[1]}, v2"); P("v_xor_b32 v3, 64, v2")
    P("; TS 6")
    for i in range(4):
        a = ACC + 16 * i; d = ACC + 8 * i
        for r in range(8): P(f"v_cvt_pk_bf16_f32 v{d+r}, v{a+2*r}, v{a+2*r+1}")
        va, off = (30, 0) if i < 2 else (1, 2048)
        vm.issue(f"buffer_store_dwordx4 {vr(d,4)}, v{va}, {RWS}, s{61+i} offen offset:{off} sc1", "KV")
        vm.issue(f"buffer_store_dwordx4 {vr(d+4,4)}, v{va}, {RWS}, s{61+i} offen offset:{off+1024} sc1", "KV")
        if i == 2: P("v_mov_b32 v102, v30")
        if i >= 2:
            f = QF[i - 2]; o = (i - 2) * 2048; q = i - 2
            lg.issue(f"ds_read_b64_tr_b16 {vr(f,2)}, v2 offset:{o}", f"F{q}a"); lg.issue(f"ds_read_b64_tr_b16 {vr(f+2,2)}, v2 offset:{o+512}", f"F{q}a")
            lg.issue(f"ds_read_b64_tr_b16 {vr(f+4,2)}, v3 offset:{o}", f"F{q}b"); lg.issue(f"ds_read_b64_tr_b16 {vr(f+6,2)}, v3 offset:{o+512}", f"F{q}b")
    P("s_setprio 0")
    P("; TS 7")
    def kvflag0():
        P("s_add_u32 s60, s60, 32"); P("s_lshl_b32 s59, s59, 8"); P("s_lshl_b32 s60, s60, 8")
        P(f"s_lshl_b32 s3, {S_PRB}, 1"); P(f"s_lshr_b32 s58, {S_W}, 1"); P("s_add_u32 s58, s3, s58"); P("s_lshl_b32 s58, s58, 3"); P(f"s_add_u32 s58, s58, {FL2}")
        P(f"v_mov_b32 v96, s59"); P(f"v_mov_b32 v97, s60"); P("v_cmp_eq_u32 vcc, 0, v0"); P(f"v_cndmask_b32 v96, v97, v96, vcc")
        P(f"v_mov_b32 v98, s32"); P(f"v_mov_b32 v99, s33")
        P(f"v_mov_b32 v{XSA}, 0"); P(f"v_mov_b32 v{GWA}, 0")
    def kvflag():
        vm.need("KV")
        P("; TS 8")
        vm.issue(f"buffer_store_dwordx2 v[98:99], v96, {RWS}, s58 offen sc1", "FK")
    def slot(src, back):
        P(f"s_sub_u32 s3, {src}, {back}"); P("s_cselect_b32 s58, 12, 0"); P("s_add_u32 s3, s3, s58")
        P("s_lshl_b32 s3, s3, 1"); P("s_add_u32 s3, s3, s59"); P("s_lshl_b32 s3, s3, 12")
    def own1():
        P(f"s_and_b32 s59, {S_W}, 1"); P(f"s_xor_b32 s60, {S_W}, 1")
        slot(S_W, 2); P("v_add_u32 v96, s3, v102"); P("v_xor_b32 v97, 0x2000, v96")
        slot(S_W, 0); P("v_add_u32 v100, s3, v1"); P("v_xor_b32 v101, 0x2000, v100")
    def own2():
        slot(S_W, 1); P("v_add_u32 v98, s3, v1")
        slot("s60", 1); P("v_add_u32 v99, s3, v1")
    OW = [(96, 0, 64), (96, 1024, 68), (97, 0, 72), (97, 1024, 76), (98, 2048, 80), (100, 3072, 84), (99, 2048, 88), (101, 3072, 92)]
    H = {0: [kvflag0]}
    for n, h in enumerate(setup_hooks(P, opt)): H.setdefault(1 + n, []).append(h)
    kf = opt.get("kvflag", 12)
    assert kf < 22
    H.setdefault(kf, []).append(kvflag)
    H.setdefault(22, []).append(own1); H.setdefault(23, []).append(own2)
    for n, (a, o, d) in enumerate(OW):
        H.setdefault(24 + n // 2, []).append(lambda a=a, o=o, d=d: lg.issue(f"ds_write_b128 v{a}, {vr(d,4)} offset:{o}", "OW"))
    H.setdefault(opt.get("kpC", 23), []).append(lambda: vm.issue(KLOAD, "KF"))
    qg(P, opt, "C", vm, lg, H)
    P("s_branch F_ATT")

def phase1_L(P, opt):
    vm = VM(P); lg = LG(P)
    DX, DW, XA = 2, 6, 8
    P("v_lshrrev_b32 v1, 3, v0")
    P("v_and_b32 v6, 7, v0")
    P("v_lshrrev_b32 v7, 4, v0")
    P("v_xor_b32 v8, v6, v7")
    P("v_lshlrev_b32 v8, 4, v8")
    P("v_lshl_add_u32 v8, v1, 11, v8")
    P(f"s_lshl_b32 s56, {S_RB}, 18"); P(f"s_lshl_b32 s57, {S_WL}, 16"); P("s_add_u32 s56, s56, s57")
    P("v_add_u32 v2, s56, v8")
    P("v_xor_b32 v3, 64, v2")
    P(f"v_add_u32 v3, {16384-1024}, v3")
    P(f"v_add_u32 v4, {32768-2048}, v2")
    P(f"v_add_u32 v5, {32768-2048}, v3")
    P("v_and_b32 v7, 1, v7")
    P("v_lshlrev_b32 v7, 2, v7")
    P("v_xor_b32 v6, v6, v7")
    P("v_lshlrev_b32 v6, 4, v6")
    P(f"s_lshl_b32 s56, {S_WL}, 4")
    P("v_add_u32 v1, s56, v1")
    P("v_mul_u32_u24 v1, 0x1800, v1")
    P("v_add_u32 v6, v1, v6")
    P(f"v_add_u32 v7, {8*6144-1024}, v6")
    P("s_lshl_b32 s52, s52, 7"); P("s_add_u32 s52, s52, 2048")
    P("s_lshl_b32 s53, s53, 7"); P("s_add_u32 s53, s53, 4096")
    P(f"s_lshl_b32 s58, {S_WL}, 12")
    P(f"s_lshl_b32 s59, {S_WL}, 11")
    P(f"s_lshl_b32 s60, {S_CB}, 7")
    P("s_waitcnt lgkmcnt(0)")
    srd(P, 40, P_BX, 4 * MB); srd(P, 44, P_WQKV, 6 * MB)
    def D(n, part=None):
        u = U[n % 5]; t = f"D{n}"
        if n < 16:
            P(f"s_add_u32 m0, s58, {u}"); P(f"s_movk_i32 s3, {n*128}")
            for i in range(4): vm.issue(f"buffer_load_dwordx4 v{DX+i}, s[40:43], s3 offen offset:{1024*i} lds", t)
            subs = [(16384, "s52", n), (24576, "s53", n)]
        else:
            q = n - 16
            subs = [(8192 * b, "s60", (b >> 1) * 8 + 2 * q + (b & 1)) for b in range(4)]
        if part is not None: subs = subs[part:part + 1]
        for lo, sc, st in subs:
            P(f"s_add_u32 m0, s59, {u+lo}"); P(f"s_add_u32 s3, {sc}, {st*393216}")
            vm.issue(f"buffer_load_dwordx4 v{DW}, s[44:47], s3 offen lds", t)
            vm.issue(f"buffer_load_dwordx4 v{DW+1}, s[44:47], s3 offen offset:1024 lds", t)
    pre0 = opt.get("pre0", 2)
    for n in range(pre0): D(n)
    srd(P, 36, P_WS, WS_SIZE); srd(P, 48, P_DBG, 256)
    x_addr(P, XA, 18)
    P("v_lshlrev_b32 v1, 4, v0")
    P("v_mov_b32 v16, 0")
    NLOAD = "buffer_load_dwordx2 v[12:13], v16, s[48:51], 0 offen sc1"
    def ret(s):
        for ks in range(4): lg.issue(f"ds_read_b128 {vr(RET+16*s+4*ks,4)}, v{XA+ks}", "R")
        d = lit(32768 if s % 5 != 4 else -131072)
        for ks in range(4): P(f"v_add_u32 v{XA+ks}, {d}, v{XA+ks}")
    vm.need("D0")
    P("; TS 0")
    P("s_barrier")
    P("; TS 1")
    ret(0)
    for n in range(pre0, 4): D(n)
    hooks = setup_hooks(P, opt)
    fstart, fparts, fflag = fold_job(P, vm, lg)
    for n in range(16):
        vm.need(f"D{n+1}")
        lg.drain()
        P("s_barrier")
        if n in (0, 4, 8, 12): P(f"; TS {2 + n // 4}")
        if n < 7: ret(n + 1)
        if n == 9: vm.issue(NLOAD, "N")
        if n < 15: D(n + 4)
        if n == 13:
            vm.need("N")
            spin(P, NLOAD, nonce_ok(P, 12))
    P("; TS 6")
    w_addr(P, 2, "1"); P(f"v_add_u32 v2, {U[1]}, v2"); P("v_xor_b32 v3, 64, v2")
    for i in range(2):
        f = QF[i]; o = i * 2048
        lg.issue(f"ds_read_b64_tr_b16 {vr(f,2)}, v2 offset:{o}", f"F{i}a"); lg.issue(f"ds_read_b64_tr_b16 {vr(f+2,2)}, v2 offset:{o+512}", f"F{i}a")
        lg.issue(f"ds_read_b64_tr_b16 {vr(f+4,2)}, v3 offset:{o}", f"F{i}b"); lg.issue(f"ds_read_b64_tr_b16 {vr(f+6,2)}, v3 offset:{o+512}", f"F{i}b")
    H = {}
    for n in range(16, 19): H[f"pre{n}"] = (lambda n=n: vm.need(f"D{n+1}"))
    for b in range(4): H.setdefault(b, []).append(lambda b=b: D(19, b))
    fa = opt.get("foat", 3)
    for n, h in enumerate(fstart): H.setdefault(fa + n, []).append(h)
    for n, h in enumerate(hooks): H.setdefault(fa + 5 + n, []).append(h)
    f0 = opt.get("fold", 16); fr = opt.get("foldr", 3)
    assert f0 >= 4 and f0 + 17 // fr >= 7
    for n, f in enumerate(fparts): H.setdefault(f0 + n // fr, []).append(f)
    fl = opt.get("fflag", -1)
    if fl >= 0:
        assert fl > f0 + len(fparts) // fr
        H.setdefault(fl, []).append(fflag)
    H.setdefault(opt.get("kpL", 24), []).append(lambda: vm.issue(KLOAD, "KF"))
    qg(P, opt, "L", vm, lg, H)

ONES, LS, Q, K, V, C, O, SA, SB = 8, 12, 16, 24, 32, 40, 56, 72, 88
RW = 105
TR, AC, AF, PA, RA, RD, CW, CC, G5, CV = 128, 192, 208, 220, 228, 232, 236, 244, 252, 254
DO = GAD
WOU = [3, 4, 1, 2]
S_CR = "s99"

def g2_dma(P):
    def a():
        P(f"s_lshl_b32 s57, {S_XCD}, 2"); P(f"s_and_b32 s3, {S_J}, 3"); P("s_add_u32 s57, s57, s3")
        P("s_cmp_eq_u32 s65, 0")
        P(f"s_cselect_b32 s44, s{P_WSR}, s{P_WSI}"); P(f"s_cselect_b32 s45, s{P_WSR+1}, s{P_WSI+1}"); P(f"s_mov_b32 s46, {8*MB}")
        P(f"s_and_b32 s100, {S_W}, 2"); P(f"s_and_b32 s101, {S_W}, 1")
        P("s_lshl_b32 s59, s57, 17"); P("s_lshl_b32 s3, s100, 15"); P("s_add_u32 s59, s59, s3"); P("s_lshl_b32 s3, s101, 10"); P("s_add_u32 s59, s59, s3")
        P("v_lshrrev_b32 v6, 4, v0"); P("v_and_b32 v7, 15, v0"); P("v_xor_b32 v7, v7, v6"); P("v_lshlrev_b32 v7, 4, v7")
    def b():
        P("v_lshl_add_u32 v7, v6, 12, v7"); P(f"v_add_u32 v{WD}, s59, v7")
        P("s_lshr_b32 s59, s65, 4"); P("s_lshl_b32 s3, s101, 13"); P("s_add_u32 s59, s59, s3"); P("s_lshl_b32 s3, s100, 11"); P("s_add_u32 s59, s59, s3")
    def c():
        for n in range(1, 4):
            P(f"v_xor_b32 v{WD+n}, {n<<6}, v{WD}"); P(f"v_add_u32 v{WD+n}, {(4*n<<12) - 1024*n}, v{WD+n}")
    return [a, b, c]

def g2_ids(P):
    def a():
        P(f"s_lshr_b32 s54, {S_W}, 2"); P(f"s_bfe_u32 s55, {S_W}, 0x10001"); P(f"s_and_b32 s56, {S_W}, 1")
        P(f"s_lshr_b32 s58, {S_J}, 2"); P("s_lshl_b32 s58, s58, 1"); P("s_add_u32 s58, s58, s55")
    def f():
        P("s_lshl_b32 s3, s54, 4"); P("s_add_u32 s3, s3, s58"); P("s_lshl_b32 s3, s3, 1"); P("s_add_u32 s3, s3, s56"); P("s_lshl_b32 s60, s3, 15"); P("s_lshl_b32 s3, s3, 8"); P(f"s_add_u32 s3, s3, {FL3}")
        P(f"s_add_u32 s60, s60, {WS_TE}")
        P(f"v_and_b32 v{FA}, 31, v0"); P(f"v_lshlrev_b32 v{FA}, 3, v{FA}"); P(f"v_add_u32 v{FA}, s3, v{FA}")
    return [a, f]

def op_ids(P):
    P(f"s_and_b32 s61, {S_XCD}, 1"); P("s_lshl_b32 s61, s61, 3"); P(f"s_lshr_b32 s3, {S_J}, 3"); P("s_lshl_b32 s3, s3, 1"); P("s_add_u32 s61, s61, s3")
    P(f"s_bfe_u32 s3, {S_XCD}, 0x10001"); P("s_add_u32 s61, s61, s3")
    P(f"s_lshr_b32 s62, {S_XCD}, 2"); P("s_lshl_b32 s62, s62, 3"); P(f"s_and_b32 s3, {S_J}, 7"); P("s_add_u32 s62, s62, s3")

def attention(P, opt):
    vm = VM(P); lg = LG(P)
    vm.now = -2
    ool = []
    P.label("F_ATT")
    P("; TS 9")
    def kv_upd():
        P(f"v_cmp_eq_u64 vcc, {NON}, {vr(FV,2)}")
        P("s_and_b32 s53, vcc_lo, vcc_hi")
    def kv_ok(bits):
        def f():
            kv_upd()
            P(f"s_andn2_b32 s3, {bits}, s53")
            P("s_cmp_eq_u32 s3, 0")
        return f
    def kvp(u, *pcs):
        def a():
            P(f"s_add_u32 m0, s52, {U[u % 3]}")
            last = None
            for pc in pcs:
                d = (2, 2, 1, 0)[pc]
                if d != last: P(f"s_add_u32 s3, {S_K}, {(4 * u + d) * 4096}"); P("s_and_b32 s3, s3, 0x3ffff")
                last = d
                vm.issue(f"buffer_load_dwordx4 v4, s[40:43], s3 offen offset:{1024*pc} sc1 lds", f"H{u}")
        return a
    P(f"s_lshl_b32 s3, {S_W}, 12"); P(f"s_add_u32 s3, s3, {U[3]}")
    P("v_add_u32 v2, s3, v1"); P("v_xor_b32 v3, 0x4000, v2")
    P("s_waitcnt vmcnt(0)")
    spin(P, KLOAD, kv_ok("28"))
    P("; TS 10")
    P(f"s_cmp_lt_u32 {S_WL}, 2"); P("s_cbranch_scc1 A_N0")
    kvp(0, 0, 1)()
    P(f"s_cmp_lt_u32 {S_WL}, 3"); P("s_cbranch_scc1 A_N0")
    kvp(0, 2)()
    P.label("A_N0")
    for g in range(4):
        lg.issue(f"ds_write_b128 v2, {vr(QX+4*g,4)} offset:{1024*g}", "QW")
        kvp(1, g)()
    P("v_mov_b32 v5, 0xdddddddd")
    P("v_and_b32 v6, 7, v0"); P("v_mov_b32 v7, 0x3f803f80")
    P("v_cmp_eq_u32 vcc, 0, v6"); P(f"v_cndmask_b32 v{ONES}, 0, v7, vcc"); P(f"v_cndmask_b32 v{ONES+1}, 0, v7, vcc")
    P("v_cmp_eq_u32 vcc, 4, v6"); P(f"v_cndmask_b32 v{ONES+2}, 0, v7, vcc"); P(f"v_cndmask_b32 v{ONES+3}, 0, v7, vcc")
    for i in range(4): P(f"v_mov_b32 v{LS+i}, 0")
    P("s_waitcnt lgkmcnt(0)"); lg.q = []
    P("s_barrier")
    for g in range(4): lg.issue(f"ds_read_b128 {vr(QP+4*g,4)}, v3 offset:{1024*g}", f"QP{g}")
    P(f"s_mov_b32 s3, {f32hex(math.log2(math.e) / math.sqrt(32.0))}")
    P("s_lshr_b32 s62, s65, 6"); P("v_add_u32 v2, s62, v1"); P("v_add_u32 v3, 0xc000, v2")
    def at(t, off):
        sl = (t - (2, 2, 1, 0)[off >> 10]) % 12
        return f"v{2 + sl // 6} offset:{(sl % 6) * 8192 + off}"
    lg.issue(f"ds_read_b128 {vr(K,4)}, {at(0,0)}", "K0"); lg.issue(f"ds_read_b128 {vr(K+4,4)}, {at(0,1024)}", "K1")
    for g in range(4):
        lg.need(f"QP{g}")
        for i in range(4 * g, 4 * g + 4): P(f"v_add_f32 v{QO+i}, v{QO+i}, v{QP+i}")
        for i in range(4 * g, 4 * g + 4): P(f"v_mul_f32 v{QO+i}, s3, v{QO+i}")
        for i in range(2 * g, 2 * g + 2): P(f"v_cvt_pk_bf16_f32 v{Q+i}, v{QO+2*i}, v{QO+2*i+1}")
    P("; TS 11")
    P(f"s_mov_b32 s62, {f32hex(float(opt.get('margin', 88)))}")
    lg.need("K0"); P(f"{M32} {vr(SA,16)}, {vr(K,4)}, {vr(Q,4)}, 0")
    lg.need("K1"); P(f"{M32} {vr(SA,16)}, {vr(K+4,4)}, {vr(Q+4,4)}, {vr(SA,16)}")
    lg.issue(f"ds_read_b128 {vr(K,4)}, {at(1,0)}", "K0")
    lg.issue(f"ds_read_b128 {vr(K+4,4)}, {at(1,1024)}", "K1")
    lg.issue(f"ds_read_b128 {vr(V,4)}, {at(0,2048)}", "V0")
    for i in range(16): P(f"v_mov_b32 v{O+i}, 0")
    P(f"v_max3_f32 v6, v{SA}, v{SA+1}, v{SA+2}")
    for i in range(3, 15, 2): P(f"v_max3_f32 v6, v6, v{SA+i}, v{SA+i+1}")
    P(f"v_max_f32 v6, v6, v{SA+15}")
    P("v_mov_b32 v7, v6"); P("v_permlane32_swap_b32 v6, v7"); P("v_max_f32 v6, v6, v7")
    P("v_add_f32 v6, s62, v6")
    for i in range(16): P(f"v_sub_f32 v{SA+i}, v{SA+i}, v6")
    for i in range(16): P(f"v_sub_f32 v{C+i}, 0, v6")

    X = {t: [] for t in range(64)}
    PRE = {t: [] for t in range(64)}
    def add(t, *fs): X[t].extend(fs)
    def ld(text, tag=None): return lambda: vm.issue(text, tag)
    def bar_after(t): return (t // 4 + 1) * 4
    def bar_upto(t): return t // 4 * 4
    sch = dict(cw=5, wd=[2, 2, 2, 3, 0, 1, 1, 1], f1p=6, x=8, xr=3, g1=13, f3=22, ws=[20, 22, 36, 40], tp=25, t=27,
               tt=[27, 27, 28, 28, 29, 29, 30, 30, 30, 31, 31, 31, 32, 32, 33, 33, 38, 38, 39, 39, 42, 42, 43, 43, 44, 44, 45, 45, 46, 46, 47, 47],
               g2=[32, 36, 44, 48], cc=34, wot=35, cj=39, wo=[48, 52, 56, 60])
    sch.update(opt.get("sch", {}))
    NCHK = opt.get("nchk", 2)
    def chk(e):
        def f():
            m = lit((1 << (2 * e + 7)) - 4) if e < NCHK else "-1"
            vm.need("KF"); kv_upd()
            P(f"s_andn2_b32 s3, {m}, s53"); P(f"s_cbranch_scc1 KS{e}")
            P.label(f"KB{e}")
            def o():
                P.label(f"KS{e}")
                P(f"s_mov_b32 s62, {m}")
                P(f"s_call_b64 {LINK}, KVSPIN")
                P(f"s_branch KB{e}")
            ool.append(o)
        return f
    add(0, ld(KLOAD, "KF"))
    PRE[2].append(lambda: vm.need("H0"))
    add(3, chk(1), kvp(2, 0, 1))
    for e in range(1, 16):
        t = 4 * e
        if 1 < e <= NCHK: PRE[t].append(chk(e))
        if e < NCHK: add(t, ld(KLOAD, "KF"))
        PRE[t].append(lambda e=e: vm.need(f"H{e}"))
        if e == 1:
            add(4, kvp(2, 2), kvp(2, 3)); add(5, kvp(3, 0)); add(6, kvp(3, 1)); add(7, kvp(3, 2), kvp(3, 3))
        elif e + 2 < 16:
            for pc in range(4): add(t + pc, kvp(e + 2, pc))
    def dma(tag, unit, so, areg, i, base):
        def f():
            P(f"s_add_u32 m0, {base}, {U[unit]}"); P(f"s_mov_b32 s3, {so}")
            vm.issue(f"buffer_load_dwordx4 v{areg+i}, s[44:47], s3 offen offset:{1024*i} lds", tag)
        return f
    assert min(sch["wd"][:4]) >= 2
    for n, t in enumerate(sch["wd"]): add(t, dma("WD", 3 + n // 4, (n // 4) * 512, WD, n % 4, "s57"))
    def cw():
        P(f"s_lshl_b32 {S_CR}, {S_XCD}, 2"); P(f"s_and_b32 s3, {S_J}, 3"); P(f"s_add_u32 {S_CR}, {S_CR}, s3"); P(f"s_lshl_b32 {S_CR}, {S_CR}, 5")
        P(f"s_andn2_b32 s3, {S_J}, 3"); P(f"s_add_u32 {S_CR}, {S_CR}, s3"); P(f"s_add_u32 {S_CR}, {S_CR}, {S_WL}")
        P("s_lshl_b32 s3, s2, 3"); P(f"s_add_u32 s3, s3, {S_W}"); P("s_cmp_eq_u32 s3, 4")
        P(f"s_cselect_b32 {S_CR}, 0x400, {S_CR}"); P(f"s_cselect_b32 s100, 0, {S_W}")
        P(f"s_lshl_b32 s3, {S_CR}, 12")
        P("s_cmp_lt_u32 s100, 4")
        P(f"s_cselect_b32 s48, s{P_WSR}, s{P_WSI}"); P(f"s_cselect_b32 s49, s{P_WSR+1}, s{P_WSI+1}"); P(f"s_mov_b32 s50, {8*MB}")
        P(f"s_cselect_b32 {S_CR}, {S_CR}, 0x10000")
        vm.issue(f"buffer_load_dwordx4 {vr(CW,4)}, v1, s[48:51], s3 offen", "CW"); vm.issue(f"buffer_load_dwordx4 {vr(CW+4,4)}, v1, s[48:51], s3 offen offset:1024", "CW")
    add(sch["cw"], cw)
    def nonce_v():
        P("v_mov_b32 v6, s32"); P("v_mov_b32 v7, s33"); P(f"v_mov_b32 v{XSA}, 0")
    def check(tag, name, load, v=FV):
        def f():
            vm.need(tag)
            flags_ok(P, v)()
            P(f"s_cbranch_scc0 {name}_O")
            P.label(name + "_B")
            def o():
                P.label(name + "_O")
                spin(P, load, flags_ok(P, v))
                P(f"s_branch {name}_B")
            ool.append(o)
        return f
    add(max(sch["wd"]) + 2, *g2_dma(P))
    XF, GF, GA, GI, GC = 128, [192, 200, 208], 216, 224, 228
    def x512():
        P(f"v_and_b32 v{F1A}, 48, v0"); P("s_lshl_b32 s3, s55, 6"); P("s_lshl_b32 s56, s65, 12"); P("s_add_u32 s3, s3, s56"); P(f"s_add_u32 s3, s3, {SM_X512}")
        vm.issue(f"buffer_load_dwordx4 {vr(GC,4)}, v{F1A}, {RWS}, s3 offen sc1", "X512")
    if opt.get("fflag", -1) < 0:
        def f1flag():
            nonce_v()
            P("s_lshl_b32 s3, s61, 3"); P(f"s_add_u32 s3, s3, {FL1}"); P(f"s_cmp_lt_u32 {S_W}, 4"); P(f"s_cselect_b32 s3, {OOB}, s3")
            vm.issue(f"buffer_store_dwordx2 v[6:7], v{XSA}, {RWS}, s3 offen sc1", "F1")
        X[0].insert(0, f1flag)
    FLOAD = f"buffer_load_dwordx2 {vr(CV,2)}, v{F1A}, {RWS}, 0 offen sc1"
    def fpoll():
        P(f"v_and_b32 v{F1A}, 15, v0"); P(f"v_lshlrev_b32 v{F1A}, 3, v{F1A}"); P("s_lshl_b32 s3, s55, 7"); P(f"s_add_u32 s3, s3, {FL1}"); P(f"v_add_u32 v{F1A}, s3, v{F1A}")
        vm.issue(FLOAD, "F")
    add(sch["f1p"], fpoll)
    def xbase():
        P("s_lshl_b32 s56, s55, 14"); P("s_lshl_b32 s3, s65, 2"); P("s_add_u32 s56, s56, s3"); P(f"s_add_u32 s56, s56, {WS_XE}")
    add(sch["x"], check("F", "CK1", FLOAD, CV), x512, xbase)
    xr = sch["xr"]
    def xld(k):
        def f():
            if k % 4 == 0 and k: P("s_add_u32 s56, s56, 4096")
            vm.issue(f"buffer_load_dwordx4 {vr(XF+4*k,4)}, v1, {RWS}, s56 offen offset:{1024*(k%4)} sc1", f"X{k}")
        return f
    for k in range(16): add(sch["x"] + (k + 1) // xr, xld(k))
    def g1rd(k):
        def f():
            g = GF[k % 3]; o = (k >> 3) * 32768 + ((k >> 2) & 1) * 8192
            lg.issue(f"ds_read_b128 {vr(g,4)}, v{GAD+(k&3)} offset:{o}", f"G{k}a"); lg.issue(f"ds_read_b128 {vr(g+4,4)}, v{GAD+(k&3)} offset:{o+4096}", f"G{k}b")
        return f
    def g1mm(k):
        def f():
            g = GF[k % 3]
            vm.need(f"X{k}")
            for half in range(2):
                lg.need(f"G{k}" + "ab"[half])
                a = GA + 4 * half
                P(f"{M16} {vr(a,4)}, {vr(XF+4*k,4)}, {vr(g+4*half,4)}, {vr(a,4) if k else vr(GI,4)}")
            if k + 2 < 16: g1rd(k + 2)()
        return f
    def ginit():
        vm.need("X512")
        P(f"v_lshlrev_b32 v{F1A}, 31, v0")
        for i in range(4): P(f"v_xor_b32 v{GI+i}, v{F1A}, v{GC+i}")
    t0 = sch["g1"]
    PRE[bar_upto(t0 - 1)].append(lambda: vm.need("WD"))
    assert bar_upto(t0 - 1) > max(sch["wd"])
    add(t0 - 1, g1rd(0), g1rd(1)); add(t0, ginit)
    for k in range(16): add(t0 + (k + 1) // xr, g1mm(k))
    t1 = t0 + 16 // xr + 1
    def cchain():
        P("s_or_b32 s56, s54, s65"); P("s_cmp_lg_u32 s56, 0"); P("s_cbranch_scc1 C_NOC")
        for i in range(4): P(f"v_mov_b32 v{GF[0]+i}, 0xbf803f80")
        for k in range(16): P(f"{M16} {vr(GC,4)}, {vr(XF+4*k,4)}, {vr(GF[0],4)}, {vr(GC,4)}")
        P(f"v_cvt_pk_bf16_f32 v{GC}, v{GC}, v{GC+1}"); P(f"v_cvt_pk_bf16_f32 v{GC+1}, v{GC+2}, v{GC+3}")
        P.label("C_NOC")
        P(f"v_lshrrev_b32 v{F1A}, 4, v0"); P(f"v_lshlrev_b32 v{F1A}, 3, v{F1A}")
        P("s_lshl_b32 s3, s55, 5"); P(f"s_add_u32 s3, s3, {SM_C}"); P("s_cmp_eq_u32 s56, 0"); P(f"s_cselect_b32 s3, s3, {OOB}")
        vm.issue(f"buffer_store_dwordx2 {vr(GC,2)}, v{F1A}, {RWS}, s3 offen sc1", "TS")
    def tstore():
        for i in range(4): P(f"v_cvt_pk_bf16_f32 v{GI+i}, v{GA+2*i}, v{GA+2*i+1}")
        P(f"v_permlane16_swap_b32 v{GI}, v{GI+2}"); P(f"v_permlane16_swap_b32 v{GI+1}, v{GI+3}")
        P("s_lshr_b32 s61, s65, 14"); P("s_add_u32 s61, s61, s54"); P("s_lshl_b32 s61, s61, 6"); P("s_add_u32 s61, s61, s55")
        P("s_lshl_b32 s3, s61, 10"); P(f"s_add_u32 s3, s3, {WS_TE}")
        vm.issue(f"buffer_store_dwordx4 {vr(GI,4)}, v1, {RWS}, s3 offen sc1", "TS")
        P("s_lshl_b32 s61, s61, 3"); P(f"s_add_u32 s61, s61, {FL3}")
    add(t1, tstore, cchain)
    assert 4 * NCHK <= t1 and sch["f3"] > t1 and sch["tp"] > t1 + 1 and bar_upto(sch["ws"][0]) >= t1
    add(t1 + 1, *g2_ids(P))
    def f3flag():
        nonce_v()
        vm.need("TS")
        vm.issue(f"buffer_store_dwordx2 v[6:7], v{XSA}, {RWS}, s61 offen sc1", "F3")
    X[sch["f3"]].insert(0, f3flag)
    for r in range(4):
        for n in range(4): add(sch["ws"][r] + n // 2, dma(f"WS{r}", 3 + (r & 1), r * 256, WD, n, "s59"))
    def pa1():
        P("s_lshl_b32 s63, s54, 1"); P("s_add_u32 s63, s63, s56")
        P("s_lshl_b32 s3, s63, 3"); P("v_xor_b32 v6, s3, v0")
        P("v_lshrrev_b32 v7, 5, v6"); P(f"v_and_b32 v{PA}, 15, v6"); P(f"v_xor_b32 v7, v7, v{PA}"); P("v_lshlrev_b32 v7, 4, v7"); P("v_and_b32 v6, 31, v6")
        P(f"v_lshl_add_u32 v{PA}, v6, 8, v7"); P("s_lshl_b32 s3, s63, 13"); P(f"s_add_u32 s3, s3, {U[3]}"); P(f"v_add_u32 v{PA}, s3, v{PA}")
    def pa2():
        for k in range(1, 8): P(f"v_xor_b32 v{PA+k}, {k<<5}, v{PA}")
    def ra():
        P("s_or_b32 s53, s57, s54")
        P("v_and_b32 v6, 31, v0"); P("v_cmp_eq_u32 vcc, 0, v6"); P("v_cmp_eq_u32 s[100:101], 17, v6"); P("s_or_b64 vcc, vcc, s[100:101]")
        P("v_mov_b32 v7, 0xbf803f80")
        for i in range(4): P(f"v_cndmask_b32 v{RA+i}, 0, v7, vcc")
    add(sch["f3"] + 1, pa1); add(sch["f3"] + 2, pa2); add(sch["f3"] + 3, ra)
    CLOAD = f"buffer_load_dwordx2 {vr(CV,2)}, v{F1A}, {RWS}, 0 offen sc1"
    def cpoll():
        P(f"v_lshlrev_b32 v{F1A}, 3, v0"); P(f"v_add_u32 v{F1A}, {FL3}, v{F1A}")
        vm.issue(CLOAD, "CF")
    add(sch["tp"], ld(KLOAD, "TF")); add(sch["cc"] - 3, cpoll)
    add(sch["t"], check("TF", "CK2", KLOAD))
    def tld(i):
        def f():
            if i % 4 == 0 and i: P("s_add_u32 s60, s60, 4096")
            vm.issue(f"buffer_load_dwordx4 {vr(TR+4*(i&15),4)}, v1, {RWS}, s60 offen offset:{1024*(i%4)} sc1", f"T{i}")
        return f
    for i, t in enumerate(sch["tt"]):
        assert t >= sch["t"] and (i < 16 or t >= sch["g2"][(i - 16) // 8] + 4)
        add(t, tld(i))
    def cc():
        P(f"s_mov_b32 s3, {SM_C}")
        vm.issue(f"buffer_load_dwordx4 {vr(CC,4)}, v1, {RWS}, s3 offen sc1", "CC"); vm.issue(f"buffer_load_dwordx4 {vr(CC+4,4)}, v1, {RWS}, s3 offen offset:1024 sc1", "CC")
        P(f"s_mov_b32 s3, {SM_G+2048}")
        vm.issue(f"buffer_load_dword v{G5}, v{XSA}, {RWS}, s3 offen sc1", "CC")
    def ge():
        P("s_lshl_b32 s3, s58, 7"); P(f"s_add_u32 s3, s3, {SM_G}")
        P(f"v_and_b32 v{F1A}, 31, v0"); P(f"v_lshlrev_b32 v{F1A}, 2, v{F1A}")
        vm.issue(f"buffer_load_dword v{RW}, v{F1A}, {RWS}, s3 offen sc1", "GE")
    add(sch["cc"], check("CF", "CK3", CLOAD, CV), cc, ge)
    def wot():
        op_ids(P)
        P(f"s_mov_b32 s48, s{P_WO}"); P(f"s_mov_b32 s49, s{P_WO+1}"); P(f"s_mov_b32 s50, {2*MB}")
        P(f"s_lshr_b32 s3, {S_J}, 3"); P("s_lshl_b32 s3, s3, 3"); P(f"s_add_u32 s3, s3, {S_W}"); P("s_lshl_b32 s3, s3, 16"); P("s_lshl_b32 s100, s62, 7"); P("s_add_u32 s3, s3, s100")
        P(f"v_lshlrev_b32 v6, 9, v{F1A}")
        if not opt.get("nowot"): vm.issue("buffer_load_dword v126, v6, s[48:51], s3 offen", "WT")
    assert sch["wot"] >= sch["cc"] and sch["cj"] > sch["wot"]
    add(sch["wot"], wot)
    def cjob():
        vm.need("CC", "CW")
        P(f"s_cmp_eq_u32 {S_CR}, 0x10000"); P("s_cbranch_scc1 CJ0")
        P(f"s_lshl_b32 s3, {S_CR}, 31"); P(f"v_xor_b32 v{G5}, s3, v{G5}")
        P(f"v_mov_b32 v{CV}, 0")
        for r in range(8): P(f"v_dot2_f32_bf16 v{CV}, v{CW+r}, v{CC+r}, v{CV}")
        dpp_sum(P, CV)
        P(f"v_add_f32 v{CV}, v{CV}, v{G5}"); P(f"v_cvt_pk_bf16_f32 v{CV}, v{CV}, v{CV}")
        P.label("CJ0")
        P(f"v_mov_b32 v{CV+1}, {OOB}"); P("v_cmp_eq_u32 vcc, 63, v0"); P(f"v_cndmask_b32 v{CV+1}, v{CV+1}, 0, vcc")
        P(f"s_mov_b32 s48, s{P_OUT}"); P(f"s_mov_b32 s49, s{P_OUT+1}"); P(f"s_mov_b32 s50, {8*MB}")
        P(f"s_lshl_b32 s3, {S_CR}, 12"); P("s_add_u32 s100, s3, 1024"); P(f"s_sub_u32 s3, {8*MB+1024}, s3")
        vm.issue(f"buffer_store_short v{CV}, v{CV+1}, s[48:51], s100 offen", "CS"); vm.issue(f"buffer_store_short v{CV}, v{CV+1}, s[48:51], s3 offen", "CS")
    add(sch["cj"], cjob)
    def rd(i):
        def f():
            r, k = i >> 3, i & 7
            lg.issue(f"ds_read_b128 {vr(AF+4*(i%3),4)}, v{PA+k} offset:{32768*(r&1)}", f"A{i}")
        return f
    def g2mm(i):
        def f():
            lg.need(f"A{i}"); vm.need(f"T{i}")
            P(f"{M32} {vr(AC,16)}, {vr(AF+4*(i%3),4)}, {vr(TR+4*(i&15),4)}, {vr(AC,16) if i else 0}")
            if (i & 7) < 6: rd(i + 2)()
        return f
    def rowjob(r):
        def f():
            P("s_cmp_lg_u32 s53, 0"); P(f"s_cbranch_scc1 G2_NR{r}")
            for j in range(8): P(f"{M16} {vr(RD,4)}, {vr(RA,4)}, {vr(TR+4*((8*r+j)&15),4)}, {vr(RD,4) if (r or j) else 0}")
            P.label(f"G2_NR{r}")
        return f
    for r, tb in enumerate(sch["g2"]):
        assert tb % 4 == 0 and tb > sch["ws"][r] + 1 and (r < 2 or sch["ws"][r] >= sch["g2"][r - 2] + 4)
        PRE[tb].append(lambda r=r: vm.need(f"WS{r}"))
        X[tb] = [rd(8 * r), rd(8 * r + 1)] + X[tb]
        for k in range(8): add(tb + k // 2, g2mm(8 * r + k))
        add(tb + 3, rowjob(r))
    def wo_setup():
        srd(P, 44, P_WO, 2 * MB)
        P("v_lshrrev_b32 v6, 3, v0"); P("v_and_b32 v7, 7, v0"); P(f"v_bfe_u32 v{DO}, v0, 4, 1"); P(f"v_lshlrev_b32 v{DO}, 2, v{DO}"); P(f"v_xor_b32 v7, v7, v{DO}")
        P("v_lshlrev_b32 v7, 4, v7"); P("v_lshl_add_u32 v7, v6, 11, v7")
        P("s_lshl_b32 s3, s54, 20"); P(f"s_lshl_b32 s59, {S_WL}, 16"); P("s_add_u32 s3, s3, s59"); P("s_lshl_b32 s59, s62, 7"); P("s_add_u32 s3, s3, s59")
        P(f"v_add_u32 v{DO}, s3, v7")
        P(f"s_lshl_b32 s59, {S_W}, 12")
    def wo_setup2():
        for n in range(1, 4): P(f"v_add_u32 v{DO+n}, {n*(16384-1024)}, v{DO}")
    def wo_setup3():
        P("s_lshl_b32 s61, s61, 2"); P(f"s_add_u32 s61, s61, {S_WL}")
        P("s_lshl_b32 s3, s61, 1"); P("s_add_u32 s3, s3, s54"); P("s_lshl_b32 s60, s3, 15"); P(f"s_add_u32 s60, s60, {WS_OF}"); P("s_lshl_b32 s3, s3, 7"); P(f"s_add_u32 s3, s3, {FL4}")
        P(f"v_and_b32 v{FA}, 15, v0"); P(f"v_lshlrev_b32 v{FA}, 3, v{FA}"); P(f"v_add_u32 v{FA}, s3, v{FA}")
    tw = sch["ws"][3] + 2
    assert tw > sch["wot"] and tw + 1 < sch["wo"][0] and sch["wo"][0] >= sch["g2"][2] + 4 and sch["wo"][1] >= sch["g2"][3] + 4 and sch["wo"][2] >= 56 and sch["wo"][3] >= 60
    add(tw, wo_setup); add(tw + 1, wo_setup2); add(max(sch["tt"]) + 1, wo_setup3)
    for o in range(4):
        for n in range(4): add(sch["wo"][o] + n // 2, dma(f"WO{o}", WOU[o], o * 0x40000, DO, n, "s59"))

    order = opt.get("order", "ee P eee L ee M eee N ee p eee l e").replace(" ", "")
    for t in range(64):
        vm.now = t
        S, Tn = (SA, SB) if t % 2 == 0 else (SB, SA)
        ex = list(X[t])
        evt = (t % 4 == 0 and t) or t == 2
        first = order[:order.index("P")].count("e") if evt else 0
        nsl = 16 - first
        pos = {}
        for n, f in enumerate(ex): pos.setdefault(first + (n * nsl) // max(len(ex), 1), []).append(f)
        e = 0
        for ch in order:
            if ch == "e":
                P(f"v_exp_f32 v{S+e}, v{S+e}")
                for f in pos.get(e, []): f()
                e += 1
            elif ch == "P":
                if t:
                    lg.need("V1")
                    P(f"v_smfmac_f32_32x32x32_bf16 {vr(O,16)}, {vr(V+4,4)}, {vr(Tn+8,8)}, v5")
                if evt:
                    for f in PRE[t]: f()
                    lg.drain()
                    if not opt.get("nobar"): P("s_barrier")
                else: assert not PRE[t]
                lg.issue(f"ds_read_b128 {vr(V+4,4)}, {at(t,3072)}", "V1")
            elif ch == "L":
                if t: P(f"v_smfmac_f32_16x16x64_bf16 {vr(LS,4)}, {vr(ONES,4)}, {vr(Tn+8,8)}, v5")
            elif ch == "M":
                if t < 63:
                    lg.need("K0")
                    P(f"{M32} {vr(Tn,16)}, {vr(K,4)}, {vr(Q,4)}, {vr(C,16)}")
                if t < 62: lg.issue(f"ds_read_b128 {vr(K,4)}, {at(t+2,0)}", "K0")
            elif ch == "N":
                if t < 63:
                    lg.need("K1")
                    P(f"{M32} {vr(Tn,16)}, {vr(K+4,4)}, {vr(Q+4,4)}, {vr(Tn,16)}")
                if t < 62: lg.issue(f"ds_read_b128 {vr(K+4,4)}, {at(t+2,1024)}", "K1")
            elif ch == "p":
                lg.need("V0")
                P(f"v_smfmac_f32_32x32x32_bf16 {vr(O,16)}, {vr(V,4)}, {vr(S,8)}, v5")
                if t < 63: lg.issue(f"ds_read_b128 {vr(V,4)}, {at(t+1,2048)}", "V0")
            elif ch == "l":
                P(f"v_smfmac_f32_16x16x64_bf16 {vr(LS,4)}, {vr(ONES,4)}, {vr(S,8)}, v5")
        if opt.get("tsa") and t in (15, 31, 47): P(f"; TS {20 + t // 16}")
        if "tse" in opt and t in opt["tse"]: P(f"; TSE {opt['tse'].index(t)}")
    vm.now = 64
    def kvspin():
        P.label("KVSPIN")
        P("s_waitcnt vmcnt(0)")
        spin(P, KLOAD, kv_ok("s62"))
        P(f"s_setpc_b64 {LINK}")
    ool.append(kvspin)
    lg.need("V1")
    P(f"v_smfmac_f32_32x32x32_bf16 {vr(O,16)}, {vr(V+4,4)}, {vr(SB+8,8)}, v5")
    P(f"v_smfmac_f32_16x16x64_bf16 {vr(LS,4)}, {vr(ONES,4)}, {vr(SB+8,8)}, v5")
    lg.drain()
    P("; TS 12")
    for q in range(1, 4):
        P(f"s_xor_b32 s3, {S_W}, {(q & 1) | ((q >> 1) << 2)}"); P("s_lshl_b32 s3, s3, 12"); P(f"v_add_u32 v{AF+q}, s3, v1")
    P(f"v_add_f32 v6, |v{O}|, |v{O+1}|"); P(f"v_add_f32 v7, |v{O+2}|, |v{O+3}|")
    for i in range(4, 16, 2):
        P(f"v_add_f32 v6, v6, |v{O+i}|"); P(f"v_add_f32 v7, v7, |v{O+i+1}|")
    P("v_add_f32 v6, v6, v7")
    P(f"s_mov_b32 s3, {f32hex(2.0**-104)}"); P(f"s_mov_b32 s52, {f32hex(2.0**120)}")
    P("v_cmp_lt_f32 s[96:97], s3, v6"); P("v_cmp_gt_f32 s[100:101], s52, v6"); P(f"v_cmp_gt_f32 vcc, s52, v{LS}")
    P("s_and_b64 s[96:97], s[96:97], s[100:101]"); P("s_and_b64 s[96:97], s[96:97], vcc")
    if opt.get("force_slow"): P("s_mov_b64 s[96:97], 0")
    P("s_cmp_eq_u64 s[96:97], -1")
    P("s_cbranch_scc0 AT_SLOW")
    def slow():
        P.label("AT_SLOW")
        P("v_mov_b32 v6, 0xff800000"); P("s_mov_b32 s3, s65"); P("s_add_u32 s52, s65, 0x40000")
        P.label("AT_MP")
        P(f"buffer_load_dwordx4 {vr(K,4)}, v1, s[40:43], s3 offen sc1"); P(f"buffer_load_dwordx4 {vr(K+4,4)}, v1, s[40:43], s3 offen offset:1024 sc1")
        P("s_waitcnt vmcnt(0)")
        P(f"{M32} {vr(SA,16)}, {vr(K,4)}, {vr(Q,4)}, 0"); P(f"{M32} {vr(SA,16)}, {vr(K+4,4)}, {vr(Q+4,4)}, {vr(SA,16)}")
        for i in range(8): P(f"v_max3_f32 v6, v6, v{SA+2*i}, v{SA+2*i+1}")
        P("s_add_u32 s3, s3, 4096"); P("s_cmp_lg_u32 s3, s52"); P("s_cbranch_scc1 AT_MP")
        P("v_mov_b32 v7, v6"); P("v_permlane32_swap_b32 v6, v7"); P("v_max_f32 v6, v6, v7")
        for i in range(16): P(f"v_sub_f32 v{C+i}, 0, v6")
        for i in range(16): P(f"v_mov_b32 v{O+i}, 0")
        for i in range(4): P(f"v_mov_b32 v{LS+i}, 0")
        P("s_mov_b32 s3, s65")
        P.label("AT_SL")
        for i, r in enumerate((K, K + 4, V, V + 4)): P(f"buffer_load_dwordx4 {vr(r,4)}, v1, s[40:43], s3 offen offset:{1024*i} sc1")
        P("s_waitcnt vmcnt(0)")
        P(f"{M32} {vr(SA,16)}, {vr(K,4)}, {vr(Q,4)}, {vr(C,16)}"); P(f"{M32} {vr(SA,16)}, {vr(K+4,4)}, {vr(Q+4,4)}, {vr(SA,16)}")
        for i in range(16): P(f"v_exp_f32 v{SA+i}, v{SA+i}")
        P(f"v_smfmac_f32_32x32x32_bf16 {vr(O,16)}, {vr(V,4)}, {vr(SA,8)}, v5"); P(f"v_smfmac_f32_16x16x64_bf16 {vr(LS,4)}, {vr(ONES,4)}, {vr(SA,8)}, v5")
        P(f"v_smfmac_f32_32x32x32_bf16 {vr(O,16)}, {vr(V+4,4)}, {vr(SA+8,8)}, v5"); P(f"v_smfmac_f32_16x16x64_bf16 {vr(LS,4)}, {vr(ONES,4)}, {vr(SA+8,8)}, v5")
        P("s_nop 15")
        P("s_add_u32 s3, s3, 4096"); P("s_cmp_lg_u32 s3, s52"); P("s_cbranch_scc1 AT_SL")
        P("s_branch AT_FIN")
    ool.append(slow)
    P.label("AT_FIN")
    P(f"v_rcp_f32 v6, v{LS}")
    P("s_lshl_b32 s3, s64, 11"); P(f"s_add_u32 s3, s3, {WS_OF}")
    for h in range(2):
        for i in range(8 * h, 8 * h + 8): P(f"v_mul_f32 v{O+i}, v6, v{O+i}")
        for i in range(4 * h, 4 * h + 4): P(f"v_cvt_pk_bf16_f32 v{SB+8+i}, v{O+2*i}, v{O+2*i+1}")
        vm.issue(f"buffer_store_dwordx4 {vr(SB+8+4*h,4)}, v1, {RWS}, s3 offen offset:{1024*h} sc1", "OS")
    P("s_lshl_b32 s64, s64, 3"); P(f"s_add_u32 s64, s64, {FL4}")
    return vm, ool

def tail(P, opt, vm, ool):
    lg = LG(P)
    A0, A1 = 32, 48
    def OFr(i): return (128 + 4 * i) if i < 16 else (64 + 4 * (i - 16)) if i < 24 else 128 + 4 * (i - 24)
    P("; TS 13")
    P("s_barrier")
    for q in range(1, 4): lg.issue(f"ds_write_b128 v{AF+q}, {vr(AC+4*q,4)} offset:{(q-1)*1024}", "XW")
    P(f"s_andn2_b32 s3, {S_W}, 1"); P("s_lshl_b32 s3, s3, 12"); P("s_lshl_b32 s52, s56, 7"); P("s_add_u32 s3, s3, s52"); P("s_add_u32 s3, s3, 3072")
    P("v_lshlrev_b32 v6, 2, v0"); P("v_add_u32 v7, 0x200, v6"); P("v_cmp_gt_u32 vcc, 16, v0"); P("v_cndmask_b32 v6, v7, v6, vcc"); P("v_add_u32 v6, s3, v6")
    lg.issue(f"ds_write2_b32 v6, v{RD}, v{RD+1} offset0:0 offset1:16", "XW")
    P(f"v_add_u32 v{AF}, s59, v1")
    P("v_lshrrev_b32 v2, 5, v0"); P("v_bfe_u32 v3, v0, 2, 2"); P("v_lshl_add_u32 v2, v2, 2, v3"); P("v_lshlrev_b32 v2, 7, v2")
    P("v_bfe_u32 v3, v0, 3, 1"); P("v_xor_b32 v3, s54, v3"); P("v_lshl_add_u32 v2, v3, 6, v2")
    P("v_bfe_u32 v3, v0, 4, 1"); P("v_lshl_add_u32 v2, v3, 5, v2")
    P("v_and_b32 v3, 3, v0"); P("v_lshl_add_u32 v2, v3, 3, v2")
    P("s_lshl_b32 s3, s54, 14"); P(f"s_add_u32 s3, s3, {U[1]}"); P("v_add_u32 v2, s3, v2"); P("v_xor_b32 v3, 64, v2")
    P(f"v_add_u32 v4, {U[2]}, v2"); P(f"v_add_u32 v5, {U[2]}, v3")
    vm.need("WO3")
    lg.drain()
    P("s_barrier")
    for q in range(3): lg.issue(f"ds_read_b128 {vr(AC+4+4*q,4)}, v{AF} offset:{1024*q}", "XR")
    P(f"v_add_u32 v6, s59, v{F1A}")
    lg.issue(f"ds_read_b32 v{RD}, v6 offset:3072", "XR"); lg.issue(f"ds_read_b32 v{RD+1}, v6 offset:3200", "XR")
    def ord_(i):
        o, k = i >> 3, i & 7
        f = QF[i % 3]; u = WOU[o]
        b = 2 if u < 3 else 4; off = ((u - 1) & 1) * 32768 + k * 2048
        return [(f"ds_read_b64_tr_b16 {vr(f,2)}, v{b} offset:{off}", f"F{i}a"), (f"ds_read_b64_tr_b16 {vr(f+2,2)}, v{b} offset:{off+1024}", f"F{i}a"),
                (f"ds_read_b64_tr_b16 {vr(f+4,2)}, v{b+1} offset:{off}", f"F{i}b"), (f"ds_read_b64_tr_b16 {vr(f+6,2)}, v{b+1} offset:{off+1024}", f"F{i}b")]
    for r in ord_(0) + ord_(1): lg.issue(*r)
    E0, CL, CM, RR, RM, SAD, OV = 212, 213, 214, 215, 216, 236, 220
    P(f"v_lshrrev_b32 v{E0}, 1, v{F1A}"); P("s_lshl_b32 s3, s58, 6"); P(f"v_add_u32 v{CL}, s3, v{E0}")
    P(f"v_sub_u32 v{CM}, 2048, v{CL}"); P(f"v_mov_b32 v6, {OOB}"); P(f"v_cmp_eq_u32 vcc, 0, v{CL}"); P(f"v_cndmask_b32 v{CM}, v{CM}, v6, vcc")
    P(f"v_lshrrev_b32 v{RR}, 5, v0"); P(f"v_lshlrev_b32 v{RR}, 14, v{RR}")
    P("s_lshl_b32 s3, s57, 17"); P("s_lshl_b32 s52, s63, 15"); P("s_add_u32 s3, s3, s52"); P(f"v_add_u32 v{RR}, s3, v{RR}")
    P(f"v_sub_u32 v{RM}, {8*MB}, v{RR}")
    P(f"v_add_u32 v{SAD}, v{RR}, v{CL}"); P(f"v_add_u32 v{SAD+1}, v{RM}, v{CM}"); P(f"v_add_u32 v{SAD+2}, v{RM}, v{CL}"); P(f"v_add_u32 v{SAD+3}, v{RR}, v{CM}")
    for r in range(1, 4):
        a = SAD + 4 * r
        P(f"v_add_u32 v{a}, {4096*r}, v{SAD}"); P(f"v_subrev_u32 v{a+1}, {4096*r}, v{SAD+1}"); P(f"v_subrev_u32 v{a+2}, {4096*r}, v{SAD+2}"); P(f"v_add_u32 v{a+3}, {4096*r}, v{SAD+3}")
    P("s_lshl_b32 s52, s54, 31")
    vm.need("GE")
    lg.need("XR")
    for r in range(4):
        P(f"v_add_f32 v{AC+r}, v{AC+r}, v{AC+4+r}")
        P(f"v_add_f32 v{AC+8+r}, v{AC+8+r}, v{AC+12+r}")
        P(f"v_sub_f32 v6, v{AC+r}, v{AC+8+r}")
        P(f"v_add_f32 v7, v{AC+r}, v{AC+8+r}")
        P("v_xor_b32 v6, s52, v6")
        op = "v_sub_f32" if r & 1 else "v_add_f32"
        P(f"{op} v6, v6, v{RW}"); P(f"{op} v7, v7, v{RW}")
        P(f"v_cvt_pk_bf16_f32 v{OV+r}, v6, v7")
    P(f"v_add_f32 v{RD}, v{RD}, v{RD+1}"); P(f"v_add_f32 v{RD}, v{RD}, v{RW}"); P(f"v_cvt_pk_bf16_f32 v{RD}, v{RD}, v{RD}")
    P("s_or_b32 s53, s53, s56"); P("s_cmp_eq_u32 s53, 0"); P(f"s_cselect_b32 s53, {4*MB}, {OOB}")
    P("v_mov_b32 v6, s32"); P("v_mov_b32 v7, s33")
    ST = []
    for r in range(4):
        a = SAD + 4 * r
        ST += [f"buffer_store_short v{OV+r}, v{a}, s[48:51], 0 offen", f"buffer_store_short v{OV+r}, v{a+1}, s[48:51], 0 offen",
               f"buffer_store_short_d16_hi v{OV+r}, v{a+2}, s[48:51], 0 offen", f"buffer_store_short_d16_hi v{OV+r}, v{a+3}, s[48:51], 0 offen"]
    ST += [f"buffer_store_short v{RD}, v{CL}, s[48:51], s53 offen", f"buffer_store_short v{RD}, v{CM}, s[48:51], s53 offen"]
    n0, n1 = opt.get("st", (0, 18))
    P("; TS 14")
    for s in ST[:n0]: vm.issue(s, "ST")
    vm.need("OS")
    vm.issue(f"buffer_store_dwordx2 v[6:7], v{XSA}, {RWS}, s64 offen sc1", "F4")
    P("; TS 15")
    for s in ST[n0:n1]: vm.issue(s, "ST")
    ST = ST[n1:]
    vm.issue(KLOAD, "OF")
    vm.need("OF")
    spin(P, KLOAD, flags_ok(P, FV))
    P("; TS 16")
    def old(i):
        if i % 4 == 0 and i: P("s_add_u32 s60, s60, 4096")
        vm.issue(f"buffer_load_dwordx4 {vr(OFr(i),4)}, v1, {RWS}, s60 offen offset:{1024*(i%4)} sc1", f"O{i}")
    LEAD = opt.get("lead", 10)
    for i in range(LEAD): old(i)
    P("; TS 17")
    for i in range(32):
        R = ord_(i + 2) if i + 2 < 32 else []
        f = QF[i % 3]
        for half in range(2):
            lg.need(f"F{i}" + "ab"[half])
            if half == 0: vm.need(f"O{i}")
            a = (A0, A1)[half]
            P(f"{M32} {vr(a,16)}, {vr(f+4*half,4)}, {vr(OFr(i),4)}, {vr(a,16) if i else 0}")
            for r in R[2 * half:2 * half + 2]: lg.issue(*r)
        if i + LEAD < 32: old(i + LEAD)
        elif ST:
            for s in ST[:2]: vm.issue(s, "ST")
            ST = ST[2:]
    for s in ST: vm.issue(s, "ST")
    P("; TS 18")
    P(f"v_xor_b32 v3, 0x4000, v{AF}")
    for g in range(4): lg.issue(f"ds_write_b128 v{AF}, {vr(A1+4*g,4)} offset:{1024*g}", "XW")
    P("v_and_b32 v4, 31, v0"); P("v_lshrrev_b32 v5, 5, v0"); P("v_lshlrev_b32 v5, 4, v5"); P("v_lshl_add_u32 v4, v4, 12, v5")
    P("s_lshl_b32 s3, s61, 17"); P("s_lshl_b32 s59, s62, 7"); P("s_add_u32 s3, s3, s59"); P("s_lshl_b32 s59, s54, 6"); P("s_add_u32 s3, s3, s59"); P("s_add_u32 s3, s3, 2048")
    lg.drain()
    P("s_barrier")
    for g in range(4): lg.issue(f"ds_read_b128 {vr(A1+4*g,4)}, v3 offset:{1024*g}", f"XR{g}")
    for g in range(4):
        lg.need(f"XR{g}")
        for i in range(4): P(f"v_add_f32 v{A0+4*g+i}, v{A0+4*g+i}, v{A1+4*g+i}")
        P(f"v_cvt_pk_bf16_f32 v{8+2*g}, v{A0+4*g}, v{A0+4*g+1}"); P(f"v_cvt_pk_bf16_f32 v{9+2*g}, v{A0+4*g+2}, v{A0+4*g+3}")
        if g & 1:
            t = 8 + 4 * (g >> 1)
            P(f"v_permlane32_swap_b32 v{t}, v{t+2}"); P(f"v_permlane32_swap_b32 v{t+1}, v{t+3}")
            P(f"buffer_store_dwordx4 {vr(t,4)}, v4, s[48:51], s3 offen offset:{32*(g>>1)}")
    if opt.get("vlog"):
        for now, tags, d in vm.log:
            print(f"  t{now} need {','.join(tags)}: " + " ".join(f"{g}@{t}" for g, t in d.items()))

def fused(opt):
    P = Prog()
    sk, sv = (0, 0)
    P("s_cmp_ge_u32 s2, 256"); P("s_cbranch_scc1 F_END")
    P("s_load_dwordx16 s[4:19], s[0:1], 0")
    P("s_load_dwordx4 s[20:23], s[0:1], 64")
    P("s_load_dwordx2 s[24:25], s[0:1], 80")
    if opt.get("cpf", 0):
        P("s_getpc_b64 s[40:41]"); P(f"s_mov_b32 s42, {opt['cpf']}"); P("s_mov_b32 s43, 0x00020000")
        P("s_lshl_b32 s3, s2, 4"); P("s_and_b32 s3, s3, 128")
        P("v_lshlrev_b32 v1, 8, v0")
        P("buffer_load_dword v24, v1, s[40:43], s3 offen")
    P("v_lshrrev_b32 v1, 6, v0"); P("v_and_b32 v0, 63, v0"); P(f"v_readfirstlane_b32 {S_W}, v1")
    P(f"s_and_b32 {S_XCD}, s2, 7"); P(f"s_lshr_b32 {S_J}, s2, 3")
    P(f"s_and_b32 s3, {S_XCD}, 1"); P(f"s_lshr_b32 s52, {S_J}, 2")
    P(f"s_lshl_b32 {S_RB}, s3, 3"); P(f"s_add_u32 {S_RB}, {S_RB}, s52")
    P(f"s_lshl_b32 {S_PRB}, s52, 1"); P(f"s_add_u32 {S_PRB}, {S_PRB}, s3")
    P(f"s_lshr_b32 {S_CB}, {S_XCD}, 1"); P(f"s_lshl_b32 {S_CB}, {S_CB}, 2"); P(f"s_and_b32 s3, {S_J}, 3"); P(f"s_add_u32 {S_CB}, {S_CB}, s3")
    P(f"s_add_u32 s52, {S_CB}, {sk}"); P("s_and_b32 s52, s52, 15")
    P(f"s_add_u32 s53, {S_CB}, {sv}"); P("s_and_b32 s53, s53, 15")
    P(f"s_and_b32 {S_WL}, {S_W}, 3")
    P(f"s_movk_i32 {S_TMO}, {opt.get('tmo', 20000)}")
    P(f"s_cmp_ge_u32 {S_W}, 4"); P("s_cbranch_scc1 F_L")
    phase1_C(P, opt)
    P.label("F_L")
    phase1_L(P, opt)
    vm, ool = attention(P, opt)
    tail(P, opt, vm, ool)
    P.label("F_END")
    P("s_endpgm")
    for o in ool: o()
    return P.L

def build(opt, verbose=False):
    head = []
    for line in open(REF):
        if line.startswith("; @launch"): break
        head.append(line.rstrip("\n"))
    L = fused(opt)
    if "tse" in opt:
        keep = opt.get("keep", [])
        L = [x.replace("; TSE", "; TS") for x in L if not (x.startswith("; TS ") and int(x.split()[2]) not in keep)]
    if opt.get("prof"): L = prof(L)
    out = head + ["; @launch grid=(256,1,1) block=(512,1,1) lds=163840", '.amdgcn_target "amdgcn-amd-amdhsa--gfx950"', ".text", khead(NAME)]
    rep = []
    out.append(fmt(pad(L, rep)))
    if verbose:
        print(len(L), "instr; nops:", sum(k for k, _ in rep))
        for k, s in rep: print("   ", k, s)
    out.append('.section .rodata,"a"')
    out.append(kdesc(NAME, 256, 102))
    return "\n".join(out) + "\n"

if __name__ == "__main__":
    import json
    opt = json.loads(sys.argv[2]) if len(sys.argv) > 2 else {}
    open(sys.argv[1], "w").write(build(opt, verbose=True))
```

```python
from common import *
import math, struct

def f32hex(x): return "0x%08x" % struct.unpack("<I", struct.pack("<f", x))[0]

def k1(opt):
    P = Prog()
    name = "k1_kernel"
    SLOT = 40960
    P("s_cmp_ge_u32 s2, 256")
    P("s_cbranch_scc1 K1_END")
    P("s_load_dwordx2 s[4:5], s[0:1], 40")
    P("s_load_dwordx2 s[6:7], s[0:1], 48")
    P("s_load_dwordx2 s[8:9], s[0:1], 80")
    P("s_load_dwordx2 s[10:11], s[0:1], 0")
    P("s_load_dwordx2 s[12:13], s[0:1], 24")
    P("v_lshrrev_b32 v1, 6, v0")
    P("v_and_b32 v0, 63, v0")
    P("v_readfirstlane_b32 s36, v1")
    P("s_and_b32 s37, s2, 7")
    P("s_lshr_b32 s38, s2, 3")
    P("s_and_b32 s39, s37, 1"); P("s_lshl_b32 s39, s39, 3"); P("s_and_b32 s46, s38, 7"); P("s_add_u32 s39, s39, s46")
    P("s_lshr_b32 s40, s37, 1"); P("s_lshl_b32 s40, s40, 2"); P("s_lshr_b32 s47, s38, 3"); P("s_add_u32 s40, s40, s47")
    sk, sv = opt.get("skew", (5, 10))
    P("s_mov_b32 s41, s40")
    P(f"s_add_u32 s42, s40, {sk}"); P("s_and_b32 s42, s42, 15")
    P(f"s_add_u32 s43, s40, {sv}"); P("s_and_b32 s43, s43, 15")
    P("s_cmp_ge_u32 s36, 4")
    P("s_cbranch_scc1 K1_LOADER")
    P("s_and_b32 s48, s36, 1"); P("s_lshr_b32 s49, s36, 1")
    ACC = [64 + 16 * i for i in range(6)]
    SET = [dict(X0=16, X1=20, WQ=24, WK=28, WV=32), dict(X0=36, X1=40, WQ=44, WK=48, WV=52)]
    XB = [2, 3, 4, 5]; WB = 6
    XA = [8, 9, 10, 11]; WA = 12
    P("v_and_b32 v1, 31, v0")
    P("v_lshrrev_b32 v7, 5, v0")
    P("v_bfe_u32 v13, v0, 1, 3")
    P("v_xor_b32 v7, v7, v13")
    P("v_lshlrev_b32 v7, 4, v7")
    P("v_lshl_add_u32 v7, v1, 7, v7")
    P("s_lshl_b32 s46, s48, 13")
    P(f"v_add_u32 v{XB[0]}, s46, v7")
    for ks in range(1, 4): P(f"v_xor_b32 v{XB[ks]}, {ks << 5}, v{XB[0]}")
    P("v_lshrrev_b32 v1, 5, v0")
    P("v_bfe_u32 v7, v0, 2, 2")
    P("v_lshl_add_u32 v1, v1, 3, v7")
    P("v_lshlrev_b32 v1, 7, v1")
    P("v_bfe_u32 v7, v0, 3, 1")
    P("v_xor_b32 v7, s49, v7")
    P("v_lshl_add_u32 v1, v7, 6, v1")
    P("v_bfe_u32 v7, v0, 4, 1")
    P("v_lshl_add_u32 v1, v7, 5, v1")
    P("v_and_b32 v7, 3, v0")
    P("v_lshl_add_u32 v1, v7, 3, v1")
    P(f"v_add_u32 v{WB}, 0x4000, v1")
    for a in ACC:
        for i in range(16): P(f"v_mov_b32 v{a+i}, 0")
    for i in range(4): P(f"v_mov_b32 v{XA[i]}, v{XB[i]}")
    P(f"v_mov_b32 v{WA}, v{WB}")
    P("s_mov_b32 s44, 0"); P("s_mov_b32 s45, 0")
    P("s_waitcnt lgkmcnt(0)")
    srd(P, 24, 8, WS_SIZE)
    pf = opt.get("pf", 0)
    if pf:
        srd(P, 16, 4, 4 * MB); srd(P, 20, 6, 6 * MB)
        P("s_and_b32 s50, s37, 1"); P("s_lshl_b32 s50, s50, 21"); P("s_lshr_b32 s51, s37, 1"); P("s_lshl_b32 s51, s51, 5"); P("s_add_u32 s51, s51, s38")
        P("s_lshl_b32 s52, s51, 14"); P("s_add_u32 s50, s50, s52"); P("s_lshl_b32 s52, s36, 12"); P("s_add_u32 s50, s50, s52")
        if pf & 1:
            P("v_lshlrev_b32 v1, 4, v0")
            for i in range(4): P(f"buffer_load_dwordx4 v[160:163], v1, s[16:19], s50 offen offset:{1024*i}")
        if pf & 4:
            P("v_lshlrev_b32 v1, 6, v0")
            P(f"buffer_load_dword v160, v1, s[16:19], s50 offen")
        if pf & 16:
            P("v_lshlrev_b32 v1, 7, v0")
            P("s_mov_b32 exec_hi, 0")
            P(f"buffer_load_dword v160, v1, s[16:19], s50 offen")
            P("s_mov_b32 exec_hi, -1")
        P("s_and_b32 s50, s37, 1"); P("s_lshl_b32 s50, s50, 5"); P("s_add_u32 s50, s50, s38"); P("s_lshl_b32 s50, s50, 4"); P("s_lshl_b32 s52, s36, 2"); P("s_add_u32 s50, s50, s52")
        P("s_mul_i32 s50, s50, 6144")
        P("s_lshr_b32 s51, s37, 1"); P("s_lshl_b32 s51, s51, 9")
        if pf & 2:
            P("v_and_b32 v1, 31, v0"); P("v_lshlrev_b32 v1, 4, v1"); P("v_add_u32 v1, s51, v1")
            P("v_lshrrev_b32 v7, 5, v0"); P("v_mul_u32_u24 v7, 0x1800, v7")
            for t, skw in enumerate((0, sk, sv)):
                P(f"v_add_u32 v13, {skw*128}, v1"); P("v_and_b32 v13, 0x7ff, v13"); P("v_add_u32 v13, v13, v7")
                P(f"s_add_u32 s52, s50, {t*2048}"); P(f"s_add_u32 s53, s50, {t*2048+12288}")
                P(f"buffer_load_dwordx4 v[160:163], v13, s[20:23], s52 offen")
                P(f"buffer_load_dwordx4 v[160:163], v13, s[20:23], s53 offen")
        if pf & 8:
            P("v_and_b32 v1, 7, v0"); P("v_lshlrev_b32 v1, 6, v1"); P("v_add_u32 v1, s51, v1")
            P("v_bfe_u32 v7, v0, 3, 2"); P("v_mul_u32_u24 v7, 0x1800, v7")
            P("s_mov_b32 exec_hi, 0")
            for t, skw in enumerate((0, sk, sv)):
                P(f"v_add_u32 v13, {skw*128}, v1"); P("v_and_b32 v13, 0x7ff, v13"); P("v_add_u32 v13, v13, v7")
                P(f"s_add_u32 s52, s50, {t*2048}")
                P(f"buffer_load_dword v160, v13, s[20:23], s52 offen")
            P("s_mov_b32 exec_hi, -1")
    if opt.get("prio", 1): P("s_setprio 2")
    P("; TS 0")
    P("s_barrier")
    P("; TS 1")
    lg = LG(P)
    def reads(S, ks):
        s = SET[S]
        return [
            (f"ds_read_b128 {vr(s['X0'],4)}, v{XA[ks]}", f"X0{S}"),
            (f"ds_read_b64_tr_b16 {vr(s['WQ'],2)}, v{WA} offset:{ks*2048}", f"WQ{S}"),
            (f"ds_read_b64_tr_b16 {vr(s['WQ']+2,2)}, v{WA} offset:{ks*2048+512}", f"WQ{S}"),
            (f"ds_read_b128 {vr(s['X1'],4)}, v{XA[ks]} offset:4096", f"X1{S}"),
            (f"ds_read_b64_tr_b16 {vr(s['WK'],2)}, v{WA} offset:{8192+ks*2048}", f"WK{S}"),
            (f"ds_read_b64_tr_b16 {vr(s['WK']+2,2)}, v{WA} offset:{8192+ks*2048+512}", f"WK{S}"),
            (f"ds_read_b64_tr_b16 {vr(s['WV'],2)}, v{WA} offset:{16384+ks*2048}", f"WV{S}"),
            (f"ds_read_b64_tr_b16 {vr(s['WV']+2,2)}, v{WA} offset:{16384+ks*2048+512}", f"WV{S}"),
        ]
    KVO = opt.get("kvonly", 0)
    if KVO:
        reads0 = reads
        def reads(S, ks):
            r = reads0(S, ks)
            return [r[0], r[4], r[5], r[3], r[6], r[7], None, None]
        class LGX(LG):
            def issue(self, t, g=None):
                if t is not None: LG.issue(self, t, g)
    def mf(S, i):
        if KVO and i < 2: return
        s = SET[S]; a = ACC[i]
        x = "X0" if i % 2 == 0 else "X1"
        w = ("WQ", "WK", "WV")[i // 2]
        lg.need(f"{x}{S}", f"{w}{S}")
        A, B = (s[w], s[x]) if i < 4 else (s[x], s[w])
        P(f"v_mfma_f32_32x32x16_bf16 {vr(a,16)}, {vr(A,4)}, {vr(B,4)}, {vr(a,16)}")
    def iss(R):
        for x in R:
            if x is not None: lg.issue(*x)
    iss(reads(0, 0))
    q0 = list(lg.q)
    P.label("K1_LOOP")
    for ks in range(4):
        S = ks & 1
        if ks < 3:
            R = reads(1 - S, ks + 1)
            for i in range(6):
                mf(S, i)
                if KVO:
                    if i >= 2: iss(R[2 * (i - 2):2 * (i - 2) + 2])
                elif i < 4: iss(R[2 * i:2 * i + 2])
        else:
            mf(S, 2 if KVO else 0)
            P("s_add_u32 s44, s44, 1")
            P(f"s_add_u32 s45, s45, {SLOT}")
            P("s_and_b32 s46, s44, 3")
            P("s_cselect_b32 s45, s45, 0")
            for i in range(4): P(f"v_add_u32 v{XA[i]}, s45, v{XB[i]}")
            P(f"v_add_u32 v{WA}, s45, v{WB}")
            if not KVO: mf(S, 1)
            lg.drain()
            P("s_cmp_eq_u32 s44, 16")
            P("s_cbranch_scc1 K1_NOBAR")
            P("s_barrier")
            P.label("K1_NOBAR")
            R = reads(0, 0)
            for i in range(2, 6):
                if KVO:
                    if i >= 3: iss(R[2 * (i - 3):2 * (i - 3) + 2]); mf(S, i)
                else:
                    iss(R[2 * (i - 2):2 * (i - 2) + 2]); mf(S, i)
    assert lg.q == q0, (lg.q, q0)
    P("s_cmp_lg_u32 s44, 16")
    P("s_cbranch_scc1 K1_LOOP")
    P("s_setprio 0")
    P("; TS 2")
    P("s_waitcnt lgkmcnt(0)")
    P("s_lshl_b32 s50, s39, 2"); P("s_lshl_b32 s46, s48, 1"); P("s_add_u32 s50, s50, s46")
    P("s_lshl_b32 s51, s41, 1"); P("s_add_u32 s51, s51, s49"); P("s_lshl_b32 s51, s51, 6"); P("s_add_u32 s51, s51, s50"); P("s_lshl_b32 s51, s51, 11")
    P("s_lshl_b32 s52, s42, 1"); P("s_add_u32 s52, s52, s49"); P("s_lshl_b32 s52, s52, 6"); P("s_add_u32 s52, s52, s50"); P("s_lshl_b32 s52, s52, 12"); P(f"s_add_u32 s52, s52, {WS_KV}")
    P("s_lshl_b32 s53, s43, 1"); P("s_add_u32 s53, s53, s49"); P("s_lshl_b32 s53, s53, 6"); P("s_add_u32 s53, s53, s50"); P("s_lshl_b32 s53, s53, 12"); P(f"s_add_u32 s53, s53, {WS_KV+2048}")
    P("s_add_u32 s54, s52, 4096"); P("s_add_u32 s55, s53, 4096")
    P("v_lshlrev_b32 v1, 4, v0")
    P("v_and_b32 v2, 0x33, v0")
    P("v_bfe_u32 v3, v0, 2, 1"); P("v_lshl_or_b32 v2, v3, 3, v2")
    P("v_bfe_u32 v3, v0, 3, 1"); P("v_lshl_or_b32 v2, v3, 2, v2")
    P("v_lshlrev_b32 v2, 4, v2")
    P(f"s_mov_b32 s56, {f32hex(math.log2(math.e) / math.sqrt(32.0))}")
    SC = opt.get("sc", "")
    T = [16, 24, 32, 40, 48, 56]
    order = [2, 3, 4, 5, 0, 1] if opt.get("kvfirst", 1) else [0, 1, 2, 3, 4, 5]
    for n, i in enumerate(order):
        a = ACC[i]; t = T[n]
        if i < 2:
            for r in range(16): P(f"v_mul_f32 v{a+r}, s56, v{a+r}")
        for r in range(8): P(f"v_cvt_pk_bf16_f32 v{t+r}, v{a+2*r}, v{a+2*r+1}")
        if i < 2:   va, so, off = 1, "s51", 2048 * i
        elif i < 4: va, so, off = 2, ("s52", "s54")[i - 2], 0
        else:       va, so, off = 1, ("s53", "s55")[i - 4], 0
        P(f"buffer_store_dwordx4 {vr(t,4)}, v{va}, s[24:27], {so} offen offset:{off}{SC}")
        P(f"buffer_store_dwordx4 {vr(t+4,4)}, v{va}, s[24:27], {so} offen offset:{off+1024}{SC}")
    P("; TS 3")
    P("s_endpgm")
    P.label("K1_LOADER")
    P("s_sub_u32 s36, s36, 4")
    P("v_lshrrev_b32 v1, 3, v0")
    P("v_and_b32 v6, 7, v0")
    P("v_lshrrev_b32 v7, 4, v0")
    P("v_xor_b32 v8, v6, v7")
    P("v_lshlrev_b32 v8, 4, v8")
    P("v_lshl_add_u32 v8, v1, 11, v8")
    P("s_lshl_b32 s46, s39, 18"); P("s_lshl_b32 s47, s36, 16"); P("s_add_u32 s46, s46, s47")
    P("v_add_u32 v2, s46, v8")
    P("v_xor_b32 v3, 64, v2")
    P(f"v_add_u32 v3, {16384-1024}, v3")
    P(f"v_add_u32 v4, {32768-2048}, v2")
    P(f"v_add_u32 v5, {32768-2048}, v3")
    P("v_and_b32 v7, 1, v7")
    P("v_lshlrev_b32 v7, 2, v7")
    P("v_xor_b32 v6, v6, v7")
    P("v_lshlrev_b32 v6, 4, v6")
    P("s_lshl_b32 s46, s36, 4")
    P("v_add_u32 v1, s46, v1")
    P("v_mul_u32_u24 v1, 0x1800, v1")
    P("v_add_u32 v9, v1, v6")
    P(f"v_add_u32 v10, {8*6144-1024}, v9")
    P("v_lshlrev_b32 v11, 4, v0")
    P("s_lshl_b32 s41, s41, 7")
    P("s_lshl_b32 s42, s42, 7"); P("s_add_u32 s42, s42, 2048")
    P("s_lshl_b32 s43, s43, 7"); P("s_add_u32 s43, s43, 4096")
    P("s_lshl_b32 s48, s36, 12")
    P("s_lshl_b32 s49, s36, 11"); P("s_add_u32 s49, s49, 16384")
    if opt.get("rot", 0):
        P("s_and_b32 s46, s38, 7"); P("s_lshl_b32 s46, s46, 1"); P("s_lshr_b32 s47, s38, 3"); P("s_lshl_b32 s47, s47, 2")
        P("s_add_u32 s50, s46, s47"); P("s_and_b32 s50, s50, 15")
    else:
        P("s_mov_b32 s50, 0")
    P("s_mov_b32 s45, 0")
    P("s_mov_b32 s44, 0")
    P("s_waitcnt lgkmcnt(0)")
    srd(P, 16, 4, 4 * MB); srd(P, 20, 6, 6 * MB)
    NX = " nt" if opt.get("nt", 0) & 1 else ""
    NW = " nt" if opt.get("nt", 0) & 2 else ""
    def issue_stage():
        P("s_lshl_b32 s51, s50, 7")
        P("s_mul_i32 s52, s50, 393216")
        P("s_add_u32 m0, s45, s48")
        P("s_add_u32 s53, s52, s41")
        for i in range(4):
            P(f"buffer_load_dwordx4 v{2+i}, s[16:19], s51 offen offset:{1024*i}{NX} lds")
        P("s_add_u32 m0, s45, s49")
        P("s_add_u32 s54, s52, s42")
        if not KVO:
            P(f"buffer_load_dwordx4 v9, s[20:23], s53 offen{NW} lds")
            P(f"buffer_load_dwordx4 v10, s[20:23], s53 offen offset:1024{NW} lds")
        P("s_add_u32 m0, m0, 8192")
        P("s_add_u32 s55, s52, s43")
        P(f"buffer_load_dwordx4 v9, s[20:23], s54 offen{NW} lds")
        P(f"buffer_load_dwordx4 v10, s[20:23], s54 offen offset:1024{NW} lds")
        P("s_add_u32 m0, m0, 8192")
        P("s_add_u32 s50, s50, 1")
        P(f"buffer_load_dwordx4 v9, s[20:23], s55 offen{NW} lds")
        P(f"buffer_load_dwordx4 v10, s[20:23], s55 offen offset:1024{NW} lds")
        P("s_and_b32 s50, s50, 15")
        P("s_add_u32 s44, s44, 1")
        P(f"s_add_u32 s45, s45, {SLOT}")
        P("s_and_b32 s46, s44, 3")
        P("s_cselect_b32 s45, s45, 0")
    pre = opt.get("pre", 2)
    nodma = opt.get("nodma", 99)
    TSB = {0: 0, 1: 1, 2: 2, 4: 3, 8: 4, 12: 5}
    issued = 0
    q = []
    def iss():
        nonlocal issued
        if issued < nodma:
            issue_stage(); q.append(8 if KVO else 10)
        else: q.append(0)
        issued += 1
    for i in range(pre): iss()
    for s in range(13):
        P(f"s_waitcnt vmcnt({sum(q[s+1:])})")
        P("s_barrier")
        if s in TSB: P(f"; TS {TSB[s]}")
        if KVO & 2:
            for i in range(4): P(f"ds_read_b128 v[{100+4*i}:{103+4*i}], v11 offset:{(s%4)*4096+i*1024}")
        while issued <= s + 3: iss()
    srd(P, 24, 8, WS_SIZE); srd(P, 28, 10, 4 * MB); srd(P, 32, 12, 2 * MB)
    P("s_lshl_b32 s46, s37, 2"); P("s_lshr_b32 s47, s38, 3"); P("s_add_u32 s46, s46, s47")
    P("s_and_b32 s47, s38, 7"); P("s_lshl_b32 s47, s47, 2"); P("s_add_u32 s47, s47, s36")
    P("s_lshl_b32 s51, s46, 5"); P("s_add_u32 s51, s51, s47")
    P("s_lshl_b32 s52, s51, 11")
    P(f"s_sub_u32 s53, {4*MB}, s52")
    P("v_lshlrev_b32 v1, 4, v0")
    P("v_sub_u32 v2, 2032, v1")
    P("v_add_u32 v3, 16, v2")
    P("v_cmp_eq_u32 vcc, 0, v0")
    P("v_mov_b32 v4, 0x7fffffff")
    P("v_cndmask_b32 v3, v3, v4, vcc")
    P("v_add_u32 v5, s53, v1")
    P("v_add_u32 v6, s53, v2")
    P("v_add_u32 v7, s53, v3")
    F1, F2, R1, R2, E1, E2, GX, GW = 16, 20, 24, 28, 32, 33, 36, 44
    P(f"buffer_load_dwordx4 {vr(F1,4)}, v1, s[28:31], s52 offen")
    P(f"buffer_load_dwordx4 {vr(F2,4)}, v5, s[28:31], 0 offen")
    P(f"buffer_load_dwordx4 {vr(R1,4)}, v2, s[28:31], s52 offen")
    P(f"buffer_load_dwordx4 {vr(R2,4)}, v6, s[28:31], 0 offen")
    P(f"buffer_load_ushort v{E1}, v3, s[28:31], s52 offen")
    P(f"buffer_load_ushort v{E2}, v7, s[28:31], 0 offen")
    P("s_lshl_b32 s54, s2, 1"); P("s_add_u32 s54, s54, s36")
    P("s_cmp_eq_u32 s54, 2")
    P("s_movk_i32 s56, 512")
    P("s_cselect_b32 s55, s56, 0x40000")
    P("s_cmp_lt_u32 s36, 2")
    P("s_cselect_b32 s54, s54, s55")
    P("s_lshl_b32 s55, s54, 11")
    P("v_lshlrev_b32 v8, 5, v0")
    P("v_add_u32 v9, s55, v8")
    P(f"s_mov_b32 s56, {2*MB}")
    P("s_cmp_le_u32 s54, 512")
    P("s_cselect_b32 s56, s56, 0x7f000000")
    P("v_add_u32 v10, s56, v8")
    P(f"buffer_load_dwordx4 {vr(GX,4)}, v10, s[28:31], 0 offen")
    P(f"buffer_load_dwordx4 {vr(GX+4,4)}, v10, s[28:31], 0 offen offset:16")
    P(f"buffer_load_dwordx4 {vr(GW,4)}, v9, s[32:35], 0 offen")
    P(f"buffer_load_dwordx4 {vr(GW+4,4)}, v9, s[32:35], 0 offen offset:16")
    F = 10
    P(f"s_waitcnt vmcnt({q[14]+q[15]+F})"); P("s_barrier")
    P(f"s_waitcnt vmcnt({q[15]+F})"); P("s_barrier")
    P(f"s_waitcnt vmcnt({F})"); P("s_barrier")
    P("; TS 6")
    P("s_waitcnt vmcnt(4)")
    P("; TS 7")
    def unp(dst, src, j):
        if j & 1: P(f"v_and_b32 v{dst}, 0xffff0000, v{src + (j >> 1)}")
        else:     P(f"v_lshlrev_b32 v{dst}, 16, v{src + (j >> 1)}")
    EE, OO = 64, 72
    for j in range(8):
        unp(52, F1, j); unp(53, F2, j)
        if j == 0:
            P(f"v_lshlrev_b32 v54, 16, v{E1}"); P(f"v_lshlrev_b32 v55, 16, v{E2}")
        else:
            unp(54, R1, 8 - j); unp(55, R2, 8 - j)
        P("v_add_f32 v52, v52, v55")
        P("v_add_f32 v53, v53, v54")
        P(f"v_add_f32 v{EE+j}, v52, v53")
        P(f"v_sub_f32 v{OO+j}, v52, v53")
    unp(54, R1, 0); unp(55, R2, 0)
    P("v_add_f32 v56, v54, v55")
    for r in range(4): P(f"v_cvt_pk_bf16_f32 v{80+r}, v{EE+2*r}, v{EE+2*r+1}")
    for r in range(4): P(f"v_cvt_pk_bf16_f32 v{84+r}, v{OO+2*r}, v{OO+2*r+1}")
    P("v_lshlrev_b32 v1, 9, v0")
    P("s_lshl_b32 s46, s46, 15"); P("s_lshl_b32 s47, s47, 4"); P("s_add_u32 s46, s46, s47")
    P(f"s_add_u32 s47, s46, {WS_XOO}"); P(f"s_add_u32 s46, s46, {WS_XEE}")
    P("buffer_store_dwordx4 v[80:83], v1, s[24:27], s46 offen")
    P("buffer_store_dwordx4 v[84:87], v1, s[24:27], s47 offen")
    P(f"v_sub_f32 v57, v{EE}, v{EE+1}")
    for r in range(1, 4):
        P(f"v_add_f32 v57, v57, v{EE+2*r}"); P(f"v_sub_f32 v57, v57, v{EE+2*r+1}")
    dpp_sum(P, 57)
    P("v_add_f32 v57, v57, v56")
    P("v_cvt_pk_bf16_f32 v57, v57, v57")
    P("s_waitcnt vmcnt(2)")
    P("v_mov_b32 v58, 0")
    for r in range(8): P(f"v_dot2_f32_bf16 v58, v{GX+r}, v{GW+r}, v58")
    dpp_sum(P, 58)
    P("s_lshl_b32 s46, s51, 2"); P(f"s_add_u32 s46, s46, {WS_SM+SM_X512}")
    P("s_lshl_b32 s47, s51, 1"); P(f"s_add_u32 s47, s47, {WS_SM+SM_C}")
    P("s_lshl_b32 s55, s54, 2"); P(f"s_add_u32 s55, s55, {WS_SM+SM_G}")
    P("v_mov_b32 v1, s46"); P("v_mov_b32 v2, s47"); P("v_mov_b32 v3, s55")
    P("s_mov_b32 exec_lo, 0"); P("s_mov_b32 exec_hi, 0x80000000")
    P("buffer_store_dword v56, v1, s[24:27], 0 offen")
    P("buffer_store_short v57, v2, s[24:27], 0 offen")
    P("buffer_store_dword v58, v3, s[24:27], 0 offen")
    P.label("K1_END")
    P("s_endpgm")
    return name, P.L, 168, "grid=(256,1,1) block=(512,1,1) lds=163840"
```

```python
from common import *
from k1 import f32hex

MF = "v_mfma_f32_32x32x16_bf16"

def attn(P, opt):
    ONES, L, Q, K, V, C, O, SA, SB = 8, 12, 16, 24, 32, 40, 56, 72, 88
    P("v_lshrrev_b32 v1, 6, v0")
    P("v_and_b32 v0, 63, v0")
    P("v_readfirstlane_b32 s16, v1")
    P("s_and_b32 s17, s2, 7"); P("s_lshl_b32 s17, s17, 2"); P("s_lshr_b32 s19, s2, 6"); P("s_add_u32 s17, s17, s19")
    P("s_bfe_u32 s18, s2, 0x30003"); P("s_lshl_b32 s18, s18, 3"); P("s_add_u32 s18, s18, s16")
    P("v_lshlrev_b32 v1, 4, v0")
    P("s_lshl_b32 s23, s16, 11")
    P("v_add_u32 v4, s23, v1")
    P("s_lshl_b32 s19, s17, 18"); P(f"s_add_u32 s19, s19, {WS_KV}")
    P("s_lshl_b32 s24, s17, 6"); P("s_add_u32 s24, s24, s18"); P("s_lshl_b32 s24, s24, 11")
    P("s_waitcnt lgkmcnt(0)")
    srd(P, 8, 4, 256 * 1024, "s19")
    srd(P, 12, 4, WS_SIZE)
    P(f"buffer_load_dwordx4 {vr(Q,4)}, v1, s[12:15], s24 offen")
    P(f"buffer_load_dwordx4 {vr(Q+4,4)}, v1, s[12:15], s24 offen offset:1024")
    P(f"buffer_load_dwordx4 {vr(K,4)}, v1, s[8:11], 0 offen")
    P(f"buffer_load_dwordx4 {vr(K+4,4)}, v1, s[8:11], 0 offen offset:1024")
    for c in range(3):
        P(f"s_add_u32 m0, s23, {c*16384}")
        P("buffer_load_dwordx4 v4, s[8:11], 0 offen lds")
        P("buffer_load_dwordx4 v4, s[8:11], 0 offen offset:1024 lds")
        P("v_add_u32 v4, 0x4000, v4")
    P("v_mov_b32 v5, 0xdddddddd")
    P("v_and_b32 v6, 7, v0")
    P("v_mov_b32 v7, 0x3f803f80")
    P("v_cmp_eq_u32 vcc, 0, v6")
    P(f"v_cndmask_b32 v{ONES}, 0, v7, vcc"); P(f"v_cndmask_b32 v{ONES+1}, 0, v7, vcc")
    P("v_cmp_eq_u32 vcc, 4, v6")
    P(f"v_cndmask_b32 v{ONES+2}, 0, v7, vcc"); P(f"v_cndmask_b32 v{ONES+3}, 0, v7, vcc")
    for i in range(8, 16): P(f"v_mov_b32 v{SB+i}, 0")
    for i in range(4, 8): P(f"v_mov_b32 v{V+i}, 0")
    P("v_mov_b32 v2, v1")
    P("v_add_u32 v3, 0x4000, v1")
    P("s_mov_b32 s20, 1")
    P("s_mov_b32 s21, 0")
    P(f"s_mov_b32 s25, {f32hex(float(opt.get('margin', 88)))}")
    P("s_mov_b32 s26, 0")
    P("v_mov_b32 v6, 0xff800000")
    P("s_waitcnt vmcnt(6)")
    P("; TS 0")
    P("s_branch AT_MPIN")
    P.label("AT_MP")
    P(f"buffer_load_dwordx4 {vr(K,4)}, v1, s[8:11], s21 offen")
    P(f"buffer_load_dwordx4 {vr(K+4,4)}, v1, s[8:11], s21 offen offset:1024")
    P("s_waitcnt vmcnt(0)")
    P.label("AT_MPIN")
    P(f"{MF} {vr(SA,16)}, {vr(K,4)}, {vr(Q,4)}, 0")
    P(f"{MF} {vr(SA,16)}, {vr(K+4,4)}, {vr(Q+4,4)}, {vr(SA,16)}")
    for i in range(16): P(f"v_mov_b32 v{O+i}, 0")
    for i in range(4): P(f"v_mov_b32 v{L+i}, 0")
    for i in range(8): P(f"v_max3_f32 v6, v6, v{SA+2*i}, v{SA+2*i+1}")
    P("s_add_u32 s21, s21, 4096")
    P("s_sub_u32 s20, s20, 1")
    P("s_cmp_lg_u32 s20, 0")
    P("s_cbranch_scc1 AT_MP")
    P("v_mov_b32 v7, v6")
    P("v_permlane32_swap_b32 v6, v7")
    P("v_max_f32 v6, v6, v7")
    P("v_add_f32 v6, s25, v6")
    for i in range(16): P(f"v_sub_f32 v{C+i}, 0, v6")
    P("s_cmp_lg_u32 s26, 0")
    P("s_cbranch_scc1 AT_SLOW")
    P(f"{MF} {vr(SA,16)}, {vr(K,4)}, {vr(Q,4)}, {vr(C,16)}")
    P(f"{MF} {vr(SA,16)}, {vr(K+4,4)}, {vr(Q+4,4)}, {vr(SA,16)}")
    P("s_mov_b32 s22, 0")
    if opt.get("aprio"):
        P("s_cmp_ge_u32 s16, 4"); P("s_cbranch_scc0 AT_NP"); P("s_setprio 1"); P.label("AT_NP")
    P("s_waitcnt vmcnt(4)")
    P("s_barrier")
    P("; TS 1")
    lg = LG(P)
    lg.issue(f"ds_read_b128 {vr(V+4,4)}, v2 offset:3072", "V1")
    lg.issue(f"ds_read_b128 {vr(K,4)}, v2 offset:4096", "K0")
    lg.issue(f"ds_read_b128 {vr(K+4,4)}, v2 offset:5120", "K1")
    lg.issue(f"ds_read_b128 {vr(V,4)}, v2 offset:2048", "V0")
    q0 = list(lg.q)
    order = opt.get("order", "ee P eee L ee M eee N ee p eee l e").replace(" ", "")
    P.label("AT_LOOP")
    for u in range(4):
        S, T = (SA, SB) if u % 2 == 0 else (SB, SA)
        def at(tile, off):
            return (f"v2 offset:{tile*4096+off}" if tile < 4 else f"v3 offset:{(tile-4)*4096+off}")
        e = 0
        if u == 2:
            P("s_add_u32 s27, s22, 3"); P("s_and_b32 s27, s27, 3"); P("s_lshl_b32 s27, s27, 14"); P("s_add_u32 m0, s27, s23")
        for n, ch in enumerate(order):
            if ch == "e":
                P(f"v_exp_f32 v{S+e}, v{S+e}"); e += 1
            elif ch == "P":
                lg.need("V1")
                P(f"v_smfmac_f32_32x32x32_bf16 {vr(O,16)}, {vr(V+4,4)}, {vr(T+8,8)}, v5")
                lg.issue(f"ds_read_b128 {vr(V+4,4)}, {at(u,3072)}", "V1")
            elif ch == "L":
                P(f"v_smfmac_f32_16x16x64_bf16 {vr(L,4)}, {vr(ONES,4)}, {vr(T+8,8)}, v5")
                if u == 2:
                    P("s_waitcnt vmcnt(2)")
                    if not opt.get("nobar"): P("s_barrier")
                    P("buffer_load_dwordx4 v4, s[8:11], 0 offen lds")
                    P("buffer_load_dwordx4 v4, s[8:11], 0 offen offset:1024 lds")
                    P("v_add_u32 v4, 0x4000, v4")
            elif ch == "M":
                lg.need("K0")
                P(f"{MF} {vr(T,16)}, {vr(K,4)}, {vr(Q,4)}, {vr(C,16)}")
                lg.issue(f"ds_read_b128 {vr(K,4)}, {at(u+2,0)}", "K0")
            elif ch == "N":
                lg.need("K1")
                P(f"{MF} {vr(T,16)}, {vr(K+4,4)}, {vr(Q+4,4)}, {vr(T,16)}")
                lg.issue(f"ds_read_b128 {vr(K+4,4)}, {at(u+2,1024)}", "K1")
            elif ch == "p":
                assert e >= 8
                lg.need("V0")
                P(f"v_smfmac_f32_32x32x32_bf16 {vr(O,16)}, {vr(V,4)}, {vr(S,8)}, v5")
                lg.issue(f"ds_read_b128 {vr(V,4)}, {at(u+1,2048)}", "V0")
                if u == 3:
                    P("s_add_u32 s22, s22, 1")
                    P("s_add_u32 s27, s22, 1"); P("s_and_b32 s27, s27, 3"); P("s_lshl_b32 s27, s27, 14")
                    P("v_mov_b32 v2, v3")
                    P("v_add_u32 v3, s27, v1")
            elif ch == "l":
                P(f"v_smfmac_f32_16x16x64_bf16 {vr(L,4)}, {vr(ONES,4)}, {vr(S,8)}, v5")
        assert e == 16
    assert lg.q == q0, (lg.q, q0)
    P("s_cmp_lg_u32 s22, 16")
    P("s_cbranch_scc1 AT_LOOP")
    lg.need("V1")
    P(f"v_smfmac_f32_32x32x32_bf16 {vr(O,16)}, {vr(V+4,4)}, {vr(SB+8,8)}, v5")
    P(f"v_smfmac_f32_16x16x64_bf16 {vr(L,4)}, {vr(ONES,4)}, {vr(SB+8,8)}, v5")
    P("s_waitcnt vmcnt(0) lgkmcnt(0)")
    P("; TS 2")
    P(f"v_add_f32 v6, |v{O}|, |v{O+1}|")
    P(f"v_add_f32 v7, |v{O+2}|, |v{O+3}|")
    for i in range(4, 16, 2):
        P(f"v_add_f32 v6, v6, |v{O+i}|"); P(f"v_add_f32 v7, v7, |v{O+i+1}|")
    P("v_add_f32 v6, v6, v7")
    P(f"s_mov_b32 s27, {f32hex(2.0**-104)}")
    P(f"s_mov_b32 s28, {f32hex(2.0**120)}")
    P("v_cmp_lt_f32 s[30:31], s27, v6")
    P("v_cmp_gt_f32 s[32:33], s28, v6")
    P(f"v_cmp_gt_f32 vcc, s28, v{L}")
    P("s_and_b64 s[30:31], s[30:31], s[32:33]")
    P("s_and_b64 s[30:31], s[30:31], vcc")
    if opt.get("force_slow"): P("s_mov_b64 s[30:31], 0")
    P("s_cmp_eq_u64 s[30:31], -1")
    P("s_cbranch_scc1 AT_FIN")
    P("s_mov_b32 s26, 1"); P("s_mov_b32 s25, 0"); P("s_mov_b32 s20, 64"); P("s_mov_b32 s21, 0")
    P("v_mov_b32 v6, 0xff800000")
    P("s_branch AT_MP")
    P.label("AT_SLOW")
    P("s_mov_b32 s21, 0")
    P.label("AT_SL")
    P(f"buffer_load_dwordx4 {vr(K,4)}, v1, s[8:11], s21 offen")
    P(f"buffer_load_dwordx4 {vr(K+4,4)}, v1, s[8:11], s21 offen offset:1024")
    P(f"buffer_load_dwordx4 {vr(V,4)}, v1, s[8:11], s21 offen offset:2048")
    P(f"buffer_load_dwordx4 {vr(V+4,4)}, v1, s[8:11], s21 offen offset:3072")
    P("s_waitcnt vmcnt(0)")
    P(f"{MF} {vr(SA,16)}, {vr(K,4)}, {vr(Q,4)}, {vr(C,16)}")
    P(f"{MF} {vr(SA,16)}, {vr(K+4,4)}, {vr(Q+4,4)}, {vr(SA,16)}")
    for i in range(16): P(f"v_exp_f32 v{SA+i}, v{SA+i}")
    P(f"v_smfmac_f32_32x32x32_bf16 {vr(O,16)}, {vr(V,4)}, {vr(SA,8)}, v5")
    P(f"v_smfmac_f32_16x16x64_bf16 {vr(L,4)}, {vr(ONES,4)}, {vr(SA,8)}, v5")
    P(f"v_smfmac_f32_32x32x32_bf16 {vr(O,16)}, {vr(V+4,4)}, {vr(SA+8,8)}, v5")
    P(f"v_smfmac_f32_16x16x64_bf16 {vr(L,4)}, {vr(ONES,4)}, {vr(SA+8,8)}, v5")
    P("s_nop 15")
    P("s_add_u32 s21, s21, 4096")
    P("s_cmp_lg_u32 s21, 0x40000")
    P("s_cbranch_scc1 AT_SL")
    P.label("AT_FIN")
    P(f"v_rcp_f32 v6, v{L}")
    P("s_lshl_b32 s24, s18, 5"); P("s_add_u32 s24, s24, s17"); P("s_lshl_b32 s24, s24, 11"); P(f"s_add_u32 s24, s24, {WS_OF}")
    for i in range(16): P(f"v_mul_f32 v{O+i}, v6, v{O+i}")
    for i in range(8): P(f"v_cvt_pk_bf16_f32 v{SA+i}, v{O+2*i}, v{O+2*i+1}")
    P(f"buffer_store_dwordx4 {vr(SA,4)}, v1, s[12:15], s24 offen")
    P(f"buffer_store_dwordx4 {vr(SA+4,4)}, v1, s[12:15], s24 offen offset:1024")
    P("s_endpgm")

def frag_addrs(P, PA):
    P("v_and_b32 v1, 31, v0")
    P("v_lshrrev_b32 v2, 5, v0")
    P(f"v_and_b32 v{PA}, 15, v0")
    P(f"v_xor_b32 v2, v2, v{PA}")
    P("v_lshlrev_b32 v2, 4, v2")
    P(f"v_lshl_add_u32 v{PA}, v1, 8, v2")

def dma_addrs(P, DA, rowshift, sbase):
    P("v_lshrrev_b32 v1, 4, v0")
    P("v_and_b32 v2, 15, v0")
    P("v_xor_b32 v2, v2, v1")
    P("v_lshlrev_b32 v2, 4, v2")
    P(f"v_lshl_add_u32 v2, v1, {rowshift}, v2")
    P(f"v_add_u32 v{DA}, {sbase}, v2")
    for n in range(1, 4):
        P(f"v_xor_b32 v{DA+n}, {n<<6}, v{DA}")
        P(f"v_add_u32 v{DA+n}, {(4*n<<rowshift) - 1024*n}, v{DA+n}")

def g1(P, opt, merged):
    ACC, X, BF, PA, DA, CJ = 4, 20, 84, 96, 104, 108
    P("s_lshr_b32 s17, s16, 2")
    P("s_bfe_u32 s18, s16, 0x10001")
    P("s_and_b32 s19, s16, 1")
    P("s_and_b32 s20, s3, 7"); P("s_lshr_b32 s21, s3, 3")
    P("s_lshl_b32 s22, s20, 1"); P("s_and_b32 s23, s21, 1"); P("s_add_u32 s22, s22, s23"); P("s_lshr_b32 s23, s21, 1")
    et, sb = ("s22", "s23") if opt.get("g1map", 0) == 0 else ("s23", "s22")
    P(f"s_lshl_b32 s24, {sb}, 1"); P("s_add_u32 s24, s24, s18")
    P("s_lshl_b32 s25, s19, 1"); P("s_add_u32 s25, s25, s18")
    P(f"s_lshl_b32 s26, {et}, 16"); P("s_lshl_b32 s27, s25, 8"); P("s_add_u32 s26, s26, s27")
    dma_addrs(P, DA, 11, "s26")
    frag_addrs(P, PA)
    P("s_lshl_b32 s27, s17, 2"); P("s_add_u32 s27, s27, s25"); P("s_lshl_b32 s27, s27, 13")
    P("s_lshl_b32 s28, s17, 15"); P("s_lshl_b32 s29, s19, 14"); P("s_add_u32 s28, s28, s29")
    P(f"v_add_u32 v{PA}, s28, v{PA}")
    for k in range(1, 8): P(f"v_xor_b32 v{PA+k}, {k<<5}, v{PA}")
    P("v_lshlrev_b32 v1, 4, v0")
    P("s_lshl_b32 s30, s17, 20"); P("s_lshl_b32 s31, s24, 15"); P("s_add_u32 s30, s30, s31"); P("s_add_u32 s30, s30, s29"); P(f"s_add_u32 s30, s30, {WS_XEE}")
    P("s_waitcnt lgkmcnt(0)")
    P("s_cmp_eq_u32 s17, 0")
    P("s_cselect_b32 s36, s6, s8"); P("s_cselect_b32 s37, s7, s9"); P(f"s_mov_b32 s38, {2*MB}"); P("s_mov_b32 s39, 0x00020000")
    srd(P, 40, 4, WS_SIZE); srd(P, 44, 10, 8 * MB); srd(P, 48, 14, 8 * MB)
    P("s_mov_b32 m0, s27")
    P("s_mov_b32 s31, 32768")
    for n in range(4): P(f"buffer_load_dwordx4 v{DA+n}, s[36:39], 0 offen offset:{1024*n} lds")
    P("s_add_u32 m0, s27, 4096")
    for n in range(4): P(f"buffer_load_dwordx4 v{DA+n}, s[36:39], s31 offen offset:{1024*n} lds")
    P("s_or_b32 s31, s17, s19"); P("s_lshl_b32 s31, s31, 24")
    P("s_lshl_b32 s32, s24, 7"); P("s_add_u32 s31, s31, s32"); P(f"s_add_u32 s31, s31, {WS_SM+SM_X512}")
    P("v_lshrrev_b32 v2, 5, v0"); P("v_lshlrev_b32 v2, 4, v2"); P("v_add_u32 v2, s31, v2")
    for g in range(4): P(f"buffer_load_dwordx4 {vr(ACC+4*g,4)}, v2, s[40:43], 0 offen offset:{32*g}")
    for k in range(16):
        if k % 4 == 0 and k: P("s_add_u32 s30, s30, 4096")
        P(f"buffer_load_dwordx4 {vr(X+4*k,4)}, v1, s[40:43], s30 offen offset:{1024*(k%4)}")
    P("s_lshl_b32 s32, s3, 2"); P("s_add_u32 s32, s32, s16")
    P("s_cmp_eq_u32 s32, 4"); P("s_movk_i32 s33, 1024"); P("s_cselect_b32 s33, s33, 0x10000")
    P("s_cmp_lt_u32 s16, 4"); P("s_cselect_b32 s32, s32, s33")
    P("s_lshl_b32 s33, s32, 12")
    P("v_lshlrev_b32 v2, 5, v0")
    P("v_add_u32 v3, s33, v2")
    P(f"s_mov_b32 s34, {WS_SM+SM_C}")
    P(f"buffer_load_dwordx4 {vr(CJ,4)}, v3, s[44:47], 0 offen")
    P(f"buffer_load_dwordx4 {vr(CJ+4,4)}, v3, s[44:47], 0 offen offset:16")
    P(f"buffer_load_dwordx4 {vr(CJ+8,4)}, v2, s[40:43], s34 offen")
    P(f"buffer_load_dwordx4 {vr(CJ+12,4)}, v2, s[40:43], s34 offen offset:16")
    P(f"v_mov_b32 v2, {WS_SM+SM_G+2048}")
    P(f"buffer_load_dword v{CJ+16}, v2, s[40:43], 0 offen")
    P("v_lshlrev_b32 v3, 31, v0")
    P("s_waitcnt vmcnt(21)")
    for i in range(16): P(f"v_xor_b32 v{ACC+i}, v3, v{ACC+i}")
    P("; TS 0")
    P("s_barrier")
    P("; TS 1")
    lg = LG(P)
    def rd(k): lg.issue(f"ds_read_b128 {vr(BF+4*(k%3),4)}, v{PA+(k&7)} offset:{8192*(k>>3)}", f"B{k}")
    rd(0); rd(1)
    for k in range(16):
        if k + 2 < 16: rd(k + 2)
        lg.need(f"B{k}")
        P(f"s_waitcnt vmcnt({5+15-k})")
        P(f"{MF} {vr(ACC,16)}, {vr(X+4*k,4)}, {vr(BF+4*(k%3),4)}, {vr(ACC,16)}")
    P("; TS 2")
    P("s_waitcnt vmcnt(0)")
    P("s_lshl_b32 s33, s32, 31")
    P(f"v_xor_b32 v{CJ+16}, s33, v{CJ+16}")
    P("v_mov_b32 v2, 0")
    for r in range(8): P(f"v_dot2_f32_bf16 v2, v{CJ+r}, v{CJ+8+r}, v2")
    dpp_sum(P, 2)
    P(f"v_add_f32 v2, v2, v{CJ+16}")
    P("v_cvt_pk_bf16_f32 v2, v2, v2")
    P("s_lshl_b32 s33, s32, 12"); P("s_add_u32 s34, s33, 1024"); P(f"s_sub_u32 s33, {8*MB+1024}, s33")
    P(f"v_mov_b32 v{CJ}, s34"); P(f"v_mov_b32 v{CJ+1}, s33")
    P("s_mov_b32 exec_lo, 0"); P("s_mov_b32 exec_hi, 0x80000000")
    P(f"buffer_store_short v2, v{CJ}, s[48:51], 0 offen")
    P(f"buffer_store_short v2, v{CJ+1}, s[48:51], 0 offen")
    P("s_mov_b64 exec, -1")
    P("; TS 3")
    P("s_barrier")
    P("s_lshl_b32 s33, s16, 12")
    P("v_add_u32 v2, s33, v1")
    for g in range(4): P(f"ds_write_b128 v2, {vr(ACC+4*g,4)} offset:{1024*g}")
    P("s_and_b32 s33, s16, 6"); P("s_lshl_b32 s33, s33, 12"); P("s_lshl_b32 s34, s19, 11"); P("s_add_u32 s33, s33, s34")
    P("v_add_u32 v3, s33, v1")
    P("s_waitcnt lgkmcnt(0)")
    P("s_barrier")
    P(f"ds_read_b128 {vr(X,4)}, v3"); P(f"ds_read_b128 {vr(X+4,4)}, v3 offset:1024")
    P(f"ds_read_b128 {vr(X+8,4)}, v3 offset:4096"); P(f"ds_read_b128 {vr(X+12,4)}, v3 offset:5120")
    P("s_lshl_b32 s33, s17, 20"); P(f"s_lshl_b32 s34, {et}, 16"); P("s_add_u32 s33, s33, s34")
    P("s_lshl_b32 s34, s24, 11"); P("s_add_u32 s33, s33, s34"); P("s_lshl_b32 s34, s19, 10"); P("s_add_u32 s33, s33, s34"); P(f"s_add_u32 s33, s33, {WS_TE}")
    P("s_waitcnt lgkmcnt(0)")
    for i in range(8): P(f"v_add_f32 v{X+i}, v{X+i}, v{X+8+i}")
    for i in range(4): P(f"v_cvt_pk_bf16_f32 v{X+16+i}, v{X+2*i}, v{X+2*i+1}")
    P(f"v_permlane32_swap_b32 v{X+16}, v{X+18}")
    P(f"v_permlane32_swap_b32 v{X+17}, v{X+19}")
    P(f"buffer_store_dwordx4 {vr(X+16,4)}, v1, s[40:43], s33 offen" + (" sc1" if merged else ""))

def g2(P, opt, merged):
    ACC, T, AF, PA, DA, RW = 4, 20, 84, 96, 104, 108
    sc = " sc1" if merged else ""
    P("s_lshr_b32 s17, s16, 2")
    P("s_bfe_u32 s18, s16, 0x10001")
    P("s_and_b32 s19, s16, 1")
    P("s_and_b32 s20, s3, 7"); P("s_lshr_b32 s21, s3, 3")
    if opt.get("g2map", 0) == 0:
        P("s_mov_b32 s22, s20"); P("s_mov_b32 s23, s21")
    else:
        P("s_lshr_b32 s22, s21, 2"); P("s_lshl_b32 s23, s20, 2"); P("s_and_b32 s24, s21, 3"); P("s_add_u32 s23, s23, s24")
    P("s_lshl_b32 s26, s23, 17"); P("s_lshl_b32 s27, s18, 16"); P("s_add_u32 s26, s26, s27"); P("s_lshl_b32 s27, s19, 10"); P("s_add_u32 s26, s26, s27")
    dma_addrs(P, DA, 12, "s26")
    frag_addrs(P, PA)
    P("s_lshl_b32 s28, s17, 14"); P("s_lshl_b32 s29, s19, 13"); P("s_add_u32 s28, s28, s29")
    P("s_lshl_b32 s27, s18, 12"); P("s_add_u32 s27, s27, s28")
    P(f"v_add_u32 v{PA}, s28, v{PA}")
    for k in range(1, 8): P(f"v_xor_b32 v{PA+k}, {k<<5}, v{PA}")
    P("v_lshlrev_b32 v1, 4, v0")
    P("s_lshl_b32 s24, s22, 1"); P("s_add_u32 s24, s24, s18")
    P("s_lshl_b32 s30, s17, 20"); P("s_lshl_b32 s31, s24, 16"); P("s_add_u32 s30, s30, s31"); P("s_lshl_b32 s31, s19, 15"); P("s_add_u32 s30, s30, s31"); P(f"s_add_u32 s30, s30, {WS_TE}")
    if not merged:
        P("s_waitcnt lgkmcnt(0)")
        srd(P, 40, 4, WS_SIZE); srd(P, 48, 14, 8 * MB)
    P("s_cmp_eq_u32 s17, 0")
    P("s_cselect_b32 s36, s10, s12"); P("s_cselect_b32 s37, s11, s13"); P(f"s_mov_b32 s38, {8*MB}"); P("s_mov_b32 s39, 0x00020000")
    def dma(r):
        P(f"s_add_u32 m0, s27, {(r&1)*32768}")
        P(f"s_movk_i32 s31, {r*256}")
        for n in range(4): P(f"buffer_load_dwordx4 v{DA+n}, s[36:39], s31 offen offset:{1024*n} lds")
    def tl(r):
        for k in range(8):
            P(f"buffer_load_dwordx4 {vr(T+32*(r&1)+4*k,4)}, v1, s[40:43], s30 offen offset:{1024*(k%4)}{sc}")
            if k % 4 == 3: P("s_add_u32 s30, s30, 4096")
    P("s_or_b32 s31, s17, s19"); P("s_lshl_b32 s31, s31, 24")
    P("s_lshl_b32 s32, s24, 7"); P("s_add_u32 s31, s31, s32"); P(f"s_add_u32 s31, s31, {WS_SM+SM_G}")
    P("v_and_b32 v2, 31, v0"); P("v_lshlrev_b32 v2, 2, v2"); P("v_add_u32 v2, s31, v2")
    if merged:
        P("s_barrier")
    P(f"buffer_load_dword v{RW}, v2, s[40:43], 0 offen")
    if merged:
        dma(0); dma(1)
        merged(P)
        tl(0); tl(1)
        first = [8, 0]
    else:
        dma(0); tl(0); dma(1); tl(1)
        first = [12, 0]
    P("s_or_b32 s25, s23, s17")
    P("s_mov_b32 s29, 0xbf803f80")
    P(f"s_waitcnt vmcnt({first[0]})")
    for i in range(16):
        if i & 1: P(f"v_sub_f32 v{ACC+i}, 0, v{RW}")
        else:     P(f"v_mov_b32 v{ACC+i}, v{RW}")
    P("v_cmp_gt_u32 vcc, 32, v0")
    P(f"v_cndmask_b32 v{RW}, 0, v{RW}, vcc")
    for r in range(4):
        if r: P(f"s_waitcnt vmcnt(0)")
        P("s_barrier")
        P(f"; TS {4+r}")
        lg = LG(P)
        def rd(k): lg.issue(f"ds_read_b128 {vr(AF+4*(k%3),4)}, v{PA+k} offset:{32768*(r&1)}", f"A{k}")
        rd(0); rd(1)
        if 1 <= r <= 2:
            dma(r + 1); tl(r + 1)
        for k in range(8):
            if k + 2 < 8: rd(k + 2)
            lg.need(f"A{k}")
            P(f"{MF} {vr(ACC,16)}, {vr(AF+4*(k%3),4)}, {vr(T+32*(r&1)+4*k,4)}, {vr(ACC,16)}")
        P("s_cmp_lg_u32 s25, 0")
        P(f"s_cbranch_scc1 G2_NR{r}")
        for i in range(32): P(f"v_dot2_f32_bf16 v{RW}, v{T+32*(r&1)+i}, s29, v{RW}")
        P.label(f"G2_NR{r}")
    P("s_barrier")
    P("s_lshl_b32 s33, s16, 12")
    P("v_add_u32 v2, s33, v1")
    for g in range(4): P(f"ds_write_b128 v2, {vr(ACC+4*g,4)} offset:{1024*g}")
    P("s_lshl_b32 s33, s16, 8")
    P("v_lshlrev_b32 v3, 2, v0"); P("v_add_u32 v3, s33, v3")
    P(f"ds_write_b32 v3, v{RW} offset:32768")
    P("s_lshl_b32 s32, s17, 1"); P("s_add_u32 s32, s32, s19")
    P("s_lshl_b32 s33, s18, 13"); P("s_lshl_b32 s34, s32, 10"); P("s_add_u32 s33, s33, s34")
    P("v_add_u32 v2, s33, v1")
    P("s_waitcnt lgkmcnt(0)")
    P("s_barrier")
    P(f"ds_read_b128 {vr(T,4)}, v2"); P(f"ds_read_b128 {vr(T+4,4)}, v2 offset:4096")
    P(f"ds_read_b128 {vr(T+8,4)}, v2 offset:16384"); P(f"ds_read_b128 {vr(T+12,4)}, v2 offset:20480")
    P("v_and_b32 v3, 31, v0"); P("s_lshl_b32 s33, s24, 5"); P("v_add_u32 v3, s33, v3")
    P("v_lshlrev_b32 v4, 1, v3")
    P("v_sub_u32 v5, 2048, v4")
    P("v_mov_b32 v6, 0x40000000")
    P("v_cmp_eq_u32 vcc, 0, v3")
    P("v_cndmask_b32 v5, v5, v6, vcc")
    P("v_lshrrev_b32 v6, 5, v0"); P("v_lshlrev_b32 v6, 14, v6")
    P("s_lshl_b32 s33, s23, 17"); P("s_lshl_b32 s34, s32, 15"); P("s_add_u32 s33, s33, s34")
    P("v_add_u32 v6, s33, v6")
    P(f"v_sub_u32 v7, {8*MB}, v6")
    P("v_add_u32 v8, v6, v4"); P("v_add_u32 v9, v7, v5"); P("v_add_u32 v10, v7, v4"); P("v_add_u32 v11, v6, v5")
    P("s_waitcnt lgkmcnt(0)")
    for r in range(4):
        P(f"v_add_f32 v{T+r}, v{T+r}, v{T+4+r}")
        P(f"v_add_f32 v{T+8+r}, v{T+8+r}, v{T+12+r}")
        P(f"v_sub_f32 v12, v{T+r}, v{T+8+r}")
        P(f"v_add_f32 v13, v{T+r}, v{T+8+r}")
        P(f"v_cvt_pk_bf16_f32 v{T+16+r}, v12, v13")
        if r:
            P(f"v_add_u32 v{T+20+4*r}, {4096*r}, v8"); P(f"v_subrev_u32 v{T+21+4*r}, {4096*r}, v9")
            P(f"v_subrev_u32 v{T+22+4*r}, {4096*r}, v10"); P(f"v_add_u32 v{T+23+4*r}, {4096*r}, v11")
            a = T + 20 + 4 * r
        else: a = 8
        P(f"buffer_store_short v{T+16+r}, v{a}, s[48:51], 0 offen")
        P(f"buffer_store_short v{T+16+r}, v{a+1}, s[48:51], 0 offen")
        P(f"buffer_store_short_d16_hi v{T+16+r}, v{a+2}, s[48:51], 0 offen")
        P(f"buffer_store_short_d16_hi v{T+16+r}, v{a+3}, s[48:51], 0 offen")
    P("s_or_b32 s25, s25, s19")
    P("s_cmp_lg_u32 s25, 0")
    P("s_cbranch_scc1 G2_END")
    P("v_and_b32 v3, 31, v0"); P("v_lshlrev_b32 v3, 2, v3"); P("s_lshl_b32 s33, s16, 8"); P("v_add_u32 v3, s33, v3")
    for i in range(4): P(f"ds_read_b32 v{12+i}, v3 offset:{32768+128*i}")
    P(f"v_add_u32 v8, {4*MB}, v4"); P(f"v_add_u32 v9, {4*MB}, v5")
    P("s_waitcnt lgkmcnt(0)")
    P("v_add_f32 v12, v12, v13"); P("v_add_f32 v14, v14, v15"); P("v_add_f32 v12, v12, v14")
    P("v_cvt_pk_bf16_f32 v12, v12, v12")
    P("buffer_store_short v12, v8, s[48:51], 0 offen")
    P("buffer_store_short v12, v9, s[48:51], 0 offen")
    P.label("G2_END")

def load_ptrs(P):
    P("s_load_dwordx2 s[6:7], s[0:1], 24")
    P("s_load_dwordx2 s[8:9], s[0:1], 32")
    P("s_load_dwordx2 s[10:11], s[0:1], 8")
    P("s_load_dwordx2 s[12:13], s[0:1], 16")
    P("s_load_dwordx2 s[14:15], s[0:1], 64")
    P("v_lshrrev_b32 v1, 6, v0")
    P("v_and_b32 v0, 63, v0")
    P("v_readfirstlane_b32 s16, v1")

def k2(opt):
    P = Prog()
    P("s_load_dwordx2 s[4:5], s[0:1], 80")
    P("s_cmp_ge_u32 s2, 256")
    P("s_cbranch_scc1 K2_A")
    attn(P, opt)
    P.label("K2_A")
    P(f"s_cmp_ge_u32 s2, {256 if opt.get('attonly') else 512}")
    P("s_cbranch_scc1 K2_END")
    P("s_sub_u32 s3, s2, 256")
    load_ptrs(P)
    g1(P, opt, False)
    P.label("K2_END")
    P("s_endpgm")
    return "k2_kernel", P.L, 128, "grid=(512,1,1) block=(512,1,1) lds=65536"

def k4(opt):
    P = Prog()
    P("s_cmp_ge_u32 s2, 256")
    P("s_cbranch_scc1 K4_END")
    P("s_load_dwordx2 s[4:5], s[0:1], 80")
    P("s_mov_b32 s3, s2")
    load_ptrs(P)
    g2(P, opt, False)
    P.label("K4_END")
    P("s_endpgm")
    return "k4_kernel", P.L, 128, "grid=(256,1,1) block=(512,1,1) lds=65536"
```

```python
from fcommon import *
import fused as F1M
from fused import lit, w_addr, x_addr, g1_ids, prof, REF, NAME

RET, ACC = 128, 64
QF = [8, 16, 24]
QO, QX, QP = 32, 48, 64
FA, FV, WD, GAD, FOA, XSA, L32, GWA, F1A = 104, 106, 108, 112, 116, 122, 123, 124, 125
S_LO = "s63"
LINK = "s[96:97]"
FOUT = 144
S_K = "s98"
KLOAD = f"buffer_load_dwordx2 {vr(FV,2)}, v{FA}, {RWS}, 0 offen sc1"

def qg(P, opt, role, vm, lg, hooks):
    barstep = opt.get("barC", 6) if role == "C" else opt.get("barL", 6)
    def reads(i):
        f = QF[i % 3]; o = (i & 7) * 2048
        return [(f"ds_read_b64_tr_b16 {vr(f,2)}, v2 offset:{o}", f"F{i}a"), (f"ds_read_b64_tr_b16 {vr(f+2,2)}, v2 offset:{o+512}", f"F{i}a"),
                (f"ds_read_b64_tr_b16 {vr(f+4,2)}, v3 offset:{o}", f"F{i}b"), (f"ds_read_b64_tr_b16 {vr(f+6,2)}, v3 offset:{o+512}", f"F{i}b")]
    for i in range(32):
        n = 16 + (i >> 3)
        if (i & 7) == barstep:
            if f"pre{n}" in hooks: hooks[f"pre{n}"]()
            P("s_barrier")
            if opt.get("tsq"): P(f"; TS {n+3}")
        if i + 2 < 32 and ((i + 2) & 7) == 0:
            P("v_add_u32 v2, 0x8000, v2"); P("v_add_u32 v3, 0x8000, v3")
        R = reads(i + 2) if i + 2 < 32 else []
        f = QF[i % 3]
        for half in ((0, 1) if i < 31 else (1, 0)):
            lg.need(f"F{i}" + "ab"[half])
            a = (QO, QX)[half]
            if opt.get("m16f", 0) & 2:
                for hf in range(2):
                    a2 = a + 8 * (i & 1) + 4 * hf
                    P(f"{M16} {vr(a2,4)}, {vr(f+4*half,4)}, {vr(RET+4*(i^hf),4)}, {vr(a2,4) if i > 1 else 0}")
            else: P(f"{M32} {vr(a,16)}, {vr(f+4*half,4)}, {vr(RET+4*i,4)}, {vr(a,16) if i else 0}")
            for r in R[half * 2:half * 2 + 2]: lg.issue(*r)
        for h in hooks.get(i, []): h()

def setup_hooks(P, opt):
    def h_ids():
        g1_ids(P)
        P(f"s_lshl_b32 s61, s2, 2"); P(f"s_add_u32 s61, s61, {S_WL}")
        P(f"s_lshr_b32 s62, {S_W}, 2")
        P(f"s_lshl_b32 s64, {S_RB}, 2"); P(f"s_add_u32 s64, s64, {S_WL}"); P("s_lshl_b32 s64, s64, 4"); P(f"s_add_u32 s64, s64, {S_CB}"); P("s_lshl_b32 s64, s64, 1"); P("s_add_u32 s64, s64, s62")
        P("s_lshl_b32 s65, s62, 18")
    def h_kv():
        P(f"s_lshl_b32 s3, {S_PRB}, 1"); P(("v_xor_b32" if opt.get("xo") else "v_add_u32") + " v5, s3, v0"); P("v_and_b32 v5, 31, v5"); P("v_lshrrev_b32 v6, 5, v0"); P("v_lshlrev_b32 v6, 13, v6")
        P(f"s_lshl_b32 s3, {S_CB}, 1"); P("s_add_u32 s3, s3, s62"); P("s_lshl_b32 s3, s3, 8"); P(f"s_add_u32 s3, s3, {FL2}")
        P("v_lshl_add_u32 v5, v5, 3, v6"); P(f"v_add_u32 v{FA}, s3, v5")
        P(f"s_lshl_b32 s3, {S_CB}, 19")
        srd(P, 40, P_WS, 512 * 1024, "s3")
        P("v_add_u32 v4, s65, v1")
        P(f"s_lshl_b32 s52, {S_WL}, 1"); P("s_add_u32 s52, s52, s62"); P("s_lshl_b32 s52, s52, 12")
        if opt.get("xo"): P(f"s_lshl_b32 {S_K}, {S_WL}, 12"); P(f"s_lshl_b32 {S_PRB}, {S_PRB}, 14")
        else: P(f"s_lshl_b32 {S_K}, {S_PRB}, 2"); P(f"s_add_u32 {S_K}, {S_K}, {S_WL}"); P(f"s_lshl_b32 {S_K}, {S_K}, 12")
    def h_misc():
        P(f"v_lshlrev_b32 v{L32}, 5, v0")
    def h_wd1():
        P("s_lshr_b32 s56, s54, 1"); P("s_lshl_b32 s56, s56, 17"); P("s_and_b32 s3, s54, 1"); P("s_lshl_b32 s3, s3, 11"); P("s_add_u32 s56, s56, s3")
        P(f"s_and_b32 s3, {S_WL}, 1"); P("s_lshl_b32 s3, s3, 8"); P("s_add_u32 s56, s56, s3"); P("s_lshl_b32 s3, s62, 16"); P("s_add_u32 s56, s56, s3")
        P("v_lshrrev_b32 v5, 4, v0"); P("v_and_b32 v6, 15, v0"); P("v_xor_b32 v7, v6, v5"); P("v_lshlrev_b32 v7, 4, v7")
        P(f"v_lshl_add_u32 v{GAD}, v6, 8, v7")
        P("v_lshl_add_u32 v7, v5, 12, v7"); P(f"v_add_u32 v{WD}, s56, v7")
    def h_wd2():
        for n in range(1, 4):
            P(f"v_xor_b32 v{WD+n}, {n<<6}, v{WD}"); P(f"v_add_u32 v{WD+n}, {(4*n<<12) - 1024*n}, v{WD+n}")
        P(f"s_lshl_b32 s57, {S_WL}, 13"); P("s_lshl_b32 s3, s62, 12"); P("s_add_u32 s57, s57, s3")
    def h_g1a():
        P("s_lshl_b32 s3, s62, 14"); P(f"s_add_u32 s3, s3, {U[opt.get('wdu', 3)]}"); P(f"v_add_u32 v{GAD}, s3, v{GAD}")
        for k in range(1, 4): P(f"v_xor_b32 v{GAD+k}, {k<<6}, v{GAD}")
        P(f"s_cmp_lt_u32 {S_WL}, 2")
        P(f"s_cselect_b32 s44, s{P_WDR}, s{P_WDI}"); P(f"s_cselect_b32 s45, s{P_WDR+1}, s{P_WDI+1}"); P(f"s_mov_b32 s46, {2*MB}"); P("s_mov_b32 s47, 0x00020000")
    return [h_ids, h_kv, h_misc, h_wd1, h_wd2, h_g1a]

SM_X256 = WS_SM
SM_G = WS_SM + 8192
SM_C = WS_SM + 16384

def fold_job(P, vm, lg, kv=0, opt={}):
    F1, F2, R1, R2, E1, E2, N0, GX, GW, TM, EE, OO, FO, A, XS, GS, GA_ = 64, 68, 72, 76, 80, 81, 82, 84, 92, 100, 128, 136, 144, 116, 122, 124, 103
    Z, GV, GY = 152, 154, 156
    t0, t1, t2, t3, t4 = 100, 127, 101, 102, 126
    if kv: EE, OO, FO, Z, GV, GY = 32, 40, 48, 56, 58, 20
    RA_, RW_ = ("s[96:99]", "s[96:99]") if kv else ("s[48:51]", "s[40:43]")
    SO = 62 if kv else 58
    def st1():
        P(f"s_lshl_b32 s61, s2, 2"); P(f"s_add_u32 s61, s61, {S_WL}")
        P(f"s_and_b32 s3, {S_XCD}, 1"); P("s_lshl_b32 s3, s3, 1"); P(f"s_and_b32 s56, {S_WL}, 1"); P("s_add_u32 s3, s3, s56")
        P(f"s_lshl_b32 s56, {S_J}, 2"); P(f"s_add_u32 s{SO}, s3, s56")
        P(f"s_andn2_b32 s3, {S_XCD}, 1"); P(f"s_lshr_b32 s56, {S_WL}, 1"); P(f"s_add_u32 s{SO+1}, s3, s56")
        P(f"s_lshl_b32 s3, s{SO}, 13")
        P(f"v_and_b32 v{t4}, 3, v0"); P(f"v_lshrrev_b32 v{t1}, 5, v0"); P(f"v_lshl_add_u32 v{t0}, v{t1}, 10, v{t4}")
        P(f"v_lshlrev_b32 v{t0}, 11, v{t0}"); P(f"v_add_u32 v{t0}, s3, v{t0}")
        P(f"v_sub_u32 v{t1}, {4*MB}, v{t0}")
        P(f"v_mov_b32 v{t3}, {OOB}"); P(f"v_cmp_eq_u32 vcc, v{t0}, v{t1}"); P(f"v_cndmask_b32 v{t1}, v{t1}, v{t3}, vcc")
        P(f"s_lshl_b32 s3, s{SO+1}, 6")
        P(f"v_and_b32 v{GS}, 12, v0"); P(f"v_lshlrev_b32 v{GS}, 2, v{GS}"); P(f"v_add_u32 v{GS}, s3, v{GS}")
        P(f"v_and_b32 v{t2}, 16, v0"); P(f"v_lshl_add_u32 v{t2}, v{t2}, 6, v{GS}")
        P(f"v_add_u32 v{A}, v{t0}, v{t2}"); P(f"v_add_u32 v{A+1}, v{t1}, v{t2}")
        srd(P, 96 if kv else 48, P_AX, 4 * MB)
        for r, a in ((F1, 0), (F2, 1)): vm.issue(f"buffer_load_dwordx4 {vr(r,4)}, v{A+a}, {RA_}, 0 offen", "FO")
    def st2():
        P(f"v_sub_u32 v{t2}, 2032, v{t2}")
        P(f"v_add_u32 v{A+2}, v{t0}, v{t2}"); P(f"v_add_u32 v{A+3}, v{t1}, v{t2}")
        for r, a in ((R1, 2), (R2, 3)): vm.issue(f"buffer_load_dwordx4 {vr(r,4)}, v{A+a}, {RA_}, 0 offen", "FO")
        P(f"v_and_b32 v{XS}, 48, v0"); P(f"v_lshl_add_u32 v{XS}, v{XS}, 5, v{t4}"); P(f"v_lshlrev_b32 v{XS}, 2, v{XS}")
        P(f"v_cmp_eq_u32 vcc, 0x1f0, v{GS}"); P(f"v_cndmask_b32 v{XS}, v{t3}, v{XS}, vcc")
    def st3():
        P(f"s_cmp_lg_u32 s{SO+1}, 0"); P("s_cselect_b32 vcc_lo, 0x000f000f, 0"); P("s_mov_b32 vcc_hi, vcc_lo")
        P(f"v_add_u32 v{t2}, 16, v{t2}"); P(f"v_cndmask_b32 v{t2}, v{t3}, v{t2}, vcc")
        P(f"v_add_u32 v{A+4}, v{t0}, v{t2}"); P(f"v_add_u32 v{A+5}, v{t1}, v{t2}")
        for r, a in ((E1, 4), (E2, 5)): vm.issue(f"buffer_load_ushort v{r}, v{A+a}, {RA_}, 0 offen", "FO")
    def st4():
        P(f"s_mov_b32 s3, {MB}")
        vm.issue(f"buffer_load_dwordx4 {vr(GX,4)}, v1, {RA_}, s3 offen", "G"); vm.issue(f"buffer_load_dwordx4 {vr(GX+4,4)}, v1, {RA_}, s3 offen offset:1024", "G")
        P(f"s_mov_b32 s3, {3*MB}")
        vm.issue(f"buffer_load_dwordx4 {vr(GY,4)}, v1, {RA_}, s3 offen", "G"); vm.issue(f"buffer_load_dwordx4 {vr(GY+4,4)}, v1, {RA_}, s3 offen offset:1024", "G")
    def st5():
        d = 96 if kv else 40
        P("s_cmp_gt_u32 s61, 512")
        P(f"s_cselect_b32 s{d}, s{P_WDI}, s{P_WDR}"); P(f"s_cselect_b32 s{d+1}, s{P_WDI+1}, s{P_WDR+1}"); P(f"s_cselect_b32 s3, 512, 0")
        P(f"s_mov_b32 s{d+2}, {2*MB}"); P(f"s_mov_b32 s{d+3}, 0x00020000")
        P("s_sub_u32 s3, s61, s3"); P("s_lshl_b32 s3, s3, 11")
        vm.issue(f"buffer_load_dwordx4 {vr(GW,4)}, v1, {RW_}, s3 offen", "G"); vm.issue(f"buffer_load_dwordx4 {vr(GW+4,4)}, v1, {RW_}, s3 offen offset:1024", "G")
        P(f"v_lshrrev_b32 v{t1}, 5, v0"); P(f"v_bfe_u32 v{GS}, v0, 4, 1"); P(f"v_lshl_add_u32 v{t1}, v{t1}, 2, v{GS}")
        P(f"v_bfe_u32 v{GS}, v0, 2, 2"); P(f"v_lshl_add_u32 v{t1}, v{t1}, 10, v{GS}"); P(f"v_lshl_add_u32 v{t1}, v{t1}, 4, v{t4}"); P(f"v_lshlrev_b32 v{t1}, 4, v{t1}")
        P("v_cmp_eq_u32 vcc, 63, v0"); P(f"v_cndmask_b32 v{GS}, v{t3}, 0, vcc")
    def unp(dst, src, j):
        if j & 1: P(f"v_and_b32 v{dst}, 0xffff0000, v{src + (j >> 1)}")
        else:     P(f"v_lshlrev_b32 v{dst}, 16, v{src + (j >> 1)}")
    def f0():
        vm.need("FO")
        P("s_mov_b32 vcc_lo, 0x000f000f"); P("s_mov_b32 vcc_hi, 0x000f000f")
        for e, r in ((E1, R1), (E2, R2)): P(f"v_cndmask_b32_dpp v{e}, v{r}, v{e}, vcc row_shr:4 row_mask:0xf bank_mask:0xf bound_ctrl:0")
    def ee(j): return EE + j if j < 8 else Z
    def oo(j): return OO + j if j < 8 else Z + 1
    def fa1(j):
        def f():
            unp(TM, F1, j); unp(TM + 1, F2, j)
            if j == 0: P(f"v_lshlrev_b32 v{TM+2}, 16, v{E1}"); P(f"v_lshlrev_b32 v{TM+3}, 16, v{E2}")
            else: unp(TM + 2, R1, 8 - j); unp(TM + 3, R2, 8 - j)
        return f
    def fa2(j):
        def f():
            P(f"v_add_f32 v{TM}, v{TM}, v{TM+3}"); P(f"v_add_f32 v{TM+1}, v{TM+1}, v{TM+2}")
            P(f"v_add_f32 v{EE+j}, v{TM}, v{TM+1}"); P(f"v_sub_f32 v{OO+j}, v{TM}, v{TM+1}")
        return f
    def fz():
        unp(TM + 2, R1, 0); unp(TM + 3, R2, 0); P(f"v_add_f32 v{Z}, v{TM+2}, v{TM+3}"); P(f"v_sub_f32 v{Z+1}, v{TM+2}, v{TM+3}")
    def ba(j):
        def f():
            n = N0 + (j & 1)
            P(f"v_permlane32_swap_b32 v{ee(j)}, v{oo(j)}"); P(f"v_sub_f32 v{n}, v{ee(j)}, v{oo(j)}"); P(f"v_add_f32 v{ee(j)}, v{ee(j)}, v{oo(j)}")
        return f
    def bb(j):
        def f():
            n = N0 + (j & 1)
            P(f"v_permlane16_swap_b32 v{ee(j)}, v{n}"); P(f"v_sub_f32 v{oo(j)}, v{ee(j)}, v{n}"); P(f"v_add_f32 v{ee(j)}, v{ee(j)}, v{n}")
        return f
    def fb1():
        P("s_mov_b32 vcc_lo, -1"); P("s_mov_b32 vcc_hi, 0")
        P(f"s_lshl_b32 s3, s{SO}, 4"); P(f"s_add_u32 s3, s3, {SM_X256}")
        P(f"v_cndmask_b32 v{Z}, v{Z+1}, v{Z}, vcc")
        vm.issue(f"buffer_store_dword v{Z}, v{XS}, {RWS}, s3 offen sc1", "FS")
        P(f"s_and_b32 s3, s{SO}, 3"); P("s_lshl_b32 s3, s3, 6"); P(f"s_lshl_b32 s{SO+1}, s{SO+1}, 10"); P(f"s_add_u32 s3, s3, s{SO+1}")
        P(f"s_lshl_b32 s{SO}, {S_J}, 13"); P(f"s_add_u32 s{SO}, s{SO}, s3")
        P(f"s_add_u32 s{SO+1}, s{SO}, {WS_XE+MB//2}"); P(f"s_add_u32 s{SO}, s{SO}, {WS_XE}")
    def fb2(h):
        def f():
            for r in range(4 * h, 4 * h + 4): P(f"v_cvt_pk_bf16_f32 v{FO+r}, v{EE+2*r}, v{EE+2*r+1}")
            vm.issue(f"buffer_store_dwordx4 {vr(FO+4*h,4)}, v{t1}, {RWS}, s{SO+h} offen sc1", "FS")
        return f
    def gj(a):
        def f():
            if a == 0: vm.need("G"); P(f"v_mov_b32 v{GV}, 0")
            if a == 8: P("s_cmp_gt_u32 s61, 512"); P("s_cselect_b32 s3, 0x80000000, 0"); P(f"v_xor_b32 v{GV}, s3, v{GV}")
            for r in range(a, a + 2): P(f"v_dot2_f32_bf16 v{GV}, v{(GY if r < 8 else GX)+(r&7)}, v{GW+(r&7)}, v{GV}")
        return f
    v = GV
    D = [f"v_add_f32_dpp v{v}, v{v}, v{v} {m} row_mask:0xf bank_mask:0xf bound_ctrl:0" for m in ("row_shr:1", "row_shr:2", "row_shr:4", "row_shr:8")]
    D += [f"v_add_f32_dpp v{v}, v{v}, v{v} row_bcast:15 row_mask:0xa bank_mask:0xf", f"v_add_f32_dpp v{v}, v{v}, v{v} row_bcast:31 row_mask:0xc bank_mask:0xf"]
    def gst():
        P("s_lshl_b32 s3, s61, 2"); P(f"s_add_u32 s3, s3, {SM_G}")
        vm.issue(f"buffer_store_dword v{GV}, v{GS}, {RWS}, s3 offen sc1", "FS")
    def flag():
        P("s_lshl_b32 s3, s61, 3"); P(f"s_add_u32 s3, s3, {FL1}")
        P(f"v_mov_b32 v{TM}, s32"); P(f"v_mov_b32 v{TM+1}, s33"); P(f"v_mov_b32 v{TM+2}, 0")
        vm.need("FS")
        vm.issue(f"buffer_store_dwordx2 {vr(TM,2)}, v{TM+2}, {RWS}, s3 offen sc1", "F1")
    Dl = [(lambda d=d: P(d)) for d in D]
    L = [f0, fz, fa1(0), ba(8), fa2(0), bb(8)]
    for j in range(1, 8): L += [fa1(j), ba(j - 1), fa2(j), bb(j - 1)]
    L += [fb1, ba(7), gj(0), bb(7), gj(2), fb2(0), gj(4), fb2(1), gj(6), gj(8), gj(10), gj(12), gj(14)] + Dl + [gst]
    nop = lambda: None
    ff = opt.get("ffake", 0)
    if ff & 1:
        L = [f0, fz, fa1(0), nop, fa2(0), nop]
        for j in range(1, 8): L += [fa1(j), nop, fa2(j), nop]
        L += [fb1, nop, gj(0), nop, gj(2), fb2(0), gj(4), fb2(1), gj(6), gj(8), gj(10), gj(12), gj(14)] + Dl + [gst]
    if ff & 2:
        L = L[:-20] + [fb1, L[-19], L[-17], fb2(0), fb2(1)]
        st4 = nop
    if ff & 4:
        L = [fb1, fb2(0), fb2(1)]
    return [st1, st2, st3, st4, st5], L, flag

def x_job(P, vm, a, d):
    load = f"buffer_load_dwordx2 {vr(d,2)}, v{a}, {RWS}, 0 offen sc1"
    def poll():
        g1_ids(P)
        P(f"v_and_b32 v{a}, 15, v0"); P(f"v_lshlrev_b32 v{a}, 3, v{a}"); P("s_lshl_b32 s3, s55, 7"); P(f"s_add_u32 s3, s3, {FL1}"); P(f"v_add_u32 v{a}, s3, v{a}")
        vm.issue(load, "F")
        P("s_lshl_b32 s100, s55, 14"); P(f"s_lshr_b32 s3, {S_W}, 2"); P("s_lshl_b32 s3, s3, 20"); P("s_add_u32 s100, s100, s3"); P(f"s_add_u32 s100, s100, {WS_XE}")
    def check():
        vm.need("F")
        spin(P, load, flags_ok(P, d))
    def xld(k):
        def f():
            if k % 4 == 0 and k: P("s_add_u32 s100, s100, 4096")
            vm.issue(f"buffer_load_dwordx4 {vr(RET+4*k,4)}, v1, {RWS}, s100 offen offset:{1024*(k%4)} sc1", f"X{k}")
        return f
    return poll, check, xld

def phase1_C(P, opt):
    XO, XT, WA = 2, 6, 10
    SET = [dict(XO=32, XT=36, WK=40, WV=44), dict(XO=48, XT=52, WK=56, WV=60)]
    vm = VM(P); lg = LG(P)
    TL = opt.get("tl", 2)
    P(f"s_lshl_b32 s3, {S_RB}, 2"); P(f"s_and_b32 s58, {S_J}, 3"); P("s_add_u32 s3, s3, s58"); P("s_lshl_b32 s3, s3, 2"); P(f"s_add_u32 s3, s3, {S_W}"); P("s_lshl_b32 s3, s3, 14")
    T64 = opt.get("t64", 0)
    P("v_and_b32 v17, 7, v0"); P("v_lshlrev_b32 v17, 11, v17"); P("v_lshrrev_b32 v18, 3, v0"); P(f"v_lshl_add_u32 v17, v18, {7-T64}, v17"); P("v_add_u32 v17, s3, v17")
    P(f"v_mov_b32 v21, {OOB}"); P(f"v_cmp_gt_u32 vcc, {16<<T64}, v0"); P("v_cndmask_b32 v17, v21, v17, vcc")
    P(f"s_lshr_b32 s3, {S_J}, 2"); P("s_lshl_b32 s3, s3, 2"); P(f"s_add_u32 s3, s3, {S_W}"); P("s_lshl_b32 s3, s3, 1")
    P("v_and_b32 v18, 1, v0"); P("v_add_u32 v22, s3, v18")
    P("v_bfe_u32 v18, v0, 1, 1"); P("v_lshl_add_u32 v18, v18, 6, v22"); P("v_mul_u32_u24 v18, 0x1800, v18")
    P("s_lshl_b32 s3, s52, 7"); P("s_add_u32 s3, s3, 2048"); P("s_lshl_b32 s58, s53, 7"); P("s_add_u32 s58, s58, 4096")
    P("v_mov_b32 v20, s3"); P("v_mov_b32 v23, s58"); P("s_mov_b32 vcc_lo, 0x0f0f0f0f"); P("s_mov_b32 vcc_hi, 0"); P("v_cndmask_b32 v20, v23, v20, vcc"); P("v_add_u32 v18, v18, v20")
    if T64: P("v_lshrrev_b32 v20, 3, v0"); P("v_lshl_add_u32 v18, v20, 6, v18")
    P(f"v_cmp_gt_u32 vcc, {8<<T64}, v0"); P("v_cndmask_b32 v18, v21, v18, vcc")
    P("s_waitcnt lgkmcnt(0)")
    def touch(p):
        if p > 7 or opt.get("fake", 0) & 4: return
        if opt.get("rot"):
            P(f"s_add_u32 s3, s101, {2*p}"); P("s_and_b32 s3, s3, 15"); P("s_lshl_b32 s100, s3, 7")
            vm.issue(f"buffer_load_dword v24, v17, s[40:43], s100 offen")
            P("s_mul_i32 s3, s3, 393216")
        else:
            vm.issue(f"buffer_load_dword v24, v17, s[40:43], 0 offen offset:{256*p}")
            P(f"s_mov_b32 s3, {p*786432}")
        vm.issue("buffer_load_dword v24, v18, s[44:47], s3 offen")
    srd(P, 40, P_BX, 4 * MB); srd(P, 44, P_WQKV, 6 * MB)
    TS_ = {int(k): v for k, v in opt.get("tsch", {"-2": [1, 2], "0": [3], "2": [4], "4": [5], "6": [6], "8": [7]}).items()}
    for p_ in TS_.get(-2, []): touch(p_)
    P("v_lshrrev_b32 v19, 1, v0"); P("v_lshl_add_u32 v19, v19, 6, v22"); P("v_mul_u32_u24 v19, 0x1800, v19"); P(f"s_lshl_b32 s3, {S_CB}, 7"); P("v_add_u32 v19, s3, v19")
    x_addr(P, XO, 10)
    for k in range(4): P(f"v_xor_b32 v{XT+k}, 0x1000, v{XO+k}")
    P(f"s_and_b32 s57, {S_W}, 1")
    w_addr(P, WA, "s57")
    P(f"v_add_u32 v{WA}, 0x4000, v{WA}")
    P("v_lshlrev_b32 v1, 4, v0")
    P("v_mov_b32 v16, 0")
    if opt.get('wsoff'): P(f"s_add_u32 s24, s24, {opt['wsoff']*MB}"); P('s_addc_u32 s25, s25, 0')
    srd(P, 36, P_WS, WS_SIZE); srd(P, 48, P_DBG, 256)
    P(f"s_or_b32 s3, s2, {S_W}"); P("s_cmp_lg_u32 s3, 0"); P("s_cbranch_scc1 C_NN")
    P("s_memrealtime s[58:59]"); P("s_waitcnt lgkmcnt(0)"); P("s_or_b32 s58, s58, 1")
    P("v_mov_b32 v12, s58"); P("v_mov_b32 v13, s59")
    P("buffer_store_dwordx2 v[12:13], v16, s[48:51], 0 offen sc1")
    P.label("C_NN")
    NLOAD = "buffer_load_dwordx2 v[12:13], v16, s[48:51], 0 offen sc1"
    HK = {}
    def hk(p, f): HK.setdefault(p, []).append(f)
    def atouch():
        P(f"s_lshl_b32 s56, s2, 2"); P(f"s_add_u32 s56, s56, {S_WL}")
        P("s_lshr_b32 s3, s56, 4"); P("s_lshl_b32 s3, s3, 1"); P("s_and_b32 s58, s56, 1"); P("s_add_u32 s3, s3, s58"); P("s_lshl_b32 s3, s3, 14")
        P("v_and_b32 v25, 7, v0"); P("v_lshlrev_b32 v25, 11, v25"); P("v_add_u32 v25, s3, v25"); P(f"v_sub_u32 v26, {4*MB}, v25")
        P("s_mov_b32 vcc_lo, 0xff00ff00"); P("s_mov_b32 vcc_hi, 0"); P("v_cndmask_b32 v25, v25, v26, vcc")
        P("s_and_b32 s3, s56, 14"); P("s_lshl_b32 s3, s3, 6"); P("s_sub_u32 s58, 1920, s3")
        P("v_mov_b32 v26, s3"); P("v_mov_b32 v27, s58"); P("s_mov_b32 vcc_lo, 0xffff0000"); P("v_cndmask_b32 v26, v26, v27, vcc"); P("v_add_u32 v25, v25, v26")
        P("v_lshlrev_b32 v26, 7, v0"); P(f"v_add_u32 v27, {2*MB-4096}, v26"); P("s_mov_b32 vcc_lo, 0"); P("s_mov_b32 vcc_hi, 0xffff"); P("v_cndmask_b32 v25, v25, v27, vcc")
        P("s_mov_b32 vcc_hi, 0xffff0000"); P("v_cndmask_b32 v25, v25, v21, vcc")
        srd(P, 60, P_AX, 4 * MB)
        vm.issue("buffer_load_dword v24, v25, s[60:63], 0 offen")
        P(f"s_mov_b32 s60, s{P_WDR}"); P(f"s_mov_b32 s61, s{P_WDR+1}"); P(f"s_mov_b32 s62, {513*2048}")
        P("v_cmp_gt_u32 vcc, 16, v0"); P("s_lshl_b32 s3, s56, 11"); P("v_cndmask_b32 v26, v21, v26, vcc")
        vm.issue("buffer_load_dword v24, v26, s[60:63], s3 offen")
    if opt.get("at", -1) >= 0: hk(opt["at"], atouch)
    hk(opt.get("nl", 12 * 16 + 10), lambda: vm.issue(NLOAD, "N"))
    def ncheck():
        vm.need("N")
        spin(P, NLOAD, nonce_ok(P, 12))
    hk(15 * 16 + 2, ncheck)
    P("s_setprio 2")
    P("; TS 0")
    P("s_barrier")
    P("; TS 1")
    for p_ in TS_.get(-1, []): touch(p_)
    def xo(s, ks): return RET + 4 * (4 * (s - 8) + ks) if s >= 8 else SET[ks & 1]["XO"]
    def reads(s, ks):
        t = SET[ks & 1]; g = f"{s}_{ks}"
        return [(f"ds_read_b128 {vr(xo(s,ks),4)}, v{XO+ks}", "XO" + g),
                (f"ds_read_b64_tr_b16 {vr(t['WK'],2)}, v{WA} offset:{ks*2048}", "WK" + g),
                (f"ds_read_b64_tr_b16 {vr(t['WK']+2,2)}, v{WA} offset:{ks*2048+512}", "WK" + g),
                (f"ds_read_b128 {vr(t['XT'],4)}, v{XT+ks}", "XT" + g),
                (f"ds_read_b64_tr_b16 {vr(t['WV'],2)}, v{WA} offset:{8192+ks*2048}", "WV" + g),
                (f"ds_read_b64_tr_b16 {vr(t['WV']+2,2)}, v{WA} offset:{8192+ks*2048+512}", "WV" + g)]
    for r in reads(0, 0): lg.issue(*r)
    for s in range(16):
        for ks in range(4):
            t = SET[ks & 1]; g = f"{s}_{ks}"
            last = ks == 3
            R = reads(s, ks + 1) if not last else (reads(s + 1, 0) if s < 15 else [])
            d = lit(32768 if s % 5 != 4 else -131072)
            for i in range(4):
                x, xt = (xo(s, ks), "XO") if i % 2 == 0 else (t["XT"], "XT")
                w = "WK" if i < 2 else "WV"
                lg.need(xt + g, w + g)
                A, B = (t[w], x) if i < 2 else (x, t[w])
                a = ACC + 16 * i
                if opt.get("m16f", 0) & 1:
                    x2 = t["XT"] if i % 2 == 0 else xo(s, ks)
                    if i == 0: lg.need("XT" + g)
                    for hf in range(2):
                        a2 = a + 8 * (ks & 1) + 4 * hf; xx = (x, x2)[hf]
                        A, B = (t[w], xx) if i < 2 else (xx, t[w])
                        P(f"{M16} {vr(a2,4)}, {vr(A,4)}, {vr(B,4)}, {vr(a2,4) if (s or ks > 1) else 0}")
                else: P(f"{M32} {vr(a,16)}, {vr(A,4)}, {vr(B,4)}, {vr(a,16) if (s or ks) else 0}")
                if last and s < 15:
                    if i == 0:
                        for r in (XO, WA, XT): P(f"v_add_u32 v{r}, {d}, v{r}")
                    if i == 2:
                        for k in range(1, 4): P(f"v_add_u32 v{XO+k}, {d}, v{XO+k}"); P(f"v_add_u32 v{XT+k}, {d}, v{XT+k}")
                if i < 2:
                    for r in R[3 * i:3 * i + 3]: lg.issue(*r)
                if ks == 1 and i == 3:
                    P("s_barrier")
                    if s in (0, 4, 8, 12): P(f"; TS {2 + s // 4}")
                if ks == 2 and i == 0:
                    for p_ in TS_.get(s, []): touch(p_)
                    if s == opt.get("tq", 7): vm.issue("buffer_load_dword v24, v19, s[44:47], 0 offen")
                for f in HK.get(16 * s + 4 * ks + i, []): f()
                if s == 15 and ks == 0 and i == 2:
                    P(f"s_lshl_b32 s58, {S_PRB}, 2"); P(f"s_add_u32 s58, s58, {S_W}"); P("s_lshl_b32 s58, s58, 12")
                    P("s_lshl_b32 s59, s52, 1"); P("s_add_u32 s59, s59, s57")
                    P("s_lshl_b32 s60, s53, 1"); P("s_add_u32 s60, s60, s57")
                    P("s_lshl_b32 s61, s59, 18"); P("s_add_u32 s61, s61, s58"); P("s_xor_b32 s62, s61, 0x1000")
                    P("s_lshl_b32 s63, s60, 18"); P("s_add_u32 s63, s63, s58"); P("s_xor_b32 s64, s63, 0x1000")
                if s == 15 and ks == 1 and i == 2:
                    P("v_and_b32 v30, 0x33, v0")
                    P("v_bfe_u32 v31, v0, 2, 1"); P("v_lshl_or_b32 v30, v31, 3, v30")
                    P("v_bfe_u32 v31, v0, 3, 1"); P("v_lshl_or_b32 v30, v31, 2, v30")
                    P("v_lshlrev_b32 v30, 4, v30")
                if s == 15 and ks == 3 and i == 0:
                    P(f"s_lshl_b32 s3, s57, 6"); P(f"v_xor_b32 v2, s3, v{WA}"); P(f"v_add_u32 v2, {U[1]}, v2"); P("v_xor_b32 v3, 64, v2")
    P("; TS 6")
    KST = []
    for i in range(4):
        a = ACC + 16 * i; d = ACC + 8 * i
        for r in range(8): P(f"v_cvt_pk_bf16_f32 v{d+r}, v{a+2*r}, v{a+2*r+1}")
        va, off = (30, 0) if i < 2 else (1, 2048)
        for h_ in range(2):
            KVS = opt.get("kvs")
            if KVS and KVS[2 * i + h_] >= 0:
                if h_ == 0 or KVS[2 * i] < 0: P(f"s_mov_b32 s{92+i}, s{61+i}")
                KST.append((KVS[2 * i + h_], f"buffer_store_dwordx4 {vr(d+4*h_,4)}, v{102 if va == 30 else va}, {RWS}, s{92+i} offen offset:{off+1024*h_} sc1" + opt.get("kvp", "")))
            else: vm.issue(f"buffer_store_dwordx4 {vr(d+4*h_,4)}, v{va}, {RWS}, s{61+i} offen offset:{off+1024*h_} sc1" + opt.get("kvp", ""), "KV")
        if i == 2: P("v_mov_b32 v102, v30")
        if i >= 2:
            f = QF[i - 2]; o = (i - 2) * 2048; q = i - 2
            lg.issue(f"ds_read_b64_tr_b16 {vr(f,2)}, v2 offset:{o}", f"F{q}a"); lg.issue(f"ds_read_b64_tr_b16 {vr(f+2,2)}, v2 offset:{o+512}", f"F{q}a")
            lg.issue(f"ds_read_b64_tr_b16 {vr(f+4,2)}, v3 offset:{o}", f"F{q}b"); lg.issue(f"ds_read_b64_tr_b16 {vr(f+6,2)}, v3 offset:{o+512}", f"F{q}b")
    P("s_setprio 0")
    P("; TS 7")
    def kvflag0():
        P("s_add_u32 s60, s60, 32"); P("s_lshl_b32 s59, s59, 8"); P("s_lshl_b32 s60, s60, 8")
        P(f"s_lshl_b32 s3, {S_PRB}, 1"); P(f"s_lshr_b32 s58, {S_W}, 1"); P("s_add_u32 s58, s3, s58"); P("s_lshl_b32 s58, s58, 3"); P(f"s_add_u32 s58, s58, {FL2}")
        P(f"v_mov_b32 v96, s59"); P(f"v_mov_b32 v97, s60"); P("v_cmp_eq_u32 vcc, 0, v0"); P(f"v_cndmask_b32 v96, v97, v96, vcc")
        P(f"v_mov_b32 v98, s32"); P(f"v_mov_b32 v99, s33")
        P(f"v_mov_b32 v{XSA}, 0"); P(f"v_mov_b32 v{GWA}, 0")
        if "k2" in opt: P("s_mov_b32 s100, s61"); P("s_mov_b32 s101, s62")
        if "kt" in opt: P("s_and_b32 s101, s61, 0xffffe000"); P("v_lshlrev_b32 v97, 7, v0")
    def kvflag():
        vm.need("KV")
        P("; TS 8")
        vm.issue(f"buffer_store_dwordx2 v[98:99], v96, {RWS}, s58 offen sc1", "FK")
        if "kt" in opt: vm.issue(f"buffer_load_dword v103, v97, {RWS}, s101 offen" + opt["kt"], "KT")
    def slot(src, back):
        P(f"s_sub_u32 s3, {src}, {back}"); P("s_cselect_b32 s58, 12, 0"); P("s_add_u32 s3, s3, s58")
        P("s_lshl_b32 s3, s3, 1"); P("s_add_u32 s3, s3, s59"); P("s_lshl_b32 s3, s3, 12")
    def own1():
        P(f"s_and_b32 s59, {S_W}, 1"); P(f"s_xor_b32 s60, {S_W}, 1")
        slot(S_W, 2); P("v_add_u32 v96, s3, v102"); P("v_xor_b32 v97, 0x2000, v96")
        slot(S_W, 0); P("v_add_u32 v100, s3, v1"); P("v_xor_b32 v101, 0x2000, v100")
    def own2():
        slot(S_W, 1); P("v_add_u32 v98, s3, v1")
        slot("s60", 1); P("v_add_u32 v99, s3, v1")
    OW = [(96, 0, 64), (96, 1024, 68), (97, 0, 72), (97, 1024, 76), (98, 2048, 80), (100, 3072, 84), (99, 2048, 88), (101, 3072, 92)]
    H = {0: [kvflag0]}
    for n, h in enumerate(setup_hooks(P, opt)): H.setdefault(1 + n, []).append(h)
    kf = opt.get("kvflag", 12)
    for st_, tx in KST:
        assert st_ < kf
        H.setdefault(st_, []).append(lambda tx=tx: vm.issue(tx, "KV"))
    assert kf < 22
    H.setdefault(kf, []).append(kvflag)
    if "k2" in opt:
        for n in range(8):
            i, h_ = n >> 1, n & 1
            va, off = (102, 0) if i < 2 else (1, 2048)
            H.setdefault(opt["k2"] + n // opt.get("k2r", 2), []).append(lambda i=i, h_=h_, va=va, off=off: vm.issue(f"buffer_store_dwordx4 {vr(ACC+8*i+4*h_,4)}, v{va}, {RWS}, s{100+(i&1)} offen offset:{off+1024*h_}", "K2"))
    H.setdefault(22, []).append(own1); H.setdefault(23, []).append(own2)
    for n, (a, o, d) in enumerate(OW):
        H.setdefault(24 + n // 2, []).append(lambda a=a, o=o, d=d: lg.issue(f"ds_write_b128 v{a}, {vr(d,4)} offset:{o}", "OW"))
    H.setdefault(opt.get("kpC", 23), []).append(lambda: vm.issue(KLOAD, "KF"))
    qg(P, opt, "C", vm, lg, H)
    P("s_branch F_ATT")

def phase1_L(P, opt):
    vm = VM(P); lg = LG(P)
    DX, DW, XA = 2, 6, 8
    P("v_lshrrev_b32 v1, 3, v0")
    P("v_and_b32 v6, 7, v0")
    P("v_lshrrev_b32 v7, 4, v0")
    P("v_xor_b32 v8, v6, v7")
    P("v_lshlrev_b32 v8, 4, v8")
    P("v_lshl_add_u32 v8, v1, 11, v8")
    P(f"s_lshl_b32 s56, {S_RB}, 18"); P(f"s_lshl_b32 s57, {S_WL}, 16"); P("s_add_u32 s56, s56, s57")
    P("v_add_u32 v2, s56, v8")
    P("v_xor_b32 v3, 64, v2")
    P(f"v_add_u32 v3, {16384-1024}, v3")
    P(f"v_add_u32 v4, {32768-2048}, v2")
    P(f"v_add_u32 v5, {32768-2048}, v3")
    P("v_and_b32 v7, 1, v7")
    P("v_lshlrev_b32 v7, 2, v7")
    P("v_xor_b32 v6, v6, v7")
    P("v_lshlrev_b32 v6, 4, v6")
    P(f"s_lshl_b32 s56, {S_WL}, 4")
    P("v_add_u32 v1, s56, v1")
    P("v_mul_u32_u24 v1, 0x1800, v1")
    P("v_add_u32 v6, v1, v6")
    P(f"v_add_u32 v7, {8*6144-1024}, v6")
    P("s_lshl_b32 s52, s52, 7"); P("s_add_u32 s52, s52, 2048")
    P("s_lshl_b32 s53, s53, 7"); P("s_add_u32 s53, s53, 4096")
    P(f"s_lshl_b32 s58, {S_WL}, 12")
    P(f"s_lshl_b32 s59, {S_WL}, 11")
    P(f"s_lshl_b32 s60, {S_CB}, 7")
    P("s_waitcnt lgkmcnt(0)")
    if opt.get("ts0"): P("; TS 19")
    srd(P, 40, P_BX, 4 * MB); srd(P, 44, P_WQKV, 6 * MB)
    ROT = opt.get("rot")
    def D(n, part=None):
        u = U[n % 5]; t = f"D{n}"
        if n < 16:
            fk = opt.get("fake", 0)
            nx = n % 2 if fk & 1 else n; nw = n % 2 if fk & 2 else n
            P(f"s_add_u32 m0, s58, {u}")
            if ROT: P(f"s_add_u32 s3, s101, {nx}"); P("s_and_b32 s3, s3, 15"); P("s_lshl_b32 s3, s3, 7")
            else: P(f"s_movk_i32 s3, {nx*128}")
            for i in range(4): vm.issue(f"buffer_load_dwordx4 v{DX+i}, s[40:43], s3 offen offset:{1024*i} lds", t)
            subs = [(16384, "s52", nw), (24576, "s53", nw)]
        else:
            q = n - 16
            subs = [(8192 * b, "s60", (b >> 1) * 8 + 2 * q + (b & 1)) for b in range(4)]
        if part is not None: subs = subs[part:part + 1]
        for lo, sc, st in subs:
            P(f"s_add_u32 m0, s59, {u+lo}")
            if ROT: P(f"s_add_u32 s3, s101, {st}"); P("s_and_b32 s3, s3, 15"); P("s_mul_i32 s3, s3, 393216"); P(f"s_add_u32 s3, s3, {sc}")
            else: P(f"s_add_u32 s3, {sc}, {st*393216}")
            vm.issue(f"buffer_load_dwordx4 v{DW}, s[44:47], s3 offen lds", t)
            vm.issue(f"buffer_load_dwordx4 v{DW+1}, s[44:47], s3 offen offset:1024 lds", t)
    pre0 = opt.get("pre0", 2)
    for n in range(pre0): D(n)
    if opt.get("ts0"): P("; TS 23")
    if opt.get('wsoff'): P(f"s_add_u32 s24, s24, {opt['wsoff']*MB}"); P('s_addc_u32 s25, s25, 0')
    srd(P, 36, P_WS, WS_SIZE); srd(P, 48, P_DBG, 256)
    x_addr(P, XA, 18)
    P("v_lshlrev_b32 v1, 4, v0")
    P("v_mov_b32 v16, 0")
    NLOAD = "buffer_load_dwordx2 v[12:13], v16, s[48:51], 0 offen sc1"
    def ret(s):
        for ks in range(4): lg.issue(f"ds_read_b128 {vr(RET+16*s+4*ks,4)}, v{XA+ks}", "R")
        d = lit(32768 if s % 5 != 4 else -131072)
        for ks in range(4): P(f"v_add_u32 v{XA+ks}, {d}, v{XA+ks}")
    vm.need("D0")
    P("; TS 0")
    P("s_barrier")
    P("; TS 1")
    ret(0)
    la = opt.get("la", [4])
    def LA(n): return la[min(n + 1, len(la) - 1)]
    nxt = pre0
    while nxt < LA(-1): D(nxt); nxt += 1
    hooks = setup_hooks(P, opt)
    FK = opt.get("fkv")
    fstart, fparts, fflag = fold_job(P, vm, lg, 1 if FK else 0, opt)
    for n in range(16):
        vm.need(f"D{n+1}")
        lg.drain()
        P("s_barrier")
        if n in (0, 4, 8, 12): P(f"; TS {2 + n // 4}")
        if n < 7 and not opt.get("fake", 0) & 8: ret(n + 1)
        if n == 9: vm.issue(NLOAD, "N")
        while nxt <= n + LA(n): D(nxt); nxt += 1
        if FK:
            if n == FK[0]:
                for h in fstart: h()
            if n >= FK[1]:
                for h in fparts[:FK[2]]: h()
                fparts = fparts[FK[2]:]
        if n == 13:
            vm.need("N")
            spin(P, NLOAD, nonce_ok(P, 12))
    assert nxt == 20
    P("; TS 6")
    w_addr(P, 2, "1"); P(f"v_add_u32 v2, {U[1]}, v2"); P("v_xor_b32 v3, 64, v2")
    for i in range(2):
        f = QF[i]; o = i * 2048
        lg.issue(f"ds_read_b64_tr_b16 {vr(f,2)}, v2 offset:{o}", f"F{i}a"); lg.issue(f"ds_read_b64_tr_b16 {vr(f+2,2)}, v2 offset:{o+512}", f"F{i}a")
        lg.issue(f"ds_read_b64_tr_b16 {vr(f+4,2)}, v3 offset:{o}", f"F{i}b"); lg.issue(f"ds_read_b64_tr_b16 {vr(f+6,2)}, v3 offset:{o+512}", f"F{i}b")
    H = {}
    for n in range(16, 19): H[f"pre{n}"] = (lambda n=n: vm.need(f"D{n+1}"))
    if not opt.get("d19", 1):
        for b in range(4): H.setdefault(b, []).append(lambda b=b: D(19, b))
    fa = opt.get("foat", 6)
    if FK:
        assert not fparts
        fstart = []; fa = opt.get("foat", -4)
    for n, h in enumerate(fstart): H.setdefault(fa + n, []).append(h)
    for n, h in enumerate(hooks): H.setdefault(fa + 5 + n, []).append(h)
    f0 = opt.get("fold", 19); fr = opt.get("foldr", 5)
    assert FK or (f0 >= 7 and fa + 3 >= 8 and f0 + (len(fparts) - 1) // fr < 32)
    for n, f in enumerate(fparts): H.setdefault(f0 + n // fr, []).append(f)
    fl = opt.get("fflag", -1)
    if fl >= 0:
        assert FK or fl > f0 + len(fparts) // fr
        H.setdefault(fl, []).append(fflag)
    H.setdefault(opt.get("kpL", 24), []).append(lambda: vm.issue(KLOAD, "KF"))
    qg(P, opt, "L", vm, lg, H)

ONES, LS, Q, K, V, C, O, SA, SB = 8, 12, 16, 24, 32, 40, 56, 72, 88
RW = 105
TR, AC, AF, PA, RA, RD, CW, CC, G5, CV = 128, 192, 208, 220, 228, 232, 236, 244, 252, 254
DO = GAD
WOU = [3, 4, 1, 2]
S_CR = "s99"

def g2_dma(P):
    def a():
        P(f"s_lshl_b32 s57, {S_XCD}, 2"); P(f"s_and_b32 s3, {S_J}, 3"); P("s_add_u32 s57, s57, s3")
        P("s_cmp_eq_u32 s65, 0")
        P(f"s_cselect_b32 s44, s{P_WSR}, s{P_WSI}"); P(f"s_cselect_b32 s45, s{P_WSR+1}, s{P_WSI+1}"); P(f"s_mov_b32 s46, {8*MB}")
        P(f"s_and_b32 s100, {S_W}, 2"); P(f"s_and_b32 s101, {S_W}, 1")
        P("s_lshr_b32 s59, s57, 1"); P("s_lshl_b32 s59, s59, 18"); P("s_and_b32 s3, s57, 1"); P("s_lshl_b32 s3, s3, 12"); P("s_add_u32 s59, s59, s3")
        P("s_lshl_b32 s3, s100, 16"); P("s_add_u32 s59, s59, s3"); P("s_lshl_b32 s3, s101, 9"); P("s_add_u32 s59, s59, s3")
        P("v_lshrrev_b32 v6, 4, v0"); P("v_and_b32 v7, 15, v0"); P("v_xor_b32 v7, v7, v6"); P("v_lshlrev_b32 v7, 4, v7")
    def b():
        P("v_lshl_add_u32 v7, v6, 13, v7"); P(f"v_add_u32 v{WD}, s59, v7")
        P("s_lshr_b32 s59, s65, 4"); P("s_lshl_b32 s3, s101, 13"); P("s_add_u32 s59, s59, s3"); P("s_lshl_b32 s3, s100, 11"); P("s_add_u32 s59, s59, s3")
    def c():
        for n in range(1, 4):
            P(f"v_xor_b32 v{WD+n}, {n<<6}, v{WD}"); P(f"v_add_u32 v{WD+n}, {(4*n<<13) - 1024*n}, v{WD+n}")
    return [a, b, c]

def g2_ids(P):
    def a():
        P(f"s_lshr_b32 s54, {S_W}, 2"); P(f"s_bfe_u32 s55, {S_W}, 0x10001"); P(f"s_and_b32 s56, {S_W}, 1")
        P(f"s_lshr_b32 s58, {S_J}, 2"); P("s_lshl_b32 s58, s58, 1"); P("s_add_u32 s58, s58, s55")
    def f():
        P("s_lshl_b32 s3, s54, 4"); P("s_add_u32 s3, s3, s58"); P("s_lshl_b32 s3, s3, 1"); P("s_and_b32 s60, s57, 1"); P("s_add_u32 s3, s3, s60")
        P("s_lshl_b32 s3, s3, 1"); P("s_add_u32 s3, s3, s56"); P("s_lshl_b32 s60, s3, 14"); P("s_lshl_b32 s3, s3, 7"); P(f"s_add_u32 s3, s3, {FL3}")
        P(f"s_add_u32 s60, s60, {WS_TE}")
        P(f"v_and_b32 v{FA}, 15, v0"); P(f"v_lshlrev_b32 v{FA}, 3, v{FA}"); P(f"v_add_u32 v{FA}, s3, v{FA}")
    return [a, f]

def op_ids(P):
    P(f"s_and_b32 s61, {S_XCD}, 1"); P("s_lshl_b32 s61, s61, 3"); P(f"s_lshr_b32 s3, {S_J}, 3"); P("s_lshl_b32 s3, s3, 1"); P("s_add_u32 s61, s61, s3")
    P(f"s_bfe_u32 s3, {S_XCD}, 0x10001"); P("s_add_u32 s61, s61, s3")
    P(f"s_lshr_b32 s62, {S_XCD}, 2"); P("s_lshl_b32 s62, s62, 3"); P(f"s_and_b32 s3, {S_J}, 7"); P("s_add_u32 s62, s62, s3")

def attention(P, opt):
    vm = VM(P); lg = LG(P)
    vm.now = -2
    ool = []
    P.label("F_ATT")
    P("; TS 9")
    def kv_upd():
        P(f"v_cmp_eq_u64 vcc, {NON}, {vr(FV,2)}")
        P("s_and_b32 s53, vcc_lo, vcc_hi")
    def kv_ok(bits):
        def f():
            kv_upd()
            P(f"s_andn2_b32 s3, {bits}, s53")
            P("s_cmp_eq_u32 s3, 0")
        return f
    def kvp(u, *pcs):
        def a():
            P(f"s_add_u32 m0, s52, {U[u % 3]}")
            last = None
            for pc in pcs:
                d = (2, 2, 1, 0)[pc]
                if d != last: P(f"s_add_u32 s3, {S_K}, {(4 * u + d) * 4096}"); P(f"s_xor_b32 s3, s3, {S_PRB}" if opt.get("xo") else "s_and_b32 s3, s3, 0x3ffff")
                last = d
                vm.issue(f"buffer_load_dwordx4 v4, s[40:43], s3 offen offset:{1024*pc} sc1 lds", f"H{u}")
        return a
    P(f"s_lshl_b32 s3, {S_W}, 12"); P(f"s_add_u32 s3, s3, {U[3]}")
    P("v_add_u32 v2, s3, v1"); P("v_xor_b32 v3, 0x4000, v2")
    P("s_waitcnt vmcnt(0)")
    spin(P, KLOAD, kv_ok("28"))
    P("; TS 10")
    P(f"s_cmp_lt_u32 {S_WL}, 2"); P("s_cbranch_scc1 A_N0")
    kvp(0, 0, 1)()
    P(f"s_cmp_lt_u32 {S_WL}, 3"); P("s_cbranch_scc1 A_N0")
    kvp(0, 2)()
    P.label("A_N0")
    for g in range(4):
        lg.issue(f"ds_write_b128 v2, {vr(QX+4*g,4)} offset:{1024*g}", "QW")
        kvp(1, g)()
    P("v_mov_b32 v5, 0xdddddddd")
    P("v_and_b32 v6, 7, v0"); P("v_mov_b32 v7, 0x3f803f80")
    P("v_cmp_eq_u32 vcc, 0, v6"); P(f"v_cndmask_b32 v{ONES}, 0, v7, vcc"); P(f"v_cndmask_b32 v{ONES+1}, 0, v7, vcc")
    P("v_cmp_eq_u32 vcc, 4, v6"); P(f"v_cndmask_b32 v{ONES+2}, 0, v7, vcc"); P(f"v_cndmask_b32 v{ONES+3}, 0, v7, vcc")
    for i in range(4): P(f"v_mov_b32 v{LS+i}, 0")
    P("s_waitcnt lgkmcnt(0)"); lg.q = []
    P("s_barrier")
    for g in range(4): lg.issue(f"ds_read_b128 {vr(QP+4*g,4)}, v3 offset:{1024*g}", f"QP{g}")
    P(f"s_mov_b32 s3, {f32hex(math.log2(math.e) / math.sqrt(32.0))}")
    P("s_lshr_b32 s62, s65, 6"); P("v_add_u32 v2, s62, v1"); P("v_add_u32 v3, 0xc000, v2")
    def at(t, off):
        sl = (t - (2, 2, 1, 0)[off >> 10]) % 12
        return f"v{2 + sl // 6} offset:{(sl % 6) * 8192 + off}"
    lg.issue(f"ds_read_b128 {vr(K,4)}, {at(0,0)}", "K0"); lg.issue(f"ds_read_b128 {vr(K+4,4)}, {at(0,1024)}", "K1")
    for g in range(4):
        lg.need(f"QP{g}")
        for i in range(4 * g, 4 * g + 4): P(f"v_add_f32 v{QO+i}, v{QO+i}, v{QP+i}")
        for i in range(4 * g, 4 * g + 4): P(f"v_mul_f32 v{QO+i}, s3, v{QO+i}")
        for i in range(2 * g, 2 * g + 2): P(f"v_cvt_pk_bf16_f32 v{Q+i}, v{QO+2*i}, v{QO+2*i+1}")
    P("; TS 11")
    P(f"s_mov_b32 s62, {f32hex(float(opt.get('margin', 88)))}")
    lg.need("K0"); P(f"{M32} {vr(SA,16)}, {vr(K,4)}, {vr(Q,4)}, 0")
    lg.need("K1"); P(f"{M32} {vr(SA,16)}, {vr(K+4,4)}, {vr(Q+4,4)}, {vr(SA,16)}")
    lg.issue(f"ds_read_b128 {vr(K,4)}, {at(1,0)}", "K0")
    lg.issue(f"ds_read_b128 {vr(K+4,4)}, {at(1,1024)}", "K1")
    lg.issue(f"ds_read_b128 {vr(V,4)}, {at(0,2048)}", "V0")
    for i in range(16): P(f"v_mov_b32 v{O+i}, 0")
    P(f"v_max3_f32 v6, v{SA}, v{SA+1}, v{SA+2}")
    for i in range(3, 15, 2): P(f"v_max3_f32 v6, v6, v{SA+i}, v{SA+i+1}")
    P(f"v_max_f32 v6, v6, v{SA+15}")
    P("v_mov_b32 v7, v6"); P("v_permlane32_swap_b32 v6, v7"); P("v_max_f32 v6, v6, v7")
    P("v_add_f32 v6, s62, v6")
    for i in range(16): P(f"v_sub_f32 v{SA+i}, v{SA+i}, v6")
    for i in range(16): P(f"v_sub_f32 v{C+i}, 0, v6")

    X = {t: [] for t in range(64)}
    PRE = {t: [] for t in range(64)}
    def add(t, *fs): X[t].extend(fs)
    def ld(text, tag=None): return lambda: vm.issue(text, tag)
    def bar_after(t): return (t // 4 + 1) * 4
    def bar_upto(t): return t // 4 * 4
    sch = dict(cw=5, wd=[2, 2, 2, 3, 0, 1, 1, 1], f1p=6, x=8, xr=3, g1=13, f3=22, ws=[20, 22, 36, 40], tp=25, t=27,
               tt=[27, 27, 28, 28, 29, 29, 30, 30, 30, 31, 31, 31, 32, 32, 33, 33, 38, 38, 39, 39, 42, 42, 43, 43, 44, 44, 45, 45, 46, 46, 47, 47],
               g2=[32, 36, 44, 48], cc=34, wot=35, cj=39, wo=[48, 52, 56, 60], po=16, pf=24)
    NR = opt.get("nr", 2); N1 = opt.get("n1", 8)
    if NR == 2: sch.update(dict(g2t=list(range(32, 48)), tt=[27, 27, 28, 28, 29, 29, 30, 30, 31, 32, 33, 34, 35, 36, 37, 38], ws=[20, 22], tw=42, xr=2, wd=[2, 2, 2, 3]))
    sch.update(opt.get("sch", {}))
    NCHK = opt.get("nchk", 2)
    def chk(e):
        def f():
            m = lit((1 << (2 * e + 7)) - 4) if e < NCHK else "-1"
            vm.need("KF"); kv_upd()
            P(f"s_andn2_b32 s3, {m}, s53"); P(f"s_cbranch_scc1 KS{e}")
            P.label(f"KB{e}")
            def o():
                P.label(f"KS{e}")
                P(f"s_mov_b32 s62, {m}")
                P(f"s_call_b64 {LINK}, KVSPIN")
                P(f"s_branch KB{e}")
            ool.append(o)
        return f
    add(0, ld(KLOAD, "KF"))
    PRE[2].append(lambda: vm.need("H0"))
    add(3, chk(1), kvp(2, 0, 1))
    for e in range(1, 16):
        t = 4 * e
        if 1 < e <= NCHK: PRE[t].append(chk(e))
        if e < NCHK: add(t, ld(KLOAD, "KF"))
        PRE[t].append(lambda e=e: vm.need(f"H{e}"))
        if e == 1:
            add(4, kvp(2, 2), kvp(2, 3)); add(5, kvp(3, 0)); add(6, kvp(3, 1)); add(7, kvp(3, 2), kvp(3, 3))
        elif e + 2 < 16:
            for pc in range(4): add(t + pc, kvp(e + 2, pc))
    def dma(tag, unit, so, areg, i, base, xo=None):
        def f():
            P(f"s_add_u32 m0, {base}, {U[unit]}"); P(f"s_xor_b32 s3, {xo}, {so}" if xo else f"s_mov_b32 s3, {so}")
            vm.issue(f"buffer_load_dwordx4 v{areg+i}, s[44:47], s3 offen offset:{1024*i} lds", tag)
        return f
    WDU = opt.get("wdu", 3)
    assert WDU == 4 or min(sch["wd"]) >= 2
    for n, t in enumerate(sch["wd"]):
        if not (opt.get("fk3", 0) & 2 and n & 1 or opt.get("fk3", 0) & 8): add(t, dma("WD", WDU, 0, WD, n, "s57"))
    def cw():
        P(f"s_lshl_b32 {S_CR}, {S_XCD}, 2"); P(f"s_and_b32 s3, {S_J}, 3"); P(f"s_add_u32 {S_CR}, {S_CR}, s3"); P(f"s_lshl_b32 {S_CR}, {S_CR}, 5")
        P(f"s_andn2_b32 s3, {S_J}, 3"); P(f"s_add_u32 {S_CR}, {S_CR}, s3"); P(f"s_add_u32 {S_CR}, {S_CR}, {S_WL}")
        P("s_lshl_b32 s3, s2, 3"); P(f"s_add_u32 s3, s3, {S_W}"); P("s_cmp_eq_u32 s3, 4")
        P(f"s_cselect_b32 {S_CR}, 0x400, {S_CR}"); P(f"s_cselect_b32 s100, 0, {S_W}")
        P(f"s_lshl_b32 s3, {S_CR}, 12")
        P("s_cmp_lt_u32 s100, 4")
        P(f"s_cselect_b32 s48, s{P_WSR}, s{P_WSI}"); P(f"s_cselect_b32 s49, s{P_WSR+1}, s{P_WSI+1}"); P(f"s_mov_b32 s50, {8*MB}")
        P(f"s_cselect_b32 {S_CR}, {S_CR}, 0x10000")
        vm.issue(f"buffer_load_dwordx4 {vr(CW,4)}, v1, s[48:51], s3 offen", "CW")
    add(sch["cw"], cw)
    def nonce_v():
        P("v_mov_b32 v6, s32"); P("v_mov_b32 v7, s33"); P(f"v_mov_b32 v{XSA}, 0")
    def check(tag, name, load, v=FV):
        def f():
            vm.need(tag)
            flags_ok(P, v)()
            P(f"s_cbranch_scc0 {name}_O")
            P.label(name + "_B")
            def o():
                P.label(name + "_O")
                spin(P, load, flags_ok(P, v))
                P(f"s_branch {name}_B")
            ool.append(o)
        return f
    add(max(sch["wd"]) + 2, *g2_dma(P))
    XF, GF, GA, GI, GC = 128, [192, 200, 208], 216, 224, 228
    def x512():
        P(f"v_and_b32 v{F1A}, 48, v0"); P("s_lshl_b32 s3, s55, 6"); P("s_lshr_b32 s56, s65, 6"); P("s_add_u32 s3, s3, s56"); P(f"s_add_u32 s3, s3, {SM_X256}")
        P("s_lshr_b32 s56, s65, 18"); P("s_xor_b32 s56, s56, s54"); P("s_bitcmp0_b32 s56, 0"); P(f"s_cselect_b32 s3, s3, {OOB}")
        vm.issue(f"buffer_load_dwordx4 {vr(GC,4)}, v{F1A}, {RWS}, s3 offen sc1", "X512")
    if opt.get("fflag", -1) < 0:
        def f1flag():
            nonce_v()
            P("s_lshl_b32 s3, s61, 3"); P(f"s_add_u32 s3, s3, {FL1}"); P(f"s_cmp_lt_u32 {S_W}, 4"); P(f"s_cselect_b32 s3, {OOB}, s3")
            vm.issue(f"buffer_store_dwordx2 v[6:7], v{XSA}, {RWS}, s3 offen sc1", "F1")
        X[0].insert(0, f1flag)
    FLOAD = f"buffer_load_dwordx2 {vr(CV,2)}, v{F1A}, {RWS}, 0 offen sc1"
    def fpoll():
        P(f"v_and_b32 v{F1A}, 31, v0"); P(f"v_lshlrev_b32 v{F1A}, 3, v{F1A}"); P("s_and_b32 s3, s55, 31"); P("s_lshl_b32 s3, s3, 8"); P(f"s_add_u32 s3, s3, {FL1}"); P(f"v_add_u32 v{F1A}, s3, v{F1A}")
        vm.issue(FLOAD, "F")
    add(sch["f1p"], fpoll)
    def xbase():
        P("s_lshl_b32 s56, s55, 13"); P("s_lshl_b32 s3, s65, 2"); P("s_add_u32 s56, s56, s3"); P("s_and_b32 s3, s54, 1"); P("s_lshl_b32 s3, s3, 19"); P("s_add_u32 s56, s56, s3"); P(f"s_add_u32 s56, s56, {WS_XE}")
    add(sch["x"], check("F", "CK1", FLOAD, CV), x512, xbase)
    xr = sch["xr"]
    def xld(k):
        def f():
            if k % 4 == 0 and k: P("s_add_u32 s56, s56, 4096")
            if opt.get("fk3", 0) & 8: return
            vm.issue(f"buffer_load_dwordx4 {vr(XF+4*k,4)}, v1, {RWS}, s56 offen offset:{1024*(k%4)} sc1", f"X{k}")
        return f
    for k in range(N1): add(sch["x"] + (k + 1) // xr, xld(k))
    def g1rd(k):
        def f():
            g = GF[k % 3]; o = (k >> 3) * 32768 + ((k >> 2) & 1) * 8192
            if opt.get("fk3", 0) & 8: return
            lg.issue(f"ds_read_b128 {vr(g,4)}, v{GAD+(k&3)} offset:{o}", f"G{k}a")
            if not opt.get("fk3", 0) & 2: lg.issue(f"ds_read_b128 {vr(g+4,4)}, v{GAD+(k&3)} offset:{o+4096}", f"G{k}b")
        return f
    def g1mm(k):
        def f():
            g = GF[k % 3]
            vm.need(f"X{k}")
            for half in range(0 if opt.get("fk3", 0) & 8 else 1 if opt.get("fk3", 0) & 2 else 2):
                lg.need(f"G{k}" + "ab"[half])
                a = GA + 4 * half
                P(f"{M16} {vr(a,4)}, {vr(XF+4*k,4)}, {vr(g+4*half,4)}, {vr(a,4) if k else vr(GI,4)}")
            if k + 2 < N1: g1rd(k + 2)()
        return f
    def ginit():
        vm.need("X512")
        P(f"v_lshlrev_b32 v{F1A}, 31, v0")
        for i in range(4): P(f"v_xor_b32 v{GI+i}, v{F1A}, v{GC+i}")
    t0 = sch["g1"]
    PRE[bar_upto(t0 - 1)].append(lambda: vm.need("WD"))
    assert bar_upto(t0 - 1) > max(sch["wd"])
    add(t0 - 1, g1rd(0), g1rd(1)); add(t0, ginit)
    gr = sch.get("gr", xr)
    for k in range(N1): add(t0 + (k + 1) // gr, g1mm(k))
    t1 = t0 + N1 // gr + 1
    def cchain():
        P("s_or_b32 s56, s54, s65"); P("s_cmp_lg_u32 s56, 0"); P("s_cbranch_scc1 C_NOC")
        for i in range(4): P(f"v_mov_b32 v{GF[0]+i}, 0xbf803f80")
        for k in range(N1): P(f"{M16} {vr(GC,4)}, {vr(XF+4*k,4)}, {vr(GF[0],4)}, {vr(GC,4)}")
        P(f"v_cvt_pk_bf16_f32 v{GC}, v{GC}, v{GC+1}"); P(f"v_cvt_pk_bf16_f32 v{GC+1}, v{GC+2}, v{GC+3}")
        P.label("C_NOC")
        P(f"v_lshrrev_b32 v{F1A}, 4, v0"); P(f"v_lshlrev_b32 v{F1A}, 3, v{F1A}")
        P("s_lshl_b32 s3, s55, 5"); P(f"s_add_u32 s3, s3, {SM_C}"); P("s_cmp_eq_u32 s56, 0"); P(f"s_cselect_b32 s3, s3, {OOB}")
        vm.issue(f"buffer_store_dwordx2 {vr(GC,2)}, v{F1A}, {RWS}, s3 offen sc1", "TS")
    def tstore():
        for i in range(4): P(f"v_cvt_pk_bf16_f32 v{GI+i}, v{GA+2*i}, v{GA+2*i+1}")
        P(f"v_permlane16_swap_b32 v{GI}, v{GI+2}"); P(f"v_permlane16_swap_b32 v{GI+1}, v{GI+3}")
        P("s_lshr_b32 s61, s65, 14"); P("s_add_u32 s61, s61, s54"); P("s_lshl_b32 s61, s61, 6"); P("s_add_u32 s61, s61, s55")
        P("s_lshl_b32 s3, s61, 10"); P(f"s_add_u32 s3, s3, {WS_TE}")
        vm.issue(f"buffer_store_dwordx4 {vr(GI,4)}, v1, {RWS}, s3 offen sc1", "TS")
        P("s_lshl_b32 s61, s61, 3"); P(f"s_add_u32 s61, s61, {FL3}")
    add(t1, tstore, cchain)
    assert 4 * NCHK <= t1 and sch["f3"] > t1 and sch["tp"] > t1 + 1 and bar_upto(sch["ws"][WDU - 3]) >= t1 and min(sch["ws"]) > max(sch["wd"]) + 2
    add(t1 + 1, *g2_ids(P))
    def f3flag():
        nonce_v()
        vm.need("TS")
        vm.issue(f"buffer_store_dwordx2 v[6:7], v{XSA}, {RWS}, s61 offen sc1", "F3")
    X[sch["f3"]].insert(0, f3flag)
    for r in range(NR):
        for n in range(0 if opt.get("fk3", 0) & 4 else 4): add(sch["ws"][r] + n // 2, dma(f"WS{r}", 3 + (r & 1), r * 256, WD, n, "s59"))
    def pa1():
        P("s_lshl_b32 s63, s54, 1"); P("s_add_u32 s63, s63, s56")
        P("s_lshl_b32 s3, s63, 3"); P("v_xor_b32 v6, s3, v0")
        P("v_lshrrev_b32 v7, 5, v6"); P(f"v_and_b32 v{PA}, 15, v6"); P(f"v_xor_b32 v7, v7, v{PA}"); P("v_lshlrev_b32 v7, 4, v7"); P("v_and_b32 v6, 31, v6")
        P(f"v_lshl_add_u32 v{PA}, v6, 8, v7"); P("s_lshl_b32 s3, s63, 13"); P(f"s_add_u32 s3, s3, {U[3]}"); P(f"v_add_u32 v{PA}, s3, v{PA}")
    def pa2():
        for k in range(1, 8): P(f"v_xor_b32 v{PA+k}, {k<<5}, v{PA}")
    def ra():
        P("s_or_b32 s53, s57, s54")
        P("v_and_b32 v6, 31, v0"); P("v_cmp_eq_u32 vcc, 0, v6"); P("v_cmp_eq_u32 s[100:101], 17, v6"); P("s_or_b64 vcc, vcc, s[100:101]")
        P("v_mov_b32 v7, 0xbf803f80")
        for i in range(4): P(f"v_cndmask_b32 v{RA+i}, 0, v7, vcc")
    add(sch["f3"] + 1, pa1); add(sch["f3"] + 2, pa2); add(sch["f3"] + 3, ra)
    CLOAD = f"buffer_load_dwordx2 {vr(CV,2)}, v{F1A}, {RWS}, 0 offen sc1"
    def cpoll():
        P(f"v_lshlrev_b32 v{F1A}, 3, v0"); P(f"v_add_u32 v{F1A}, {FL3}, v{F1A}")
        vm.issue(CLOAD, "CF")
    add(sch["tp"], ld(KLOAD, "TF")); add(sch.get("cp", sch["cc"] - 3), cpoll)
    add(sch["t"], check("TF", "CK2", KLOAD))
    FK3 = opt.get("fk3", 0)
    def tld(i):
        def f():
            if i % 4 == 0 and i: P("s_add_u32 s60, s60, 4096")
            if FK3 & 1 and i & 1 or FK3 & 4: return
            vm.issue(f"buffer_load_dwordx4 {vr(TR+4*(i&15),4)}, v1, {RWS}, s60 offen offset:{1024*(i%4)} sc1", f"T{i}")
        return f
    G2T = sch.get("g2t") or [sch["g2"][i >> 3] + (i & 7) // 2 for i in range(32)]
    for i, t in enumerate(sch["tt"]):
        assert t >= sch["t"] and (i < 16 or t > G2T[(i - 16) | 7]) and t < G2T[i]
        add(t, tld(i))
    def cc():
        P(f"s_and_b32 s3, {S_CR}, 1"); P("s_lshl_b32 s3, s3, 10"); P(f"s_add_u32 s3, s3, {SM_C}")
        vm.issue(f"buffer_load_dwordx4 {vr(CC,4)}, v1, {RWS}, s3 offen sc1", "CC")
        P(f"s_lshl_b32 s3, {S_CR}, 31"); P("s_lshr_b32 s3, s3, 1"); P(f"s_add_u32 s3, s3, {SM_G+2048}")
        vm.issue(f"buffer_load_dword v{G5}, v{XSA}, {RWS}, s3 offen sc1", "CC")
    def ge():
        P("s_lshr_b32 s3, s58, 1"); P("s_lshl_b32 s3, s3, 6"); P("s_add_u32 s3, s3, s55"); P("s_and_b32 s100, s57, 1"); P("s_lshl_b32 s100, s100, 9"); P("s_add_u32 s3, s3, s100")
        P(f"v_and_b32 v{F1A}, 31, v0"); P(f"v_lshlrev_b32 v{F1A}, 2, v{F1A}")
        P("s_lshl_b32 s3, s3, 2"); P(f"v_lshl_add_u32 v6, v{F1A}, 1, s3")
        P(f"v_mov_b32 v7, {OOB}"); P("v_cmp_eq_u32 vcc, 0x800, v6"); P("v_cndmask_b32 v6, v6, v7, vcc")
        P(f"s_mov_b32 s3, {SM_G}")
        vm.issue(f"buffer_load_dword v{RW}, v6, {RWS}, s3 offen sc1", "GE")
    add(sch["cc"], check("CF", "CK3", CLOAD, CV), cc, ge)
    def wot():
        op_ids(P)
        P(f"s_mov_b32 s48, s{P_WO}"); P(f"s_mov_b32 s49, s{P_WO+1}"); P(f"s_mov_b32 s50, {2*MB}")
        P(f"s_lshr_b32 s3, {S_J}, 3"); P("s_lshl_b32 s3, s3, 3"); P(f"s_add_u32 s3, s3, {S_W}"); P("s_lshl_b32 s3, s3, 16"); P("s_lshl_b32 s100, s62, 7"); P("s_add_u32 s3, s3, s100")
        P(f"v_lshlrev_b32 v6, 9, v{F1A}")
        if not opt.get("nowot"): vm.issue("buffer_load_dword v126, v6, s[48:51], s3 offen", "WT")
    assert sch["wot"] >= sch["cc"] and sch["cj"] > sch["wot"]
    add(sch["wot"], wot)
    def cjob():
        vm.need("CC", "CW")
        P(f"s_cmp_eq_u32 {S_CR}, 0x10000"); P("s_cbranch_scc1 CJ0")
        P(f"s_lshr_b32 s3, {S_CR}, 1"); P("s_lshl_b32 s3, s3, 31"); P(f"v_xor_b32 v{G5}, s3, v{G5}")
        P(f"v_mov_b32 v{CV}, 0")
        for r in range(4): P(f"v_dot2_f32_bf16 v{CV}, v{CW+r}, v{CC+r}, v{CV}")
        dpp_sum(P, CV)
        P(f"v_add_f32 v{CV}, v{CV}, v{G5}"); P(f"v_cvt_pk_bf16_f32 v{CV}, v{CV}, v{CV}")
        P.label("CJ0")
        P(f"v_mov_b32 v{CV+1}, {OOB}"); P("v_cmp_eq_u32 vcc, 63, v0"); P(f"v_cndmask_b32 v{CV+1}, v{CV+1}, 0, vcc")
        P(f"s_mov_b32 s48, s{P_OUT}"); P(f"s_mov_b32 s49, s{P_OUT+1}"); P(f"s_mov_b32 s50, {8*MB}")
        P(f"s_lshl_b32 s3, {S_CR}, 12"); P("s_add_u32 s100, s3, 1024"); P(f"s_sub_u32 s3, {8*MB+1024}, s3")
        vm.issue(f"buffer_store_short v{CV}, v{CV+1}, s[48:51], s100 offen", "CS"); vm.issue(f"buffer_store_short v{CV}, v{CV+1}, s[48:51], s3 offen", "CS")
    add(sch["cj"], cjob)
    def rd(i):
        def f():
            r, k = i >> 3, i & 7
            if FK3 & 1 and i & 1 or FK3 & 4: return
            lg.issue(f"ds_read_b128 {vr(AF+4*(i%3),4)}, v{PA+k} offset:{32768*(r&1)}", f"A{i}")
        return f
    def g2mm(i):
        def f():
            if FK3 & 1 and i & 1 or FK3 & 4: return
            lg.need(f"A{i}"); vm.need(f"T{i}")
            P(f"{M32} {vr(AC,16)}, {vr(AF+4*(i%3),4)}, {vr(TR+4*(i&15),4)}, {vr(AC,16) if i else 0}")
            if (i & 7) < 6: rd(i + 2)()
        return f
    def rowjob(r):
        def f():
            P("s_cmp_lg_u32 s53, 0"); P(f"s_cbranch_scc1 G2_NR{r}")
            for j in range(8): P(f"{M16} {vr(RD,4)}, {vr(RA,4)}, {vr(TR+4*((8*r+j)&15),4)}, {vr(RD,4) if (r or j) else 0}")
            P.label(f"G2_NR{r}")
        return f
    for r in range(NR):
        tb = G2T[8 * r]; te = G2T[8 * r + 7]
        assert bar_upto(tb) > sch["ws"][r] + 1 and (r < 2 or sch["ws"][r] >= bar_after(G2T[8 * r - 9]))
        PRE[bar_upto(tb)].append(lambda r=r: vm.need(f"WS{r}"))
        if tb % 4 and (r == 0 or G2T[8 * r - 1] < tb - 1 or not sch.get("rdl", 1)): add(tb - 1, rd(8 * r), rd(8 * r + 1))
        else: X[tb] = [rd(8 * r), rd(8 * r + 1)] + X[tb]
        for k in range(8): add(G2T[8 * r + k], g2mm(8 * r + k))
        add(te, rowjob(r))
    OROT = opt.get("orot")
    def wo_setup():
        srd(P, 44, P_WO, 2 * MB)
        P("v_lshrrev_b32 v6, 3, v0"); P("v_and_b32 v7, 7, v0"); P(f"v_bfe_u32 v{DO}, v0, 4, 1"); P(f"v_lshlrev_b32 v{DO}, 2, v{DO}"); P(f"v_xor_b32 v7, v7, v{DO}")
        P("v_lshlrev_b32 v7, 4, v7"); P("v_lshl_add_u32 v7, v6, 11, v7")
        P("s_lshl_b32 s3, s54, 20"); P(f"s_lshl_b32 s59, {S_WL}, 16"); P("s_add_u32 s3, s3, s59"); P("s_lshl_b32 s59, s62, 7"); P("s_add_u32 s3, s3, s59")
        if OROT:
            P(f"s_and_b32 s99, {S_J}, {OROT[0]}"); P(f"s_lshl_b32 s99, s99, {17+OROT[1]}"); P("s_and_b32 s59, s99, 0x120000"); P("s_xor_b32 s3, s3, s59"); P("s_and_b32 s99, s99, 0xc0000")
        P(f"v_add_u32 v{DO}, s3, v7")
        P(f"s_lshl_b32 s59, {S_W}, 12")
    def wo_setup2():
        for n in range(1, 4): P(f"v_add_u32 v{DO+n}, {n*(16384-1024)}, v{DO}")
    def wo_setup3():
        P("s_lshl_b32 s61, s61, 2"); P(f"s_add_u32 s61, s61, {S_WL}")
        P("s_lshl_b32 s3, s61, 1"); P("s_add_u32 s3, s3, s54"); P("s_lshl_b32 s60, s3, 15")
        if OROT:
            P(f"s_and_b32 s3, {S_J}, {OROT[0]}"); P(f"s_lshl_b32 s3, s3, {12+OROT[1]}"); P("s_xor_b32 s60, s60, s3"); P("s_lshr_b32 s3, s60, 15")
        P(f"s_add_u32 s60, s60, {WS_OF}"); P("s_lshl_b32 s3, s3, 7"); P(f"s_add_u32 s3, s3, {FL4}")
        P(f"v_and_b32 v{FA}, 15, v0"); P(f"v_lshlrev_b32 v{FA}, 3, v{FA}"); P(f"v_add_u32 v{FA}, s3, v{FA}")
    tw = sch.get("tw", sch["ws"][-1] + 2)
    assert tw > sch["wot"] and tw + 1 < min(sch["wo"]) and sch["wo"][0] >= bar_after(G2T[-9]) and sch["wo"][1] >= bar_after(G2T[-1]) and sch["wo"][2] >= 56 and sch["wo"][3] >= 60
    add(tw, wo_setup); add(tw + 1, wo_setup2); t3 = sch.get("t3", max(max(sch["tt"]), sch["wot"], sch["pf"]) + 1); assert t3 > max(max(sch["tt"]), sch["wot"])
    add(t3, wo_setup3)
    for o in range(4):
        for n in range(4): add(sch["wo"][o] + n // sch.get("wor", 2), dma(f"WO{o}", WOU[o], o * 0x40000, DO, n, "s59", "s99" if OROT else None))

    SPEC = opt.get("spec", 1)
    if SPEC:
        def poison():
            for i in range(4): P(f"v_mov_b32 v{CC+i}, -1")
            P("s_lshl_b32 s3, s64, 11"); P(f"s_add_u32 s3, s3, {WS_OF}")
            for h in range(2): vm.issue(f"buffer_store_dwordx4 {vr(CC,4)}, v1, {RWS}, s3 offen offset:{1024*h} sc1", "PO")
        def pflag():
            nonce_v()
            P("s_lshl_b32 s3, s64, 3"); P(f"s_add_u32 s3, s3, {FL4}")
            vm.need("PO")
            vm.issue(f"buffer_store_dwordx2 v[6:7], v{XSA}, {RWS}, s3 offen sc1", "F4")
        assert sch["po"] < sch["cc"]
        add(sch["po"], poison); add(sch["pf"], pflag)
        add(t3 + 1, ld(KLOAD, "OF")); add(t3 + 6, check("OF", "CK4", KLOAD))
    order = opt.get("order", "ee P eee L ee M eee N ee p eee l e").replace(" ", "")
    for t in range(64):
        vm.now = t
        S, Tn = (SA, SB) if t % 2 == 0 else (SB, SA)
        ex = list(X[t])
        evt = (t % 4 == 0 and t) or t == 2
        first = order[:order.index("P")].count("e") if evt else 0
        nsl = 16 - first
        pos = {}
        for n, f in enumerate(ex): pos.setdefault(first + (n * nsl) // max(len(ex), 1), []).append(f)
        e = 0
        for ch in order:
            if ch == "e":
                P(f"v_exp_f32 v{S+e}, v{S+e}")
                for f in pos.get(e, []): f()
                e += 1
            elif ch == "P":
                if t:
                    lg.need("V1")
                    P(f"v_smfmac_f32_32x32x32_bf16 {vr(O,16)}, {vr(V+4,4)}, {vr(Tn+8,8)}, v5")
                if evt:
                    for f in PRE[t]: f()
                    lg.drain()
                    if not opt.get("nobar"): P("s_barrier")
                else: assert not PRE[t]
                PR = opt.get("prio")
                if PR and PR[t % len(PR)] >= 0: P(f"s_setprio {PR[t % len(PR)]}")
                lg.issue(f"ds_read_b128 {vr(V+4,4)}, {at(t,3072)}", "V1")
            elif ch == "L":
                if t: P(f"v_smfmac_f32_16x16x64_bf16 {vr(LS,4)}, {vr(ONES,4)}, {vr(Tn+8,8)}, v5")
            elif ch == "M":
                if t < 63:
                    lg.need("K0")
                    P(f"{M32} {vr(Tn,16)}, {vr(K,4)}, {vr(Q,4)}, {vr(C,16)}")
                if t < 62: lg.issue(f"ds_read_b128 {vr(K,4)}, {at(t+2,0)}", "K0")
            elif ch == "N":
                PR = opt.get("prio2")
                if PR and PR[t % len(PR)] >= 0: P(f"s_setprio {PR[t % len(PR)]}")
                if t < 63:
                    lg.need("K1")
                    P(f"{M32} {vr(Tn,16)}, {vr(K+4,4)}, {vr(Q+4,4)}, {vr(Tn,16)}")
                if t < 62: lg.issue(f"ds_read_b128 {vr(K+4,4)}, {at(t+2,1024)}", "K1")
            elif ch == "p":
                lg.need("V0")
                P(f"v_smfmac_f32_32x32x32_bf16 {vr(O,16)}, {vr(V,4)}, {vr(S,8)}, v5")
                if t < 63: lg.issue(f"ds_read_b128 {vr(V,4)}, {at(t+1,2048)}", "V0")
            elif ch == "l":
                P(f"v_smfmac_f32_16x16x64_bf16 {vr(LS,4)}, {vr(ONES,4)}, {vr(S,8)}, v5")
        if opt.get("tsa") and t in (15, 31, 47): P(f"; TS {20 + t // 16}")
        if "tse" in opt and t in opt["tse"]: P(f"; TSE {opt['tse'].index(t)}")
    vm.now = 64
    def kvspin():
        P.label("KVSPIN")
        P("s_waitcnt vmcnt(0)")
        spin(P, KLOAD, kv_ok("s62"))
        P(f"s_setpc_b64 {LINK}")
    ool.append(kvspin)
    lg.need("V1")
    P(f"v_smfmac_f32_32x32x32_bf16 {vr(O,16)}, {vr(V+4,4)}, {vr(SB+8,8)}, v5")
    P(f"v_smfmac_f32_16x16x64_bf16 {vr(LS,4)}, {vr(ONES,4)}, {vr(SB+8,8)}, v5")
    lg.drain()
    P("; TS 12")
    if opt.get("prio"): P("s_setprio 0")
    for q in range(1, 4):
        P(f"s_xor_b32 s3, {S_W}, {(q & 1) | ((q >> 1) << 2)}"); P("s_lshl_b32 s3, s3, 12"); P(f"v_add_u32 v{AF+q}, s3, v1")
    P(f"v_add_f32 v6, |v{O}|, |v{O+1}|"); P(f"v_add_f32 v7, |v{O+2}|, |v{O+3}|")
    for i in range(4, 16, 2):
        P(f"v_add_f32 v6, v6, |v{O+i}|"); P(f"v_add_f32 v7, v7, |v{O+i+1}|")
    P("v_add_f32 v6, v6, v7")
    P(f"s_mov_b32 s3, {f32hex(2.0**-104)}"); P(f"s_mov_b32 s52, {f32hex(2.0**120)}")
    P("v_cmp_lt_f32 s[96:97], s3, v6"); P("v_cmp_gt_f32 s[100:101], s52, v6"); P(f"v_cmp_gt_f32 vcc, s52, v{LS}")
    P("s_and_b64 s[96:97], s[96:97], s[100:101]"); P("s_and_b64 s[96:97], s[96:97], vcc")
    if opt.get("force_slow"): P("s_mov_b64 s[96:97], 0")
    P("s_cmp_eq_u64 s[96:97], -1")
    P("s_cbranch_scc0 AT_SLOW")
    def slow():
        P.label("AT_SLOW")
        P("v_mov_b32 v6, 0xff800000"); P("s_mov_b32 s3, s65"); P("s_add_u32 s52, s65, 0x40000")
        P.label("AT_MP")
        P(f"buffer_load_dwordx4 {vr(K,4)}, v1, s[40:43], s3 offen sc1"); P(f"buffer_load_dwordx4 {vr(K+4,4)}, v1, s[40:43], s3 offen offset:1024 sc1")
        P("s_waitcnt vmcnt(0)")
        P(f"{M32} {vr(SA,16)}, {vr(K,4)}, {vr(Q,4)}, 0"); P(f"{M32} {vr(SA,16)}, {vr(K+4,4)}, {vr(Q+4,4)}, {vr(SA,16)}")
        for i in range(8): P(f"v_max3_f32 v6, v6, v{SA+2*i}, v{SA+2*i+1}")
        P("s_add_u32 s3, s3, 4096"); P("s_cmp_lg_u32 s3, s52"); P("s_cbranch_scc1 AT_MP")
        P("v_mov_b32 v7, v6"); P("v_permlane32_swap_b32 v6, v7"); P("v_max_f32 v6, v6, v7")
        for i in range(16): P(f"v_sub_f32 v{C+i}, 0, v6")
        for i in range(16): P(f"v_mov_b32 v{O+i}, 0")
        for i in range(4): P(f"v_mov_b32 v{LS+i}, 0")
        P("s_mov_b32 s3, s65")
        P.label("AT_SL")
        for i, r in enumerate((K, K + 4, V, V + 4)): P(f"buffer_load_dwordx4 {vr(r,4)}, v1, s[40:43], s3 offen offset:{1024*i} sc1")
        P("s_waitcnt vmcnt(0)")
        P(f"{M32} {vr(SA,16)}, {vr(K,4)}, {vr(Q,4)}, {vr(C,16)}"); P(f"{M32} {vr(SA,16)}, {vr(K+4,4)}, {vr(Q+4,4)}, {vr(SA,16)}")
        for i in range(16): P(f"v_exp_f32 v{SA+i}, v{SA+i}")
        P(f"v_smfmac_f32_32x32x32_bf16 {vr(O,16)}, {vr(V,4)}, {vr(SA,8)}, v5"); P(f"v_smfmac_f32_16x16x64_bf16 {vr(LS,4)}, {vr(ONES,4)}, {vr(SA,8)}, v5")
        P(f"v_smfmac_f32_32x32x32_bf16 {vr(O,16)}, {vr(V+4,4)}, {vr(SA+8,8)}, v5"); P(f"v_smfmac_f32_16x16x64_bf16 {vr(LS,4)}, {vr(ONES,4)}, {vr(SA+8,8)}, v5")
        P("s_nop 15")
        P("s_add_u32 s3, s3, 4096"); P("s_cmp_lg_u32 s3, s52"); P("s_cbranch_scc1 AT_SL")
        P("s_branch AT_FIN")
    ool.append(slow)
    P.label("AT_FIN")
    P(f"v_rcp_f32 v6, v{LS}")
    P("s_lshl_b32 s3, s64, 11"); P(f"s_add_u32 s3, s3, {WS_OF}")
    for h in range(2):
        for i in range(8 * h, 8 * h + 8): P(f"v_mul_f32 v{O+i}, v6, v{O+i}")
        for i in range(4 * h, 4 * h + 4): P(f"v_cvt_pk_bf16_f32 v{SB+8+i}, v{O+2*i}, v{O+2*i+1}")
        if SPEC:
            for i in range(4 * h, 4 * h + 4): P(f"v_min_u32 v{SB+8+i}, -2, v{SB+8+i}")
        vm.issue(f"buffer_store_dwordx4 {vr(SB+8+4*h,4)}, v1, {RWS}, s3 offen offset:{1024*h} sc1", "OS")
    P("s_lshl_b32 s64, s64, 3"); P(f"s_add_u32 s64, s64, {FL4}")
    return vm, ool

def tail(P, opt, vm, ool):
    lg = LG(P)
    A0, A1 = 32, 48
    def OFr(i): return (128 + 4 * i) if i < 16 else (64 + 4 * (i - 16)) if i < 24 else 128 + 4 * (i - 24)
    SPEC = opt.get("spec", 1)
    LEAD = opt.get("lead", 24 if SPEC else 10)
    SPN = opt.get("spn", [0, 0, 4, 4])
    if SPN: LEAD = sum(SPN)
    def oload(i, so): return f"buffer_load_dwordx4 {vr(OFr(i),4)}, v1, {RWS}, {so} offen offset:{1024*(i%4)} sc1"
    def old(i):
        if i % 4 == 0: P(f"s_xor_b32 s101, s60, {1024*i}")
        vm.issue(oload(i, "s101").replace(" sc1", opt.get("o1", " sc1")), f"O{i}")
    def spec(p):
        if SPN:
            for i in range(sum(SPN[:p]), sum(SPN[:p+1])): old(i)
            if p == 3: P("; TS 17")
        elif SPEC and opt.get("sp", 3) == p:
            for i in range(LEAD): old(i)
            P("; TS 17")
    def gchk(g):
        r = [OFr(4 * g + q) + d for q in range(4) for d in range(4)]
        P(f"v_max3_u32 v6, v{r[0]}, v{r[1]}, v{r[2]}"); P(f"v_max3_u32 v7, v{r[3]}, v{r[4]}, v{r[5]}")
        for n in range(6, 16, 2): P(f"v_max3_u32 v{6+(n>>1&1)}, v{6+(n>>1&1)}, v{r[n]}, v{r[n+1]}")
        P("v_max_u32 v6, v6, v7"); P("v_cmp_eq_u32 vcc, -1, v6"); P("s_cmp_eq_u64 vcc, 0")
    def group(g):
        vm.need(f"O{4*g+3}")
        gchk(g)
        P(f"s_cbranch_scc0 OG{g}")
        P.label(f"OB{g}")
        def o():
            P.label(f"OG{g}")
            P("s_waitcnt vmcnt(0)")
            P.label(f"OL{g}")
            P(f"s_sub_u32 {S_TMO}, {S_TMO}, 1"); P(f"s_cbranch_scc1 OT{g}")
            P(f"s_sleep {opt.get('osl', 1)}")
            for h in range(g, min(8, (4 * g + LEAD) // 4)):
                if h > g: gchk(h); P(f"s_cbranch_scc1 OS{g}_{h}")
                P(f"s_xor_b32 s3, s60, {4096*h}")
                for q in range(4): P(oload(4 * h + q, "s3"))
                if h > g: P.label(f"OS{g}_{h}")
            P("s_waitcnt vmcnt(0)")
            gchk(g)
            P(f"s_cbranch_scc0 OL{g}")
            P(f"s_branch OB{g}")
            P.label(f"OT{g}")
            P(f"s_mov_b32 {S_TMO}, 0")
            P(f"s_branch OB{g}")
        ool.append(o)
    assert LEAD % 4 == 0 or not SPEC
    P("; TS 13")
    spec(0)
    P("s_barrier")
    for q in range(1, 4): lg.issue(f"ds_write_b128 v{AF+q}, {vr(AC+4*q,4)} offset:{(q-1)*1024}", "XW")
    P(f"s_andn2_b32 s3, {S_W}, 1"); P("s_lshl_b32 s3, s3, 12"); P("s_lshl_b32 s52, s56, 7"); P("s_add_u32 s3, s3, s52"); P("s_add_u32 s3, s3, 3072")
    P("v_lshlrev_b32 v6, 2, v0"); P("v_add_u32 v7, 0x200, v6"); P("v_cmp_gt_u32 vcc, 16, v0"); P("v_cndmask_b32 v6, v7, v6, vcc"); P("v_add_u32 v6, s3, v6")
    lg.issue(f"ds_write2_b32 v6, v{RD}, v{RD+1} offset0:0 offset1:16", "XW")
    P(f"v_add_u32 v{AF}, s59, v1")
    P("v_lshrrev_b32 v2, 5, v0"); P("v_bfe_u32 v3, v0, 2, 2"); P("v_lshl_add_u32 v2, v2, 2, v3"); P("v_lshlrev_b32 v2, 7, v2")
    P("v_bfe_u32 v3, v0, 3, 1"); P("v_xor_b32 v3, s54, v3"); P("v_lshl_add_u32 v2, v3, 6, v2")
    P("v_bfe_u32 v3, v0, 4, 1"); P("v_lshl_add_u32 v2, v3, 5, v2")
    P("v_and_b32 v3, 3, v0"); P("v_lshl_add_u32 v2, v3, 3, v2")
    P("s_lshl_b32 s3, s54, 14"); P(f"s_add_u32 s3, s3, {U[1]}"); P("v_add_u32 v2, s3, v2"); P("v_xor_b32 v3, 64, v2")
    P(f"v_add_u32 v4, {U[2]}, v2"); P(f"v_add_u32 v5, {U[2]}, v3")
    def f4():
        P("v_mov_b32 v6, s32"); P("v_mov_b32 v7, s33")
        vm.need("OS")
        vm.issue(f"buffer_store_dwordx2 v[6:7], v{XSA}, {RWS}, s64 offen sc1", "F4")
        P("; TS 15")
    vm.need("WO0", "WO1", "WO2", "WO3")
    lg.drain()
    F4 = -1 if SPEC else opt.get("f4", 0)
    if F4 == 0: f4()
    spec(1)
    P("s_barrier")
    for q in range(3): lg.issue(f"ds_read_b128 {vr(AC+4+4*q,4)}, v{AF} offset:{1024*q}", "XR")
    P(f"v_add_u32 v6, s59, v{F1A}")
    lg.issue(f"ds_read_b32 v{RD}, v6 offset:3072", "XR"); lg.issue(f"ds_read_b32 v{RD+1}, v6 offset:3200", "XR")
    def ord_(i):
        o, k = i >> 3, i & 7
        f = QF[i % 3]; u = WOU[o]
        b = 2 if u < 3 else 4; off = ((u - 1) & 1) * 32768 + k * 2048
        return [(f"ds_read_b64_tr_b16 {vr(f,2)}, v{b} offset:{off}", f"F{i}a"), (f"ds_read_b64_tr_b16 {vr(f+2,2)}, v{b} offset:{off+1024}", f"F{i}a"),
                (f"ds_read_b64_tr_b16 {vr(f+4,2)}, v{b+1} offset:{off}", f"F{i}b"), (f"ds_read_b64_tr_b16 {vr(f+6,2)}, v{b+1} offset:{off+1024}", f"F{i}b")]
    for r in ord_(0) + ord_(1): lg.issue(*r)
    E0, CL, CM, RR, RM, SAD, OV = 212, 213, 214, 215, 216, 236, 220
    P("s_lshr_b32 s3, s58, 1"); P("s_lshl_b32 s3, s3, 6"); P("s_add_u32 s3, s3, s55"); P("s_lshl_b32 s3, s3, 1"); P(f"v_add_u32 v{CL}, s3, v{F1A}")
    P("s_lshl_b32 s3, s57, 31"); vm.need("GE"); P(f"v_xor_b32 v{E0}, s3, v{RW}")
    P(f"v_sub_u32 v{CM}, 2048, v{CL}"); P(f"v_mov_b32 v6, {OOB}"); P(f"v_cmp_eq_u32 vcc, 0, v{CL}"); P(f"v_cndmask_b32 v{CM}, v{CM}, v6, vcc")
    P(f"v_lshrrev_b32 v{RR}, 5, v0"); P(f"v_lshlrev_b32 v{RR}, 15, v{RR}")
    P("s_lshr_b32 s3, s57, 1"); P("s_lshl_b32 s3, s3, 18"); P("s_lshl_b32 s52, s63, 16"); P("s_add_u32 s3, s3, s52")
    P("s_and_b32 s52, s57, 1"); P("s_lshl_b32 s52, s52, 12"); P("s_add_u32 s3, s3, s52"); P(f"v_add_u32 v{RR}, s3, v{RR}")
    P(f"v_sub_u32 v{RM}, {8*MB}, v{RR}")
    P(f"v_add_u32 v{SAD}, v{RR}, v{CL}"); P(f"v_add_u32 v{SAD+1}, v{RM}, v{CM}"); P(f"v_add_u32 v{SAD+2}, v{RM}, v{CL}"); P(f"v_add_u32 v{SAD+3}, v{RR}, v{CM}")
    for r in range(1, 4):
        a = SAD + 4 * r
        P(f"v_add_u32 v{a}, {8192*r}, v{SAD}"); P(f"v_subrev_u32 v{a+1}, {8192*r}, v{SAD+1}"); P(f"v_subrev_u32 v{a+2}, {8192*r}, v{SAD+2}"); P(f"v_add_u32 v{a+3}, {8192*r}, v{SAD+3}")
    P("s_lshl_b32 s52, s54, 31")
    if F4 == 1: f4()
    spec(2)
    vm.need("GE")
    lg.need("XR")
    for r in range(4):
        P(f"v_add_f32 v{AC+r}, v{AC+r}, v{AC+4+r}")
        P(f"v_add_f32 v{AC+8+r}, v{AC+8+r}, v{AC+12+r}")
        P(f"v_sub_f32 v6, v{AC+r}, v{AC+8+r}")
        P(f"v_add_f32 v7, v{AC+r}, v{AC+8+r}")
        P("v_xor_b32 v6, s52, v6")
        op = "v_sub_f32" if r & 1 else "v_add_f32"
        P(f"{op} v6, v6, v{RW}"); P(f"{op} v7, v7, v{E0}")
        P(f"v_cvt_pk_bf16_f32 v{OV+r}, v6, v7")
    P(f"v_add_f32 v{RD}, v{RD}, v{RD+1}"); P(f"v_add_f32 v{RD}, v{RD}, v{RW}"); P(f"v_cvt_pk_bf16_f32 v{RD}, v{RD}, v{RD}")
    P("s_or_b32 s53, s53, s56"); P("s_cmp_eq_u32 s53, 0"); P(f"s_cselect_b32 s53, {4*MB}, {OOB}")
    ST = []
    for r in range(4):
        a = SAD + 4 * r
        ST += [f"buffer_store_short v{OV+r}, v{a}, s[48:51], 0 offen", f"buffer_store_short v{OV+r}, v{a+1}, s[48:51], 0 offen",
               f"buffer_store_short_d16_hi v{OV+r}, v{a+2}, s[48:51], 0 offen", f"buffer_store_short_d16_hi v{OV+r}, v{a+3}, s[48:51], 0 offen"]
    ST += [f"buffer_store_short v{RD}, v{CL}, s[48:51], s53 offen", f"buffer_store_short v{RD}, v{CM}, s[48:51], s53 offen"]
    ST = [x + opt.get("asc", "") for x in ST]
    if opt.get("fk3", 0) & 16: ST = ST[:4]
    n1, st0, str_ = opt.get("st", (0, 32 - LEAD, 1 if SPEC else 2))
    P("; TS 14")
    spec(3)
    if F4 == 2: f4()
    for s in ST[:n1]: vm.issue(s, "ST")
    ST = ST[n1:]
    if not SPEC:
        vm.issue(KLOAD, "OF")
        vm.need("OF")
        spin(P, KLOAD, flags_ok(P, FV))
        P("; TS 16")
        for i in range(LEAD): old(i)
        P("; TS 17")
    for i in range(32):
        R = ord_(i + 2) if i + 2 < 32 else []
        f = QF[i % 3]
        if SPEC and i % 4 == 0:
            group(i // 4)
            if i == 0: P("; TS 16")
            if i == 16: P("; TS 15")
        for half in range(2):
            lg.need(f"F{i}" + "ab"[half])
            if half == 0: vm.need(f"O{i}")
            a = (A0, A1)[half]
            if opt.get("m16f", 0) & 4:
                for hf in range(2):
                    a2 = a + 8 * (i & 1) + 4 * hf
                    P(f"{M16} {vr(a2,4)}, {vr(f+4*half,4)}, {vr(OFr(i-(hf if i&3 else -hf)),4)}, {vr(a2,4) if i > 1 else 0}")
            else: P(f"{M32} {vr(a,16)}, {vr(f+4*half,4)}, {vr(OFr(i),4)}, {vr(a,16) if i else 0}")
            for r in R[2 * half:2 * half + 2]: lg.issue(*r)
        if i + LEAD < 32: old(i + LEAD)
        if i >= st0:
            for s in ST[:str_]: vm.issue(s, "ST")
            ST = ST[str_:]
    for s in ST: vm.issue(s, "ST")
    P("; TS 18")
    P(f"v_xor_b32 v3, 0x4000, v{AF}")
    for g in range(4): lg.issue(f"ds_write_b128 v{AF}, {vr(A1+4*g,4)} offset:{1024*g}", "XW")
    P("v_and_b32 v4, 31, v0"); P("v_lshrrev_b32 v5, 5, v0"); P("v_lshlrev_b32 v5, 4, v5"); P("v_lshl_add_u32 v4, v4, 12, v5")
    P("s_lshl_b32 s3, s61, 17"); P("s_lshl_b32 s59, s62, 7"); P("s_add_u32 s3, s3, s59"); P("s_lshl_b32 s59, s54, 6"); P("s_add_u32 s3, s3, s59"); P("s_add_u32 s3, s3, 2048")
    lg.drain()
    P("s_barrier")
    for g in range(4): lg.issue(f"ds_read_b128 {vr(A1+4*g,4)}, v3 offset:{1024*g}", f"XR{g}")
    for g in range(4):
        lg.need(f"XR{g}")
        for i in range(4): P(f"v_add_f32 v{A0+4*g+i}, v{A0+4*g+i}, v{A1+4*g+i}")
        P(f"v_cvt_pk_bf16_f32 v{8+2*g}, v{A0+4*g}, v{A0+4*g+1}"); P(f"v_cvt_pk_bf16_f32 v{9+2*g}, v{A0+4*g+2}, v{A0+4*g+3}")
        if g & 1:
            t = 8 + 4 * (g >> 1)
            P(f"v_permlane32_swap_b32 v{t}, v{t+2}"); P(f"v_permlane32_swap_b32 v{t+1}, v{t+3}")
            P(f"buffer_store_dwordx4 {vr(t,4)}, v4, s[48:51], s3 offen offset:{32*(g>>1)}" + opt.get("osc", ""))
    if opt.get("vlog"):
        for now, tags, d in vm.log:
            print(f"  t{now} need {','.join(tags)}: " + " ".join(f"{g}@{t}" for g, t in d.items()))

def fused(opt):
    opt.setdefault("xo", 1); opt.setdefault("prio", [3, 2, 1, 0])
    P = Prog()
    sk, sv = (0, 0)
    P("s_cmp_ge_u32 s2, 256"); P("s_cbranch_scc1 F_END")
    P("s_load_dwordx16 s[4:19], s[0:1], 0")
    P("s_load_dwordx4 s[20:23], s[0:1], 64")
    P("s_load_dwordx2 s[24:25], s[0:1], 80")
    if opt.get("cpf", 0):
        P("s_getpc_b64 s[40:41]"); P(f"s_mov_b32 s42, {opt['cpf']}"); P("s_mov_b32 s43, 0x00020000")
        P("s_lshl_b32 s3, s2, 4"); P("s_and_b32 s3, s3, 128")
        P("v_lshlrev_b32 v1, 8, v0")
        P("buffer_load_dword v24, v1, s[40:43], s3 offen")
    P("v_lshrrev_b32 v1, 6, v0"); P("v_and_b32 v0, 63, v0"); P(f"v_readfirstlane_b32 {S_W}, v1")
    P(f"s_and_b32 {S_XCD}, s2, 7"); P(f"s_lshr_b32 {S_J}, s2, 3")
    P(f"s_and_b32 s3, {S_XCD}, 1"); P(f"s_lshr_b32 s52, {S_J}, 2")
    P(f"s_lshl_b32 {S_RB}, s3, 3"); P(f"s_add_u32 {S_RB}, {S_RB}, s52")
    if opt.get("xo") == 1: P(f"s_mov_b32 {S_PRB}, {S_RB}")
    else: P(f"s_lshl_b32 {S_PRB}, s52, 1"); P(f"s_add_u32 {S_PRB}, {S_PRB}, s3")
    P(f"s_lshr_b32 {S_CB}, {S_XCD}, 1"); P(f"s_lshl_b32 {S_CB}, {S_CB}, 2"); P(f"s_and_b32 s3, {S_J}, 3"); P(f"s_add_u32 {S_CB}, {S_CB}, s3")
    P(f"s_add_u32 s52, {S_CB}, {sk}"); P("s_and_b32 s52, s52, 15")
    P(f"s_add_u32 s53, {S_CB}, {sv}"); P("s_and_b32 s53, s53, 15")
    P(f"s_and_b32 {S_WL}, {S_W}, 3")
    rot = opt.get("rot")
    if rot == 1: P(f"s_lshl_b32 s101, {S_XCD}, 1")
    if rot == 2: P(f"s_lshr_b32 s101, {S_XCD}, 1"); P("s_lshl_b32 s101, s101, 2")
    if rot == 3: P(f"s_and_b32 s101, {S_XCD}, 1"); P("s_lshl_b32 s101, s101, 3")
    if rot == 4: P(f"s_lshr_b32 s101, {S_J}, 2"); P("s_lshl_b32 s101, s101, 1")
    if rot == 6: P(f"s_lshr_b32 s101, {S_J}, 2"); P(f"s_lshl_b32 s3, {S_J}, 1"); P("s_add_u32 s101, s101, s3"); P("s_lshl_b32 s101, s101, 1")
    if rot == 7: P(f"s_lshr_b32 s101, {S_J}, 2"); P(f"s_lshl_b32 s3, {S_J}, 1"); P("s_add_u32 s101, s101, s3"); P("s_lshl_b32 s101, s101, 1"); P(f"s_add_u32 s101, s101, {S_XCD}")
    if isinstance(rot, list):
        a, ma, b, mb, c, d = rot
        P(f"s_and_b32 s3, {S_J}, 3"); P(f"s_mul_i32 s3, s3, {a}"); P(f"s_and_b32 s3, s3, {ma}")
        P(f"s_lshr_b32 s101, {S_J}, 2"); P(f"s_mul_i32 s101, s101, {b}"); P(f"s_and_b32 s101, s101, {mb}"); P("s_add_u32 s101, s101, s3")
        if c: P(f"s_lshr_b32 s3, {S_XCD}, 1"); P(f"s_mul_i32 s3, s3, {c}"); P("s_add_u32 s101, s101, s3")
        if d: P(f"s_and_b32 s3, {S_XCD}, 1"); P(f"s_mul_i32 s3, s3, {d}"); P("s_add_u32 s101, s101, s3")
    if rot == 5: P(f"s_and_b32 s101, {S_J}, 3"); P("s_lshl_b32 s101, s101, 2")
    P(f"s_movk_i32 {S_TMO}, {opt.get('tmo', 20000)}")
    if opt.get("lfirst", 0):
        P(f"s_cmp_lt_u32 {S_W}, 4"); P("s_cbranch_scc1 F_C")
        phase1_L(P, opt)
        P("s_branch F_ATT")
        P.label("F_C")
        phase1_C(P, opt)
        P.L.pop()
    else:
        P(f"s_cmp_ge_u32 {S_W}, 4"); P("s_cbranch_scc1 F_L")
        phase1_C(P, opt)
        P.label("F_L")
        phase1_L(P, opt)
    vm, ool = attention(P, opt)
    tail(P, opt, vm, ool)
    P.label("F_END")
    P("s_endpgm")
    for o in ool: o()
    return P.L

def build(opt, verbose=False):
    head = []
    for line in open(REF):
        if line.startswith("; @launch"): break
        head.append(line.rstrip("\n"))
    L = fused(opt)
    if "tse" in opt:
        keep = opt.get("keep", [])
        L = [x.replace("; TSE", "; TS") for x in L if not (x.startswith("; TS ") and int(x.split()[2]) not in keep)]
    if "rt" in opt:
        L2 = []
        for x in L:
            if x.startswith("; TS "):
                n = int(x.split()[2])
                if n in opt["rt"]:
                    k = opt["rt"].index(n)
                    L2 += [f"; TS {k}", "s_memrealtime s[68:69]", "s_waitcnt lgkmcnt(0)", f"s_sub_u32 s{82+k}, s68, s66"]
            else: L2.append(x)
        L = L2
    if opt.get("prof"):
        L = prof(L)
        if opt.get('wsoff'):
            i = L.index('F_PROF:'); L[i+1:i+1] = [f"s_sub_u32 s24, s24, {opt['wsoff']*MB}", 's_subb_u32 s25, s25, 0']
    out = head + ["; @launch grid=(256,1,1) block=(512,1,1) lds=163840", '.amdgcn_target "amdgcn-amd-amdhsa--gfx950"', ".text", khead(NAME)]
    rep = []
    out.append(fmt(pad(L, rep)))
    if verbose:
        print(len(L), "instr; nops:", sum(k for k, _ in rep))
        for k, s in rep: print("   ", k, s)
    out.append('.section .rodata,"a"')
    out.append(kdesc(NAME, 256, 102))
    return "\n".join(out) + "\n"

if __name__ == "__main__":
    import json
    opt = json.loads(sys.argv[2]) if len(sys.argv) > 2 else {}
    open(sys.argv[1], "w").write(build(opt, verbose=True))
```
